```python
import torch

def _softmax(x, axis=-1):
    return torch.softmax(x, dim=axis)
def _gelu(x):
    return torch.nn.functional.gelu(x, approximate="tanh")
def _silu(x):
    return torch.nn.functional.silu(x)
def _sigmoid(x):
    return torch.sigmoid(x)
def _layernorm(x, axis=-1, eps=1e-5):
    m = x.mean(dim=axis, keepdim=True)
    v = x.var(dim=axis, keepdim=True, unbiased=False)
    return (x - m) / torch.sqrt(v + eps)
def _scatter_add(tgt, idx, src, axis=0):
    return tgt.clone().index_add_(axis, idx, src)
def _segment_sum(src, seg, n):
    out = torch.zeros((n,) + src.shape[1:], dtype=src.dtype)
    return out.index_add_(0, seg, src)
def _pad(x, pw):
    flat = tuple(v for pair in reversed(pw) for v in pair)
    return torch.nn.functional.pad(x, flat)

kernel_name = 'parallel_sum__compressed_kv_cla__glu_gated_geglu__prompt'

def setup_inputs():

    _w = (lambda a: (lambda t: t.to(torch.bfloat16) if t.is_floating_point() else t)(torch.as_tensor(a)))
    def _A_setup():
        B, H, Sq, Sk, D, M = 1, 32, 2048, 2048, 128, 576
        Dc = 4 * D
        return {
            "x": _w((lambda *s: torch.randn(*s, dtype=torch.bfloat16) * 0.05)(B, Sq, M)),
            "c_kv": _w((lambda *s: torch.randn(*s, dtype=torch.bfloat16) * 0.4)(B, Sk, Dc)),
            "w_q": _w((lambda *s: torch.randn(*s, dtype=torch.bfloat16) * 3.2)(M, H, D) * (M ** -0.5)),
            "w_uk": _w((lambda *s: torch.randn(*s, dtype=torch.bfloat16) * 3.2)(Dc, H, D) * (Dc ** -0.5)),
            "w_uv": _w((lambda *s: torch.randn(*s, dtype=torch.bfloat16) * 0.4)(Dc, H, D) * (Dc ** -0.5)),
            "w_o": _w((lambda *s: torch.randn(*s, dtype=torch.bfloat16) * 0.4)(H, D, M) * ((H * D) ** -0.5)),
        }
    _A_in = _A_setup()

    def _B_setup():
        B, S, Dm, Df = 1, 2048, 576, 4608
        return {
            "x": _w((lambda *s: torch.randn(*s, dtype=torch.bfloat16) * 0.05)(B, S, Dm)),
            "w_gate": _w((lambda *s: torch.randn(*s, dtype=torch.bfloat16) * 0.4)(Dm, Df) * (Dm ** -0.5)),
            "w_up": _w((lambda *s: torch.randn(*s, dtype=torch.bfloat16) * 0.4)(Dm, Df) * (Dm ** -0.5)),
            "w_down": _w((lambda *s: torch.randn(*s, dtype=torch.bfloat16) * 0.4)(Df, Dm) * (Df ** -0.5)),
        }
    _B_in = _B_setup()

    return {
        "A_x": _A_in["x"],
        "A_c_kv": _A_in["c_kv"],
        "A_w_q": _A_in["w_q"],
        "A_w_uk": _A_in["w_uk"],
        "A_w_uv": _A_in["w_uv"],
        "A_w_o": _A_in["w_o"],
        "B_x": _B_in["x"],
        "B_w_gate": _B_in["w_gate"],
        "B_w_up": _B_in["w_up"],
        "B_w_down": _B_in["w_down"],
    }

def reference(A_x, A_c_kv, A_w_q, A_w_uk, A_w_uv, A_w_o, B_x, B_w_gate, B_w_up, B_w_down):
    def _A_ref(x, c_kv, w_q, w_uk, w_uv, w_o):
        B, Sq, M = x.shape[0], x.shape[1], x.shape[2]
        Sk = c_kv.shape[1]
        H, D = w_q.shape[1], w_q.shape[2]
        q = torch.einsum("bqm,mhd->bhqd", x, w_q)
        k = torch.einsum("bkc,chd->bhkd", c_kv, w_uk)
        v = torch.einsum("bkc,chd->bhkd", c_kv, w_uv)
        scores = torch.einsum("bhqd,bhkd->bhqk", q, k) * (D ** -0.5)
        off = Sk - Sq
        qi = torch.arange(Sq)[:, None]
        kj = torch.arange(Sk)[None, :]
        cmask = kj <= (qi + off)
        scores = torch.where(cmask[None, None], scores, -1e9)
        p = _softmax(scores, axis=-1)
        ctx = torch.einsum("bhqk,bhkd->bhqd", p, v)
        return torch.einsum("bhqd,hdm->bqm", ctx, w_o)

    def _B_ref(x, w_gate, w_up, w_down):
        g = torch.einsum("bsd,df->bsf", x, w_gate)
        u = torch.einsum("bsd,df->bsf", x, w_up)
        h = _gelu(g) * u
        return torch.einsum("bsf,fd->bsd", h, w_down)

    x = A_x
    xn = _layernorm(x, axis=-1)
    return x + _A_ref(xn, A_c_kv, A_w_q, A_w_uk, A_w_uv, A_w_o) + _B_ref(xn, B_w_gate, B_w_up, B_w_down)
```

```python
import re

class Asm:
    def __init__(self):
        self.lines = []
    def __call__(self, s):
        for l in s.split('\n'):
            l = l.strip()
            if l:
                self.lines.append(l)
    def label(self, name):
        self.lines.append(name + ':')
    def c(self, s):
        self.lines.append('; ' + s)
    def text(self):
        out = []
        for l in self.lines:
            if l.endswith(':') or l.startswith('.') or l.startswith(';'):
                out.append(l)
            else:
                out.append('  ' + l)
        return '\n'.join(out) + '\n'

def vr(base, n=1, kind='v'):
    return f'{kind}{base}' if n == 1 else f'{kind}[{base}:{base+n-1}]'

class R:
    def __init__(self, kind, base, n=1):
        self.kind, self.base, self.n = kind, base, n
    def __str__(self):
        return vr(self.base, self.n, self.kind)
    def __repr__(self):
        return str(self)
    def __getitem__(self, i):
        if isinstance(i, slice):
            st = i.start or 0
            en = self.n if i.stop is None else i.stop
            assert 0 <= st < en <= self.n, (self, i)
            return R(self.kind, self.base + st, en - st)
        assert 0 <= i < self.n, (self, i)
        return R(self.kind, self.base + i, 1)
    def regs(self):
        return {(self.kind, self.base + i) for i in range(self.n)}

class Alloc:
    def __init__(self, kind, start, end):
        self.kind, self.cur, self.end = kind, start, end
        self.names = {}
    def __call__(self, n=1, align=1, name=None):
        if n >= 2: align = max(align, 2)
        self.cur = (self.cur + align - 1) // align * align
        r = R(self.kind, self.cur, n)
        self.cur += n
        assert self.cur <= self.end, f'out of {self.kind} regs: {self.cur} > {self.end} ({name})'
        if name: self.names[name] = r
        return r

_reg_re = re.compile(r'\b([vas])(\d+)\b|\b([vas])\[(\d+):(\d+)\]')
def regs_of(tok):
    out = set()
    for m in _reg_re.finditer(tok):
        if m.group(1):
            out.add((m.group(1), int(m.group(2))))
        else:
            for i in range(int(m.group(4)), int(m.group(5)) + 1):
                out.add((m.group(3), i))
    if re.search(r'\bvcc\b', tok): out |= {('s', 106), ('s', 107)}
    if re.search(r'\bm0\b', tok): out.add(('s', 124))
    if re.search(r'\bexec\b', tok): out |= {('s', 126), ('s', 127)}
    return out

TRANS = ('v_exp_f32', 'v_log_f32', 'v_rcp_f32', 'v_rsq_f32', 'v_sqrt_f32', 'v_sin_f32', 'v_cos_f32')

class Ins:
    def __init__(self, text):
        self.text = text
        t = text.split(';')[0].strip()
        p = t.split(None, 1)
        self.op = p[0]
        ops = [o.strip() for o in p[1].split(',')] if len(p) > 1 else []
        self.ops = ops
        op = self.op
        self.kind = 'other'
        self.wr = set(); self.rd = set()
        self.states = 1
        if op.startswith('v_mfma'):
            self.kind = 'mfma'
            self.wr = regs_of(ops[0]); self.A = regs_of(ops[1]); self.B = regs_of(ops[2]); self.C = regs_of(ops[3])
            self.rd = self.A | self.B | self.C
            self.passes = 8 if '32x32x16' in op else 4
        elif op.startswith('v_cmp'):
            self.kind = 'valu'
            self.wr = regs_of(ops[0]); self.rd = set().union(*[regs_of(o) for o in ops[1:]])
            if op.startswith('v_cmpx'): self.wr |= {('s', 126), ('s', 127)}
        elif op.startswith('v_readfirstlane') or op.startswith('v_readlane'):
            self.kind = 'valu'; self.lane = True
            self.wr = regs_of(ops[0]); self.rd = set().union(*[regs_of(o) for o in ops[1:]])
        elif op.startswith('v_permlane'):
            self.kind = 'valu'
            self.wr = regs_of(ops[0]) | regs_of(ops[1]); self.rd = set(self.wr)
        elif op.startswith('v_'):
            self.kind = 'valu'
            self.wr = regs_of(ops[0])
            rest = ops[1:]
            if op in ('v_add_co_u32', 'v_addc_co_u32', 'v_sub_co_u32', 'v_div_scale_f32', 'v_mad_u64_u32'):
                self.wr |= regs_of(ops[1]); rest = ops[2:]
            self.rd = set().union(*[regs_of(o) for o in rest]) if rest else set()
            if op.startswith('v_fmac') or op.startswith('v_dot2c') or op.startswith('v_pk_fmac') or op.startswith('v_writelane'):
                self.rd |= regs_of(ops[0])
            if 'dpp' in op or 'row_' in t or 'quad_perm' in t:
                self.dpp = True
                self.rd |= regs_of(ops[0])
            if op.startswith('v_cndmask') and len(ops) == 3: self.rd |= {('s', 106), ('s', 107)}
            if op.startswith('v_div_fmas'): self.rd |= {('s', 106), ('s', 107)}
        elif op.startswith('ds_'):
            self.kind = 'ds'
            if op.startswith('ds_read') or op.startswith('ds_bpermute') or op.startswith('ds_swizzle'):
                self.wr = regs_of(ops[0]); self.rd = set().union(*[regs_of(o.split(' ')[0]) for o in ops[1:]])
            else:
                self.rd = set().union(*[regs_of(o.split(' ')[0]) for o in ops])
        elif op.startswith('buffer_') or op.startswith('global_'):
            self.kind = 'vmem'
            isload = 'load' in op
            self.lds = bool(re.search(r'\blds\b', t))
            allr = [regs_of(o.replace('offen', '').replace('offset:', 'off:')) for o in ops]
            if op.startswith('buffer_wbl2') or op.startswith('buffer_inv'):
                pass
            elif isload and not self.lds:
                self.wr = allr[0]; self.rd = set().union(*allr[1:])
            else:
                self.rd = set().union(*allr)
                if self.lds: self.rd.add(('s', 124))
                if 'atomic' in op and re.search(r'\bsc0\b', t): self.wr = allr[0]
            self.widestore = (not isload) and ('x4' in op or 'x3' in op)
            if self.widestore:
                self.sdata = allr[0] if op.startswith('buffer_') else allr[1]
        elif op.startswith('s_nop'):
            self.kind = 'nop'; self.states = int(ops[0], 0) + 1
        elif op.startswith('s_waitcnt') or op.startswith('s_barrier') or op.startswith('s_cbranch') or op.startswith('s_branch') or op in ('s_endpgm', 's_setprio', 's_sleep'):
            self.kind = 'ctl'
        elif op.startswith('s_'):
            self.kind = 'salu'
            if op.startswith('s_cmp'):
                self.rd = set().union(*[regs_of(o) for o in ops])
            elif op.startswith('s_load') or op.startswith('s_memtime') or op.startswith('s_memrealtime') or op.startswith('s_buffer_load'):
                self.kind = 'smem'
                self.wr = regs_of(ops[0]); self.rd = set().union(*[regs_of(o) for o in ops[1:]]) if len(ops) > 1 else set()
            else:
                self.wr = regs_of(ops[0]); self.rd = set().union(*[regs_of(o) for o in ops[1:]]) if len(ops) > 1 else set()
                if 'saveexec' in op: self.wr |= {('s', 126), ('s', 127)}; self.rd |= {('s', 126), ('s', 127)}
    def vregs(self, s):
        return {r for r in s if r[0] in 'va'}

def check_hazards(lines, name='', window=24, verbose=True):
    ins = []
    for l in lines:
        l = l.strip()
        if not l or l.startswith(';') or l.startswith('.') or l.endswith(':'):
            continue
        ins.append(Ins(l))
    errs = []
    for j, c in enumerate(ins):
        dist = 0
        for i in range(j - 1, max(-1, j - window - 1), -1):
            p = ins[i]
            need = 0; why = ''
            cv_rd = c.vregs(c.rd); cv_wr = c.vregs(c.wr)
            pv_wr = p.vregs(p.wr)
            def upd(n, w):
                nonlocal need, why
                if n > need: need, why = n, w
            if p.kind == 'valu' and c.kind == 'mfma' and (pv_wr & cv_rd): upd(2, 'valu->mfma')
            if p.kind == 'mfma':
                big = p.passes == 8
                if c.kind in ('valu',) and (pv_wr & (cv_rd | cv_wr)): upd(12 if big else 8, 'mfmaD->valu')
                if c.kind in ('vmem', 'ds') and (pv_wr & (cv_rd | cv_wr)): upd(12 if big else 8, 'mfmaD->mem')
                if c.kind == 'mfma':
                    if pv_wr & (c.A | c.B): upd(12 if big else 8, 'mfmaD->mfmaAB')
                    if (pv_wr & c.C) and not (pv_wr == c.C and p.passes == c.passes): upd(10 if big else 6, 'mfmaD->mfmaC overlap')
                    if (pv_wr & c.wr) and not (pv_wr == c.wr) : upd(10 if big else 6, 'mfmaD->mfmaD overlap')
                if c.kind == 'valu' and (p.vregs(p.C) & cv_wr): upd(7 if big else 3, 'mfmaC WAR valu')
            if p.kind == 'valu':
                if p.op.startswith(TRANS) and c.kind in ('valu', 'mfma') and not c.op.startswith(TRANS) and (pv_wr & cv_rd): upd(1, 'trans->valu')
                if p.op.startswith(TRANS) and c.kind in ('valu',) and c.op.startswith(TRANS) and (pv_wr & cv_rd): upd(1, 'trans->trans')
                if c.kind == 'valu' and getattr(c, 'lane', False) and (pv_wr & cv_rd): upd(1, 'valu->readlane')
                if c.kind == 'valu' and c.op.startswith('v_permlane') and (pv_wr & cv_rd): upd(2, 'valu->permlane')
                if c.kind == 'valu' and getattr(c, 'dpp', False) and (pv_wr & cv_rd): upd(2, 'valu->dpp')
                ps = {r for r in p.wr if r[0] == 's'}
                if ps:
                    if c.kind == 'vmem' and (ps & c.rd): upd(5, 'valu sgpr->vmem')
                    if c.kind == 'valu' and (ps & c.rd): upd(4 if getattr(c, 'lane', False) else 2, 'valu sgpr->valu')
                    if ('s', 126) in ps and c.kind == 'mfma': upd(4, 'valu exec->mfma')
                    if c.kind == 'salu' and (ps & c.rd): upd(1, 'valu sgpr->salu (pad)')
            if p.kind == 'salu' and ('s', 124) in p.wr and c.kind == 'vmem' and getattr(c, 'lds', False): upd(1, 'm0->ldsdma')
            if p.kind == 'vmem' and getattr(p, 'widestore', False) and c.kind == 'valu' and (p.sdata & cv_wr): upd(2, 'widestore WAR')
            if p.kind == 'vmem' and getattr(p, 'widestore', False) and c.kind in ('ds', 'vmem', 'mfma') and (p.sdata & cv_wr): upd(1, 'widestore WAR')
            if need > dist:
                errs.append(f'{name}: {why}: need {need} have {dist}: [{p.text}] -> [{c.text}]')
            dist += p.states
            if dist >= 20: break
    if verbose:
        for e in errs[:40]: print('HAZARD', e)
    return errs
```

```python
from gen_common import *
import gen_common
from gen_gemm import mfma, interleave, lane_w_base, lane_w_dma
from gen_gu import f2u

QSCALE = 1.4426950408889634 / (128 ** 0.5)
NEG_INF = 0xff800000

def gen_attn(a, name='attn_kernel'):
    kernel_header(a, name)
    a('s_cmp_ge_u32 s2, 256\ns_cbranch_scc1 LAT_done')
    st = Stamps(a); st('start')
    load_ptr(a, 4, 'wq'); load_ptr(a, 8, 'ws')
    sXN, sWQ, sKF, sVF, sO = 12, 16, 20, 24, 28
    sWave, sH, sP, sNS, sNL = 32, 33, 34, 35, 36
    sCnt, sDst, sStage, sSoffA, sSoffW, sM0A, sM0W = 37, 38, 39, 40, 41, 42, 43
    sKd, sVd, sKoff, sVoff, sKmax, sWoff, sM0K, sM0V = 44, 45, 46, 47, 48, 49, 50, 51
    sJt = 52
    sT0, sT1, sT2 = 53, 54, 55
    sMk = [56, 58]
    sFlag = 68
    vLane, vL16, vA, vW0, vW1, vAb, vW0b, vW1b, vDA, vDW, vT, vK, vV, vDKV = 1, 2, 3, 4, 5, 6, 7, 8, 9, 10, 11, 14, 15, 16
    vDelta = [17, 18]; vl = [19, 20]; vDl = 21
    Q = [[R('v', 24 + 32*x + 4*s, 4) for s in range(8)] for x in range(2)]
    S = [[R('v', 88 + 32*x + 16*kb, 16) for kb in range(2)] for x in range(2)]
    P = [[R('v', 152 + 16*x + 4*u, 4) for u in range(4)] for x in range(2)]
    NM = [R('v', 184 + 16*x, 16) for x in range(2)]
    QA = [[R('v', 88 + 64*x + 16*j, 16) for j in range(4)] for x in range(2)]
    XA = [R('a', 128 + 4*i, 4) for i in range(2)]; XW = [R('a', 136 + 4*i, 4) for i in range(4)]
    YA = [R('a', 152 + 4*i, 4) for i in range(2)]; YW = [R('a', 160 + 4*i, 4) for i in range(4)]
    O = [[R('a', 64*x + 16*t, 16) for t in range(4)] for x in range(2)]
    F = [R('a', 128 + 4*i, 4) for i in range(16)]
    TMP = 216
    L_, S_ = 0, 1

    a(f'v_and_b32 v{vLane}, 63, v0\nv_lshrrev_b32 v{vT}, 6, v0\nv_lshlrev_b32 v{vL16}, 4, v{vLane}')
    a('s_and_b32 s60, s2, 7\ns_lshr_b32 s61, s2, 3')
    a(f'v_readfirstlane_b32 s{sWave}, v{vT}')
    a(f's_and_b32 s62, s61, 3\ns_lshl_b32 s60, s60, 2\ns_add_u32 s{sH}, s60, s62\ns_lshr_b32 s{sP}, s61, 2')
    a(f's_lshl_b32 s{sNS}, s{sP}, 1\ns_add_u32 s{sNS}, s{sNS}, 2\ns_lshl_b32 s60, s{sP}, 1\ns_sub_u32 s{sNL}, 32, s60')
    a('s_waitcnt lgkmcnt(0)')
    make_srd(a, sWQ, 4, SZ['wq'])
    make_srd(a, sXN, 8, SZ_XN, WS_XN); make_srd(a, sKF, 8, SZ_KF, WS_KF); make_srd(a, sVF, 8, SZ_VF, WS_VF)
    make_srd(a, sO, 8, SZ_ACT2, WS_ACT2)
    a(f's_lshl_b32 s{sWoff}, s{sWave}, 12')
    a(f's_mov_b32 s{sFlag}, 0')
    a(f'v_add_u32 v{vDKV}, s{sWoff}, v{vL16}')
    a(f's_lshl_b32 s{sKoff}, s{sH}, 19')
    a(f's_sub_u32 s60, s{sNL}, 1\ns_lshl_b32 s60, s60, 14\ns_add_u32 s{sKmax}, s{sKoff}, s60')
    a(f's_mov_b32 s{sVoff}, s{sKoff}')
    def dma_tile(srd_, soff):
        return [f'buffer_load_dwordx4 v{vDKV}, {srd(srd_)}, s{soff} offen offset:{1024*i} lds' for i in range(4)]
    def adv(soff):
        return [f's_add_u32 s{soff}, s{soff}, 16384', f's_min_u32 s{soff}, s{soff}, s{sKmax}']
    QB = 65536; QSS = 24576; QNS = 4; ACTB = 16384
    a(f's_lshl_b32 s60, s{sWave}, 12\ns_add_u32 s60, s60, {QB}')
    a(f'v_add_u32 v{vAb}, s60, v{vL16}')
    lane_w_base(a, vW0b, vW1b, vLane, vT, 2)
    a(f'v_add_u32 v{vW0b}, {QB+ACTB}, v{vW0b}\nv_add_u32 v{vW1b}, {QB+ACTB}, v{vW1b}')
    a(f's_lshl_b32 s60, s{sP}, 2\ns_add_u32 s60, s60, s{sWave}\ns_mul_i32 s60, s60, {36*1024}')
    a(f'v_add_u32 v{vDA}, s60, v{vL16}')
    a(f's_lshl_b32 s60, s{sP}, 3\ns_sub_u32 s60, 60, s60\ns_mul_i32 s60, s60, {36*1024}\ns_sub_u32 s{sSoffA}, s60, 2048')
    a('s_movk_i32 s63, 8192')
    lane_w_dma(a, vDW, vLane, vT, 63)
    a(f's_lshl_b32 s60, s{sH}, 8\ns_lshl_b32 s61, s{sWave}, 16\ns_add_u32 s60, s60, s61')
    a(f'v_add_u32 v{vDW}, s60, v{vDW}')
    a(f's_mov_b32 s{sSoffW}, {4*8192 - 1024}')
    a(f's_add_u32 s{sM0A}, s{sWoff}, {QB}')
    a(f's_lshl_b32 s60, s{sWave}, 11\ns_add_u32 s{sM0W}, s60, {QB+ACTB}')
    def q_dma():
        g = []
        g.append([f's_add_u32 m0, s{sDst}, s{sM0A}', 's_nop 0', f'buffer_load_dwordx4 v{vDA}, {srd(sXN)}, 0 offen lds'])
        g.append([f'buffer_load_dwordx4 v{vDA}, {srd(sXN)}, 0 offen offset:1024 lds'])
        g.append([f'buffer_load_dwordx4 v{vDA}, {srd(sXN)}, s{sSoffA} offen offset:2048 lds'])
        g.append([f'buffer_load_dwordx4 v{vDA}, {srd(sXN)}, s{sSoffA} offen offset:3072 lds',
                  f's_add_u32 m0, s{sDst}, s{sM0W}', f'v_add_u32 v{vDA}, 2048, v{vDA}'])
        g.append([f'buffer_load_dwordx4 v{vDW}, {srd(sWQ)}, 0 offen lds'])
        g.append([f'buffer_load_dwordx4 v{vDW}, {srd(sWQ)}, s{sSoffW} offen offset:1024 lds', f'v_add_u32 v{vDW}, {32*8192}, v{vDW}',
                  f's_add_u32 s{sDst}, s{sDst}, {QSS}', f's_cmp_ge_u32 s{sDst}, {QNS*QSS}', f's_cselect_b32 s{sDst}, 0, s{sDst}'])
        return g
    QND = 6
    def q_reads(ks, FA, FW):
        r = []
        def wrd(j):
            base = vW0 if (j & 1) == 0 else vW1
            for i2 in range(2):
                r.append(f'ds_read_b64_tr_b16 {FW[j][2*i2:2*i2+2]}, v{base} offset:{(4*ks + i2)*1024 + (j >> 1)*512}')
        wrd(0)
        for i in range(2): r.append(f'ds_read_b128 {FA[i]}, v{vA} offset:{i*2048 + ks*1024}')
        for j in range(1, 4): wrd(j)
        return r
    def q_mfmas(FA, FW):
        return [mfma(QA[x][j], FW[j], FA[1 - x]) for j in range(4) for x in range(2)]
    a(f's_mov_b32 s{sDst}, 0')
    st('setup')
    for t in range(QNS):
        for g in q_dma():
            for x in g: a(x)
    st('dma')
    for i in range(128): a(f'v_mov_b32 v{88+i}, 0')
    for i in range(128): a(f'v_accvgpr_write_b32 a{i}, 0')
    a(f's_mov_b32 s{sStage}, 0')
    a(f'v_mov_b32 v{vA}, v{vAb}\nv_mov_b32 v{vW0}, v{vW0b}\nv_mov_b32 v{vW1}, v{vW1b}')
    a(f's_waitcnt vmcnt({3*QND})\ns_barrier')
    st('first')
    for x in q_reads(0, XA, XW): a(x)
    def q_body(dma, vm, extra=None):
        a('s_waitcnt lgkmcnt(0)')
        rd = q_reads(1, YA, YW)
        fills = {k: rd[2*k:2*k+2] for k in range(5)}
        fills[5] = [f's_add_u32 s{sStage}, s{sStage}, {QSS}', f's_cmp_ge_u32 s{sStage}, {QNS*QSS}', f's_cselect_b32 s{sStage}, 0, s{sStage}']
        fills[6] = [f'v_add_u32 v{vA}, s{sStage}, v{vAb}', f'v_add_u32 v{vW0}, s{sStage}, v{vW0b}', f'v_add_u32 v{vW1}, s{sStage}, v{vW1b}']
        interleave(a, q_mfmas(XA, XW), fills)
        if vm is not None:
            a(f's_waitcnt vmcnt({vm}) lgkmcnt(0)\ns_barrier')
        else:
            a('s_waitcnt lgkmcnt(0)')
        fills = {}
        if vm is not None:
            rd = q_reads(0, XA, XW)
            fills = {k: rd[2*k:2*k+2] for k in range(5)}
        groups = q_dma() if dma else (extra or [])
        for k, g in enumerate(groups):
            fills.setdefault(min(2 + k, 7), []).extend(g)
        interleave(a, q_mfmas(YA, YW), fills)
    def tile_groups(srd_, soff, ldsoff):
        d = dma_tile(srd_, soff)
        return [[f's_add_u32 m0, s{sWoff}, {ldsoff}', 's_nop 0', d[0]], [d[1]], [d[2]], [d[3]] + adv(soff)]
    a(f's_mov_b32 s{sCnt}, 14')
    a('.p2align 6')
    a.label('LAT_qloop')
    q_body(True, 2*QND)
    a(f's_sub_u32 s{sCnt}, s{sCnt}, 1\ns_cmp_lg_u32 s{sCnt}, 0\ns_cbranch_scc1 LAT_qloop')
    q_body(False, 12, tile_groups(sKF, sKoff, 0) + tile_groups(sKF, sKoff, 16384))
    q_body(False, 14, tile_groups(sKF, sKoff, 32768) + tile_groups(sKF, sKoff, 49152))
    q_body(False, 16, tile_groups(sVF, sVoff, 65536))
    q_body(False, None)
    st('qloop')
    a('s_waitcnt vmcnt(16)\ns_barrier')
    for g in tile_groups(sVF, sVoff, 65536 + 16384):
        for x in g: a(x)
    for f in range(16):
        a(f'ds_read_b128 {F[f]}, v{vL16} offset:{f*1024}')
    a(f's_mov_b32 s{sT0}, {f2u(QSCALE):#x}')
    for x in range(2):
        for j in range(4):
            q = QA[x][j]
            for r in range(16): a(f'v_mul_f32 {q[r]}, s{sT0}, {q[r]}')
            for half in range(2):
                for r in range(4):
                    a(f'v_cvt_pk_bf16_f32 {Q[x][2*j+half][r]}, {q[8*half+2*r]}, {q[8*half+2*r+1]}')
    a(f'v_and_b32 v{vT}, 31, v{vLane}\nv_lshrrev_b32 v{vT+1}, 5, v{vLane}\nv_lshlrev_b32 v{vT+1}, 2, v{vT+1}\nv_sub_u32 v{vT}, v{vT}, v{vT+1}')
    a(f's_lshl_b32 s{sT0}, s{sWave}, 5')
    a(f's_sub_u32 s{sT1}, 15, s{sP}\ns_lshl_b32 s{sT1}, s{sT1}, 7\ns_add_u32 s{sT1}, s{sT1}, s{sT0}')
    a(f'v_add_u32 v{vDelta[L_]}, s{sT1}, v{vT}')
    a(f's_lshl_b32 s{sT1}, s{sP}, 7\ns_add_u32 s{sT1}, s{sT1}, s{sT0}')
    a(f'v_add_u32 v{vDelta[S_]}, s{sT1}, v{vT}')
    vNI = 22
    a(f'v_mov_b32 v{vNI}, {NEG_INF:#x}')
    MK = [56, 58, 60, 62]
    def mask_burst(x, kb):
        o = [f's_add_u32 s{sT2}, s{sJt}, {32*kb}', f'v_subrev_u32 v{vDl}, s{sT2}, v{vDelta[x]}']
        def cmp(r):
            cr = (r & 3) + 8 * (r >> 2)
            return f'v_cmp_ge_i32 s[{MK[r%4]}:{MK[r%4]+1}], v{vDl}, {cr}'
        o += [cmp(0), cmp(1), cmp(2)]
        for r in range(16):
            o.append(f'v_cndmask_b32 {S[x][kb][r]}, v{vNI}, {S[x][kb][r]}, s[{MK[r%4]}:{MK[r%4]+1}]')
            if r + 3 < 16: o.append(cmp(r + 3))
        return o
    a('s_waitcnt lgkmcnt(0)')
    for x in range(2):
        for kb in range(2):
            for s_ in range(8):
                a(mfma(S[x][kb], F[kb*8+s_], Q[x][s_], '0' if s_ == 0 else None))
    a(f's_mov_b32 s{sJt}, 0')
    a('s_nop 7\ns_nop 7')
    for x in range(2):
        for kb in range(2):
            for i in mask_burst(x, kb): a(i)
        m = TMP
        allr = [S[x][kb][r] for kb in range(2) for r in range(16)]
        a(f'v_max3_f32 v{m}, {allr[0]}, {allr[1]}, {allr[2]}')
        for k in range(3, 31, 2):
            a(f'v_max3_f32 v{m}, v{m}, {allr[k]}, {allr[k+1]}')
        a(f'v_max_f32 v{m}, v{m}, {allr[31]}')
        a(f'v_mov_b32 v{m+1}, v{m}\ns_nop 1\nv_permlane32_swap_b32 v{m}, v{m+1}\ns_nop 1')
        a(f'v_max_f32 v{m}, v{m}, v{m+1}')
        a(f'v_sub_f32 {NM[x][0]}, 0, v{m}')
        for r in range(1, 16): a(f'v_mov_b32 {NM[x][r]}, {NM[x][0]}')
        for rr in allr: a(f'v_add_f32 {rr}, {rr}, {NM[x][0]}')
        for r in range(16): a(f'v_exp_f32 {S[x][0][r]}, {S[x][0][r]}')
        for r in range(6): a(f'v_exp_f32 {S[x][1][r]}, {S[x][1][r]}')
        a(f'v_mov_b32 v{vl[x]}, {S[x][0][0]}')
        for r in range(1, 16): a(f'v_add_f32 v{vl[x]}, v{vl[x]}, {S[x][0][r]}')
        for r in range(5): a(f'v_add_f32 v{vl[x]}, v{vl[x]}, {S[x][1][r]}')
        for q in range(8): a(f'v_cvt_pk_bf16_f32 {P[x][q >> 2][q & 3]}, {S[x][0][2*q]}, {S[x][0][2*q+1]}')
    st('tile0')
    a('s_waitcnt vmcnt(4) lgkmcnt(0)\ns_barrier')
    for g in tile_groups(sKF, sKoff, 0) + tile_groups(sVF, sVoff, 65536 + 32768):
        for x in g: a(x)
    a(f's_mov_b32 s{sKd}, 16384\ns_mov_b32 s{sVd}, 49152\ns_mov_b32 s{sJt}, 64')
    a(f'v_add_u32 v{vK}, 16384, v{vL16}\nv_add_u32 v{vV}, 65536, v{vL16}')
    def frag_read(f):
        ff = f % 32
        if ff < 8: return f'ds_read_b128 {F[ff % 16]}, v{vK} offset:{ff*1024}'
        if ff < 16: return f'ds_read_b128 {F[ff % 16]}, v{vV} offset:{(ff-8)*1024}'
        if ff < 24: return f'ds_read_b128 {F[ff % 16]}, v{vK} offset:{(8 + ff-16)*1024}'
        return f'ds_read_b128 {F[ff % 16]}, v{vV} offset:{(8 + ff-24)*1024}'
    for f in range(8): a(frag_read(f))

    def E(x, g):
        g %= 32
        if 10 <= g <= 25: return S[x][0][g-10]
        if g >= 26: return S[x][1][g-26]
        return S[x][1][g+6]
    def valu(x, g, old, new):
        o = []
        isold = lambda gg: (gg % 32) <= 9
        if (old if isold(g) else new): o.append(f'v_exp_f32 {E(x, g)}, {E(x, g)}')
        gp = (g - 1) % 32
        prev_old = (gp <= 9) or (g == 0)
        if (old if prev_old else new): o.append(f'v_add_f32 v{vl[x]}, v{vl[x]}, {E(x, gp)}')
        if g % 2 == 0:
            if g <= 14 and old:
                q = g // 2
                o.append(f'v_cvt_pk_bf16_f32 {P[x][2 + (q >> 2)][q & 3]}, {S[x][1][2*q]}, {S[x][1][2*q+1]}')
            if g >= 16 and new:
                q = (g - 16) // 2
                o.append(f'v_cvt_pk_bf16_f32 {P[x][q >> 2][q & 3]}, {S[x][0][2*q]}, {S[x][0][2*q+1]}')
        return o
    def book(g):
        o = []
        if g == 17: o += [f's_add_u32 s{sM0K}, s{sKd}, s{sWoff}', f's_add_u32 s{sKd}, s{sKd}, 16384', f's_and_b32 s{sKd}, s{sKd}, 0xffff']
        if g == 19: o += [f's_add_u32 s{sM0V}, s{sVd}, s{sWoff}', f's_add_u32 s{sVd}, s{sVd}, 16384', f's_and_b32 s{sVd}, s{sVd}, 0xffff']
        if g == 21: o += [f's_add_u32 s{sT1}, s{sVd}, 16384', f's_and_b32 s{sT1}, s{sT1}, 0xffff', f's_add_u32 s{sT1}, s{sT1}, 65536', f's_add_u32 s{sM0V}, s{sM0V}, 65536']
        if g == 23: o += [f'v_add_u32 v{vK}, s{sKd}, v{vL16}']
        dk = dma_tile(sKF, sKoff); dv = dma_tile(sVF, sVoff)
        if g == 24: o += [f'v_add_u32 v{vV}, s{sT1}, v{vL16}', f's_mov_b32 m0, s{sM0K}', 's_nop 0', dk[0]]
        if g in (25, 26): o += [dk[g-24]]
        if g == 27: o += [dk[3], f's_mov_b32 m0, s{sM0V}'] + adv(sKoff)
        if g in (28, 29, 30): o += [dv[g-28]]
        if g == 31: o += [dv[3]] + adv(sVoff) + [f's_add_u32 s{sJt}, s{sJt}, 64']
        return o
    def step(qk, pv, masked):
        for f in range(32):
            isK = f < 8 or 16 <= f < 24
            act = qk if isK else pv
            if f == 24:
                a('s_waitcnt vmcnt(8) lgkmcnt(4)\ns_barrier')
            elif f % 4 == 0:
                a('s_waitcnt lgkmcnt(4)')
            todo = {x: valu(x, f, x in pv, x in qk) for x in range(2) if (x in pv or x in qk)}
            pre = []
            if f in (10, 26):
                for x in masked: pre += mask_burst(x, 0 if f == 10 else 1)
            first = True
            for x in act:
                if isK:
                    kb = 0 if f < 8 else 1; s_ = f % 8
                    a(mfma(S[x][kb], F[f % 16], Q[x][s_], NM[x] if s_ == 0 else None))
                else:
                    u = ((f - 8) // 4) if f < 16 else 2 + (f - 24) // 4; t = f % 4
                    a(mfma(O[x][t], F[f % 16], P[x][u]))
                if first:
                    a(frag_read(f + 8))
                    for i in book(f): a(i)
                    for i in pre: a(i)
                    for y in list(todo):
                        if y not in act:
                            for i in todo.pop(y): a(i)
                    first = False
                for i in todo.pop(x): a(i)
    def loop(lab, cnt_sreg, body):
        a(f's_cmp_eq_u32 s{cnt_sreg}, 0\ns_cbranch_scc1 {lab}_end')
        a('.p2align 6')
        a.label(lab)
        body()
        a(f's_sub_u32 s{cnt_sreg}, s{cnt_sreg}, 1\ns_cmp_lg_u32 s{cnt_sreg}, 0\ns_cbranch_scc1 {lab}')
        a.label(lab + '_end')
    a(f's_sub_u32 s{sCnt}, s{sNS}, 3\ns_max_i32 s{sCnt}, s{sCnt}, 0')
    loop('LAT_A', sCnt, lambda: step([L_, S_], [L_, S_], []))
    st('A')
    a(f's_sub_u32 s{sCnt}, s{sNS}, 1\ns_min_u32 s{sCnt}, s{sCnt}, 2')
    loop('LAT_B', sCnt, lambda: step([L_, S_], [L_, S_], [S_]))
    step([L_], [L_, S_], [L_])
    st('BC')
    def epi(x):
        T0 = TMP
        a(f'v_mov_b32 v{T0}, v{vl[x]}\ns_nop 1\nv_permlane32_swap_b32 v{vl[x]}, v{T0}\ns_nop 1')
        a(f'v_add_f32 v{vl[x]}, v{vl[x]}, v{T0}')
        a(f'v_mov_b32 v{T0+1}, 0x5d800000')
        a(f'v_cmp_nlt_f32 vcc, v{vl[x]}, v{T0+1}')
        a(f'v_rcp_f32 v{T0}, v{vl[x]}')
        a('s_nop 1')
        a(f's_or_b32 s{sFlag}, s{sFlag}, vcc_lo\ns_or_b32 s{sFlag}, s{sFlag}, vcc_hi')
        if x == L_: a(f's_sub_u32 s{sT0}, 15, s{sP}\ns_lshl_b32 s{sT0}, s{sT0}, 2')
        else: a(f's_lshl_b32 s{sT0}, s{sP}, 2')
        a(f's_add_u32 s{sT0}, s{sT0}, s{sWave}\ns_mul_i32 s{sT0}, s{sT0}, 544\ns_lshl_b32 s{sT1}, s{sH}, 3\ns_add_u32 s{sT0}, s{sT0}, s{sT1}\ns_lshl_b32 s{sT0}, s{sT0}, 10')
        for t in range(4):
            e = T0 + 4 + 16 * (t % 2)
            for r in range(16): a(f'v_accvgpr_read_b32 v{e+r}, {O[x][t][r]}')
            for r in range(16): a(f'v_mul_f32 v{e+r}, v{e+r}, v{T0}')
            for r in range(8): a(f'v_cvt_pk_bf16_f32 v{e+r}, v{e+2*r}, v{e+2*r+1}')
            a(f's_add_u32 s{sT1}, s{sT0}, {t*2048}')
            a(f'buffer_store_dwordx4 v[{e}:{e+3}], v{vL16}, {srd(sO)}, s{sT1} offen {gen_common.STFLAG}')
            a(f'buffer_store_dwordx4 v[{e+4}:{e+7}], v{vL16}, {srd(sO)}, s{sT1} offen offset:1024 {gen_common.STFLAG}')
    a('s_nop 7\ns_nop 7')
    epi(S_)
    st('epiS')
    a(f's_sub_u32 s{sCnt}, s{sNL}, s{sNS}\ns_sub_u32 s{sCnt}, s{sCnt}, 3\ns_max_i32 s{sCnt}, s{sCnt}, 0')
    loop('LAT_D', sCnt, lambda: step([L_], [L_], []))
    st('D')
    a(f's_cmp_eq_u32 s{sP}, 7\ns_cselect_b32 s{sCnt}, 1, 2')
    loop('LAT_E', sCnt, lambda: step([L_], [L_], [L_]))
    for f in range(8, 16): a(frag_read(f))
    for g in range(0, 16):
        for i in valu(L_, g, True, False): a(i)
    a('s_waitcnt lgkmcnt(0)')
    fills = {k: [frag_read(24 + k)] for k in range(8)}
    interleave(a, [mfma(O[L_][f % 4], F[f % 16], P[L_][(f - 8) // 4]) for f in range(8, 16)], fills)
    a('s_waitcnt lgkmcnt(0)')
    for f in range(24, 32): a(mfma(O[L_][f % 4], F[f % 16], P[L_][2 + (f - 24) // 4]))
    a('s_nop 7\ns_nop 7')
    epi(L_)
    st('end')
    if gen_common.STAMP: a('s_waitcnt vmcnt(0)')
    st.flush(8, 3)
    a.label('LAT_done')
    a('s_endpgm')
    return kernel_desc(name, 512, 96, 256)
```

```python
from asmlib import *

T = 2048
WS_XN   = 0x0000000;  SZ_XN   = 64 * 36 * 1024
WS_CKV  = 0x0400000;  SZ_CKV  = 64 * 32 * 1024
WS_KF   = 0x1000000;  SZ_KF   = 32 * 64 * 8 * 1024
WS_VF   = 0x2000000;  SZ_VF   = 32 * 128 * 4 * 1024
WS_ACT2 = 0x3000000;  SZ_ACT2 = 64 * 544 * 1024
WS_PART = 0x6000000;  SZ_PART = 8 * 2048 * 576 * 4

KA = dict(x=0, ckv=8, wq=16, wuk=24, wuv=32, wo=40, bx=48, wg=56, wu=64, wd=72, out=80, dbg=88, ws=96)
SZ = dict(x=2048*576*2, ckv=2048*512*2, wq=576*4096*2, wuk=512*4096*2, wuv=512*4096*2, wo=4096*576*2,
          wg=576*4608*2, wu=576*4608*2, wd=4608*576*2, out=2048*576*2)

def kernel_header(a, name):
    a(f'.globl {name}')
    a('.p2align 8')
    a(f'.type {name},@function')
    a.label(name)

def kernel_desc(name, nvgpr, nsgpr, accum):
    return f'''.amdhsa_kernel {name}
  .amdhsa_next_free_vgpr {nvgpr}
  .amdhsa_next_free_sgpr {nsgpr}
  .amdhsa_accum_offset {accum}
  .amdhsa_group_segment_fixed_size 0
  .amdhsa_kernarg_size 104
  .amdhsa_user_sgpr_count 2
  .amdhsa_user_sgpr_kernarg_segment_ptr 1
  .amdhsa_system_sgpr_workgroup_id_x 1
  .amdhsa_float_denorm_mode_32 3
  .amdhsa_float_denorm_mode_16_64 3
.end_amdhsa_kernel
'''

def load_ptr(a, sreg, key):
    a(f's_load_dwordx2 s[{sreg}:{sreg+1}], s[0:1], {KA[key]}')

def make_srd(a, srd, ptr, size, off=0):
    if off:
        a(f's_add_u32 s{srd}, s{ptr}, {off:#x}')
        a(f's_addc_u32 s{srd+1}, s{ptr+1}, 0')
    else:
        a(f's_mov_b32 s{srd}, s{ptr}')
        a(f's_mov_b32 s{srd+1}, s{ptr+1}')
    a(f's_mov_b32 s{srd+2}, {size:#x}')
    a(f's_mov_b32 s{srd+3}, 0x20000')

def srd(i):
    return f's[{i}:{i+3}]'

STAMP = False
STFLAG = ''
WS_STAMP = 0xA000000
class Stamps:
    def __init__(self, a, base=70):
        self.a, self.base, self.n = a, base, 0
        self.names = []
    def __call__(self, name):
        if not STAMP: return
        if self.n == 0: self.a('s_memrealtime s[66:67]')
        b = self.base + 2 * self.n
        self.a(f's_memtime s[{b}:{b+1}]')
        self.names.append(name); self.n += 1
    def flush(self, ws_ptr_sreg, kidx, vtmp=200):
        if not STAMP: return
        a = self.a
        b = self.base + 2 * self.n
        a(f's_memrealtime s[{b}:{b+1}]')
        a('s_waitcnt lgkmcnt(0)')
        load_ptr(a, 60, 'ws')
        a('s_waitcnt lgkmcnt(0)')
        a(f's_add_u32 s60, s60, {WS_STAMP + kidx*65536:#x}\ns_addc_u32 s61, s61, 0\ns_mov_b32 s62, 65536\ns_mov_b32 s63, 0x20000')
        a(f'v_lshrrev_b32 v{vtmp}, 6, v0\nv_lshlrev_b32 v{vtmp}, 6, v{vtmp}\ns_lshl_b32 s64, s2, 8\nv_add_u32 v{vtmp}, s64, v{vtmp}')
        for i in range(self.n + 1):
            a(f'v_mov_b32 v{vtmp+1}, s{self.base + 2*i}')
            a(f'buffer_store_dword v{vtmp+1}, v{vtmp}, s[60:63], 0 offen offset:{4*i}')
        a(f'v_mov_b32 v{vtmp+1}, s66')
        a(f'buffer_store_dword v{vtmp+1}, v{vtmp}, s[60:63], 0 offen offset:60')
```

```python
from gen_common import *
import gen_common
from gen_gemm import mfma, interleave

HS = [15, 14, 14, 14, 15]
CS = [12, 13, 13, 13, 13]
assert sum(HS) == 72 and sum(CS) == 64

def lane_w_base512(a, dst0, dst1, lane, tmp, HQ):
    t0, t1 = tmp, tmp + 1
    a(f'v_lshrrev_b32 v{t0}, 5, v{lane}')
    a(f'v_mul_u32_u24 v{dst0}, {HQ*512}, v{t0}')
    a(f'v_bfe_u32 v{t0}, v{lane}, 2, 2')
    a(f'v_lshl_add_u32 v{dst0}, v{t0}, 7, v{dst0}')
    a(f'v_bfe_u32 v{t1}, v{lane}, 4, 1')
    a(f'v_lshl_add_u32 v{dst0}, v{t1}, 5, v{dst0}')
    a(f'v_and_b32 v{t1}, 3, v{lane}')
    a(f'v_lshl_add_u32 v{dst0}, v{t1}, 3, v{dst0}')
    a(f'v_lshrrev_b32 v{t0}, 1, v{t0}')
    a(f'v_lshlrev_b32 v{t0}, 6, v{t0}')
    a(f'v_xor_b32 v{t1}, 64, v{t0}')
    a(f'v_add_u32 v{dst1}, v{dst0}, v{t1}')
    a(f'v_add_u32 v{dst0}, v{dst0}, v{t0}')

def gen_fin(a, name='fin_kernel'):
    NS = 4; SS = 40960; ACTB = 16384; PITCH = 1152
    kernel_header(a, name)
    a('s_cmp_ge_u32 s2, 240\ns_cbranch_scc1 LF_done')
    st = Stamps(a); st('start')
    load_ptr(a, 4, 'wo'); load_ptr(a, 6, 'wd'); load_ptr(a, 8, 'ws')
    sW, sA, sO = 12, 16, 20
    sWave, sTt, sNt, sSp, sCnt, sDst, sStage, sRem = 24, 25, 26, 27, 28, 29, 30, 31
    sSo = 32
    sM0A, sM0W = 38, 39
    sDeltaA, sDeltaW, sT0, sT1, sT2 = 40, 41, 42, 43, 44
    sWoLo, sWoHi = 46, 47
    sNst = 45
    vLane, vA, vW0, vW1, vAb, vW0b, vW1b, vDA, vDW, vT = 1, 2, 3, 4, 5, 6, 7, 8, 9, 10
    XA = [R('v', 16 + 4*i, 4) for i in range(2)]; XW = [R('v', 24 + 4*i, 4) for i in range(3)]
    YA = [R('v', 36 + 4*i, 4) for i in range(2)]; YW = [R('v', 44 + 4*i, 4) for i in range(3)]
    acc = {(j, i): R('v', 64 + 16 * (2*j + i), 16) for j in range(3) for i in range(2)}
    a(f'v_and_b32 v{vLane}, 63, v0\nv_lshrrev_b32 v{vT}, 6, v0')
    a('s_and_b32 s50, s2, 7\ns_lshr_b32 s51, s2, 3')
    a(f'v_readfirstlane_b32 s{sWave}, v{vT}')
    a(f's_cmp_ge_u32 s51, 15\ns_cselect_b32 s52, 1, 0\ns_mul_i32 s53, s52, 15\ns_sub_u32 s51, s51, s53')
    a(f's_lshl_b32 s50, s50, 1\ns_add_u32 s{sTt}, s50, s52')
    a(f's_mul_i32 s52, s51, 86\ns_lshr_b32 s{sSp}, s52, 8\ns_mul_i32 s53, s{sSp}, 3\ns_sub_u32 s{sNt}, s51, s53')
    a('s_waitcnt lgkmcnt(0)')
    hst = [sum(HS[:i]) for i in range(5)]; cst = [sum(CS[:i]) for i in range(5)]
    sHst, sHn, sCst, sCn = 54, 55, 56, 57
    a(f's_mov_b32 s{sHst}, {hst[0]}\ns_mov_b32 s{sHn}, {HS[0]}\ns_mov_b32 s{sCst}, {cst[0]}\ns_mov_b32 s{sCn}, {CS[0]}')
    for i in range(1, 5):
        a(f's_cmp_eq_u32 s{sSp}, {i}\ns_cselect_b32 s{sHst}, {hst[i]}, s{sHst}\ns_cselect_b32 s{sHn}, {HS[i]}, s{sHn}\ns_cselect_b32 s{sCst}, {cst[i]}, s{sCst}\ns_cselect_b32 s{sCn}, {CS[i]}, s{sCn}')
    a(f's_add_u32 s{sNst}, s{sHn}, s{sCn}')
    make_srd(a, sW, 6, SZ['wd'])
    a(f's_mov_b32 s{sWoLo}, s4\ns_mov_b32 s{sWoHi}, s5')
    make_srd(a, sA, 8, SZ_ACT2, WS_ACT2)
    make_srd(a, sO, 8, SZ_PART, WS_PART)
    a(f'v_lshlrev_b32 v{vT+2}, 4, v{vLane}')
    a(f's_and_b32 s50, s{sWave}, 1\ns_lshl_b32 s50, s50, 13\nv_add_u32 v{vAb}, s50, v{vT+2}')
    lane_w_base512(a, vW0b, vW1b, vLane, vT, 1)
    a(f'v_add_u32 v{vW0b}, {ACTB}, v{vW0b}\nv_add_u32 v{vW1b}, {ACTB}, v{vW1b}')
    vB = [11, 12, 13]; vBb = [14, 15, 60]
    a(f's_lshr_b32 s50, s{sWave}, 1\ns_cmp_eq_u32 s50, 0\ns_cbranch_scc0 LF_wn1')
    a(f'v_mov_b32 v{vBb[0]}, v{vW0b}\nv_mov_b32 v{vBb[1]}, v{vW1b}\nv_add_u32 v{vBb[2]}, 8192, v{vW0b}\ns_branch LF_wn2')
    a.label('LF_wn1')
    a(f'v_add_u32 v{vBb[0]}, 8192, v{vW1b}\nv_add_u32 v{vBb[1]}, 16384, v{vW0b}\nv_add_u32 v{vBb[2]}, 16384, v{vW1b}')
    a.label('LF_wn2')
    a(f's_lshl_b32 s50, s{sTt}, 2\ns_add_u32 s50, s50, s{sWave}\ns_mul_i32 s50, s50, 544\ns_lshl_b32 s51, s{sHst}, 2\ns_add_u32 s50, s50, s51\ns_add_u32 s50, s50, 256\ns_lshl_b32 s50, s50, 10')
    a(f'v_add_u32 v{vDA}, s50, v{vT+2}')
    a(f's_add_u32 s50, s{sHst}, s{sHn}\ns_lshl_b32 s50, s50, 2\ns_add_u32 s50, s50, 256\ns_lshl_b32 s51, s{sCst}, 2\ns_sub_u32 s50, s51, s50\ns_lshl_b32 s50, s50, 10\ns_add_u32 s{sDeltaA}, s50, 4096')
    a(f'v_lshrrev_b32 v{vT}, 3, v{vLane}\nv_mul_u32_u24 v{vDW}, {PITCH}, v{vT}')
    a(f'v_bfe_u32 v{vT}, v{vLane}, 4, 1\nv_bfe_u32 v{vT+1}, v{vLane}, 2, 1\nv_xor_b32 v{vT}, v{vT}, v{vT+1}')
    a(f'v_lshl_add_u32 v{vDW}, v{vT}, 6, v{vDW}\nv_and_b32 v{vT}, 3, v{vLane}\nv_lshl_add_u32 v{vDW}, v{vT}, 4, v{vDW}')
    a(f's_mul_i32 s50, s{sNt}, 384\ns_lshl_b32 s51, s{sHst}, 6\ns_lshl_b32 s52, s{sWave}, 4\ns_add_u32 s51, s51, s52\ns_mul_i32 s51, s51, {PITCH}\ns_add_u32 s50, s50, s51')
    a(f'v_add_u32 v{vDW}, s50, v{vDW}')
    a(f's_add_u32 s50, s{sHst}, s{sHn}\ns_sub_u32 s50, s{sCst}, s50\ns_add_u32 s50, s50, 1\ns_mul_i32 s{sDeltaW}, s50, {64*PITCH}')
    so = {}
    k = 1
    for nb2 in range(3):
        for j in range(2):
            val = nb2 * 128 + j * (8 * PITCH - 1024)
            if val == 0: so[nb2, j] = '0'
            else:
                so[nb2, j] = f's{sSo+k}'; a(f's_mov_b32 s{sSo+k}, {val}'); k += 1
    a(f's_lshl_b32 s{sM0A}, s{sWave}, 12')
    a(f's_lshl_b32 s50, s{sWave}, 11\ns_add_u32 s{sM0W}, s50, {ACTB}')
    a(f's_mov_b32 s{sRem}, s{sHn}')
    def dma_ops():
        g = []
        g.append([f's_add_u32 m0, s{sDst}, s{sM0A}', f's_add_u32 s{sT0}, s{sDst}, s{sM0W}', f'buffer_load_dwordx4 v{vDA}, {srd(sA)}, 0 offen lds'])
        for i in range(1, 4):
            g.append([f'buffer_load_dwordx4 v{vDA}, {srd(sA)}, 0 offen offset:{1024*i} lds'])
        for nb2 in range(3):
            g[-1].append(f's_add_u32 m0, s{sT0}, {nb2*8192}' if nb2 else f's_mov_b32 m0, s{sT0}')
            if nb2 == 0: g[-1].append(f's_sub_u32 s{sRem}, s{sRem}, 1')
            else: g[-1].append('s_nop 0')
            g.append([f'buffer_load_dwordx4 v{vDW}, {srd(sW)}, {so[nb2,0]} offen lds'])
            g.append([f'buffer_load_dwordx4 v{vDW}, {srd(sW)}, {so[nb2,1]} offen offset:1024 lds'])
        g[-1] += [f's_cmp_eq_u32 s{sRem}, 0',
                  f's_cselect_b32 s{sT1}, s{sDeltaA}, 4096', f's_cselect_b32 s{sT2}, s{sDeltaW}, {64*PITCH}',
                  f's_cselect_b32 s{sW}, s{sWoLo}, s{sW}', f's_cselect_b32 s{sW+1}, s{sWoHi}, s{sW+1}',
                  f's_cselect_b32 s{sW+2}, {SZ["wo"]:#x}, s{sW+2}',
                  f'v_add_u32 v{vDA}, s{sT1}, v{vDA}', f'v_add_u32 v{vDW}, s{sT2}, v{vDW}',
                  f's_add_u32 s{sDst}, s{sDst}, {SS}', f's_cmp_ge_u32 s{sDst}, {NS*SS}', f's_cselect_b32 s{sDst}, 0, s{sDst}']
        return g
    ND = 10
    def reads(ks, FA, FW):
        r = []
        def wrd(j):
            for i2 in range(2):
                r.append(f'ds_read_b64_tr_b16 {FW[j][2*i2:2*i2+2]}, v{vB[j]} offset:{(4*ks + 2*i2)*512}')
        wrd(0)
        for i in range(2): r.append(f'ds_read_b128 {FA[i]}, v{vA} offset:{i*4096 + ks*1024}')
        wrd(1); wrd(2)
        return r
    def mfmas(FA, FW):
        return [mfma(acc[j, i], FW[j], FA[i]) for j in range(3) for i in range(2)]
    a(f's_mov_b32 s{sDst}, 0')
    st('setup')
    for t in range(NS):
        for g in dma_ops():
            for x in g: a(x)
    for i in range(96): a(f'v_mov_b32 v{64+i}, 0')
    a(f's_mov_b32 s{sStage}, 0')
    a(f'v_mov_b32 v{vA}, v{vAb}')
    for j in range(3): a(f'v_mov_b32 v{vB[j]}, v{vBb[j]}')
    a(f's_waitcnt vmcnt({3*ND})\ns_barrier')
    st('first')
    for x in reads(0, XA, XW): a(x)
    def body2(dma, vm):
        dg = dma_ops() if dma else []
        for ks in range(4):
            cur = (XA, XW) if ks % 2 == 0 else (YA, YW)
            nxt = (YA, YW) if ks % 2 == 0 else (XA, XW)
            fills = {}
            if ks == 3:
                if vm is not None:
                    a(f's_waitcnt vmcnt({vm}) lgkmcnt(0)\ns_barrier')
                    rd = reads(0, *nxt)
                else:
                    a('s_waitcnt lgkmcnt(0)'); rd = []
            else:
                a('s_waitcnt lgkmcnt(0)')
                rd = reads(ks + 1, *nxt)
            for k_, x in enumerate(rd): fills.setdefault(k_ // 2, []).append(x)
            if ks == 2:
                fills.setdefault(4, []).extend([f's_add_u32 s{sStage}, s{sStage}, {SS}', f's_cmp_ge_u32 s{sStage}, {NS*SS}', f's_cselect_b32 s{sStage}, 0, s{sStage}'])
                fills.setdefault(5, []).extend([f'v_add_u32 v{vA}, s{sStage}, v{vAb}'] + [f'v_add_u32 v{vB[j]}, s{sStage}, v{vBb[j]}' for j in range(3)])
            if ks == 3:
                for k_, g in enumerate(dg): fills.setdefault(min(k_ // 2 + 1, 5), []).extend(g)
            interleave(a, mfmas(*cur), fills)
    a(f's_sub_u32 s{sCnt}, s{sNst}, {NS}')
    a('.p2align 6')
    a.label('LF_loop')
    body2(True, 2*ND)
    a(f's_sub_u32 s{sCnt}, s{sCnt}, 1\ns_cmp_lg_u32 s{sCnt}, 0\ns_cbranch_scc1 LF_loop')
    body2(False, 2*ND); body2(False, ND); body2(False, 0); body2(False, None)
    st('loop')
    a('s_nop 7\ns_nop 7')
    a(f's_lshl_b32 s50, s{sSp}, 4\ns_add_u32 s50, s50, s{sTt}\ns_mul_i32 s50, s50, 3\ns_add_u32 s50, s50, s{sNt}\ns_lshl_b32 s50, s50, 2\ns_add_u32 s50, s50, s{sWave}\ns_mul_i32 s50, s50, {6*4096}')
    a(f'v_lshlrev_b32 v{vT}, 4, v{vLane}\nv_add_u32 v{vT}, s50, v{vT}')
    n = 0
    for j in range(3):
        for i in range(2):
            a(f's_mov_b32 s51, {n*4096}')
            for q in range(4):
                a(f'buffer_store_dwordx4 {acc[j,i][4*q:4*q+4]}, v{vT}, {srd(sO)}, s51 offen offset:{q*1024} {gen_common.STFLAG}')
            n += 1
    st('epi')
    if gen_common.STAMP: a('s_waitcnt vmcnt(0)')
    st('drain')
    st.flush(8, 4, vtmp=16)
    a.label('LF_done')
    a('s_endpgm')
    return kernel_desc(name, 160, 96, 160)

def gen_red(a, name='red_kernel'):
    kernel_header(a, name)
    a('s_cmp_ge_u32 s2, 288\ns_cbranch_scc1 LR_done')
    load_ptr(a, 4, 'x'); load_ptr(a, 6, 'out'); load_ptr(a, 8, 'ws')
    a('v_and_b32 v1, 63, v0\nv_lshrrev_b32 v2, 6, v0\ns_nop 0')
    a('v_readfirstlane_b32 s3, v2')
    a('s_lshl_b32 s10, s2, 2\ns_add_u32 s10, s10, s3')
    a('s_waitcnt lgkmcnt(0)')
    make_srd(a, 12, 4, SZ['x']); make_srd(a, 16, 6, SZ['out']); make_srd(a, 20, 8, SZ_PART, WS_PART)
    a('s_mul_i32 s24, s10, 10923\ns_lshr_b32 s24, s24, 16\ns_mul_i32 s25, s24, 6\ns_sub_u32 s25, s10, s25')
    a('s_and_b32 s26, s24, 3\ns_lshr_b32 s27, s24, 2\ns_mul_i32 s28, s27, 21846\ns_lshr_b32 s28, s28, 16\ns_mul_i32 s29, s28, 3\ns_sub_u32 s29, s27, s29')
    a('s_lshl_b32 s30, s28, 7\ns_and_b32 s31, s26, 1\ns_lshl_b32 s31, s31, 6\ns_add_u32 s30, s30, s31\ns_and_b32 s31, s25, 1\ns_lshl_b32 s31, s31, 5\ns_add_u32 s30, s30, s31')
    a('s_mul_i32 s31, s29, 192\ns_lshr_b32 s32, s26, 1\ns_mul_i32 s32, s32, 96\ns_add_u32 s31, s31, s32\ns_lshr_b32 s32, s25, 1\ns_lshl_b32 s32, s32, 5\ns_add_u32 s31, s31, s32')
    a('v_and_b32 v3, 31, v1\nv_add_u32 v3, s30, v3\ns_movk_i32 s33, 1152\nv_mul_lo_u32 v3, v3, s33')
    a('v_lshrrev_b32 v4, 5, v1\nv_lshlrev_b32 v4, 3, v4\nv_add_u32 v3, v3, v4\ns_lshl_b32 s31, s31, 1\nv_add_u32 v3, s31, v3')
    a('s_lshl_b32 s34, s10, 12\nv_lshlrev_b32 v5, 4, v1\nv_add_u32 v5, s34, v5')
    stride = 16*3*4*6*4096
    for sp in range(5):
        a(f's_mov_b32 s35, {sp*stride:#x}')
        for q in range(4):
            a(f'buffer_load_dwordx4 v[{16+16*sp+4*q}:{19+16*sp+4*q}], v5, {srd(20)}, s35 offen offset:{q*1024}')
    for q in range(4):
        a(f'buffer_load_dwordx2 v[{96+2*q}:{97+2*q}], v3, {srd(12)}, 0 offen offset:{16*q}')
    a('s_waitcnt vmcnt(0)')
    a('s_mov_b32 s36, 0xffff0000')
    for q in range(4):
        for r in range(4):
            d = 16 + 4*q + r
            for sp in range(1, 5): a(f'v_add_f32 v{d}, v{d}, v{d + 16*sp}')
        x0, x1 = 96 + 2*q, 97 + 2*q
        for r, (src, hi) in enumerate(((x0, 0), (x0, 1), (x1, 0), (x1, 1))):
            a(f'v_and_b32 v8, s36, v{src}' if hi else f'v_lshlrev_b32 v8, 16, v{src}')
            a(f'v_add_f32 v{16+4*q+r}, v{16+4*q+r}, v8')
        a(f'v_cvt_pk_bf16_f32 v10, v{16+4*q}, v{17+4*q}\nv_cvt_pk_bf16_f32 v11, v{18+4*q}, v{19+4*q}')
        a(f'buffer_store_dwordx2 v[10:11], v3, {srd(16)}, 0 offen offset:{16*q}')
        a('s_nop 0')
    a.label('LR_done')
    a('s_endpgm')
    return kernel_desc(name, 112, 48, 112)
```

```python
from gen_common import *
import gen_common

def mfma(D, A, B, C=None):
    return f'v_mfma_f32_32x32x16_bf16 {D}, {A}, {B}, {C if C is not None else D}'

def interleave(a, mf, fills):
    for k, m in enumerate(mf):
        a(m)
        for f in fills.get(k, []):
            a(f)

class GemmCfg:
    pass

def lane_w_base(a, dst0, dst1, lane, tmp, HQ):
    t0, t1 = tmp, tmp + 1
    a(f'v_lshrrev_b32 v{t0}, 5, v{lane}')
    a(f'v_mul_u32_u24 v{dst0}, {HQ*1024}, v{t0}')
    a(f'v_bfe_u32 v{t0}, v{lane}, 2, 2')
    a(f'v_lshl_add_u32 v{dst0}, v{t0}, 7, v{dst0}')
    a(f'v_bfe_u32 v{t1}, v{lane}, 4, 1')
    a(f'v_lshl_add_u32 v{dst0}, v{t1}, 5, v{dst0}')
    a(f'v_and_b32 v{t1}, 3, v{lane}')
    a(f'v_lshl_add_u32 v{dst0}, v{t1}, 3, v{dst0}')
    a(f'v_lshrrev_b32 v{t0}, 1, v{t0}')
    a(f'v_lshlrev_b32 v{t0}, 6, v{t0}')
    a(f'v_xor_b32 v{t1}, 64, v{t0}')
    a(f'v_add_u32 v{dst1}, v{dst0}, v{t1}')
    a(f'v_add_u32 v{dst0}, v{dst0}, v{t0}')

def lane_w_dma(a, dst, lane, tmp, pitch_sreg):
    t0, t1 = tmp, tmp + 1
    a(f'v_bfe_u32 v{t0}, v{lane}, 3, 2')
    a(f'v_mul_lo_u32 v{dst}, v{t0}, s{pitch_sreg}')
    a(f'v_lshrrev_b32 v{t0}, 1, v{t0}')
    a(f'v_bfe_u32 v{t1}, v{lane}, 2, 1')
    a(f'v_xor_b32 v{t0}, v{t0}, v{t1}')
    a(f'v_lshl_add_u32 v{dst}, v{t0}, 6, v{dst}')
    a(f'v_lshrrev_b32 v{t0}, 5, v{lane}')
    a(f'v_lshl_add_u32 v{dst}, v{t0}, 7, v{dst}')
    a(f'v_and_b32 v{t0}, 3, v{lane}')
    a(f'v_lshl_add_u32 v{dst}, v{t0}, 4, v{dst}')

def gen_kv(a, name='kv_kernel'):
    NSTG = 16; NS = 4; SS = 32768; ACTB = 16384
    kernel_header(a, name)
    a('s_cmp_ge_u32 s2, 256\ns_cbranch_scc1 LKV_done')
    st = Stamps(a)
    st('start')
    load_ptr(a, 4, 'wuk'); load_ptr(a, 6, 'wuv'); load_ptr(a, 8, 'ws')
    sW = 12; sA = 16; sO = 20
    sWave, sCt, sTt, sStage, sCnt = 24, 25, 26, 27, 28
    sSoffW = 32
    sSoffA = 36
    sM0A, sM0W = 37, 38
    sTmp = 40
    vLane, vA, vW0, vW1, vAb, vW0b, vW1b, vDA, vDW, vT = 1, 2, 3, 4, 5, 6, 7, 8, 9, 10
    XA = [R('v', 16 + 4*i, 4) for i in range(4)]; XW = [R('v', 32 + 4*i, 4) for i in range(4)]
    YA = [R('v', 48 + 4*i, 4) for i in range(4)]; YW = [R('v', 64 + 4*i, 4) for i in range(4)]
    acc = [[R('a', 16 * (4*j + i), 16) for j in range(4)] for i in range(4)]
    a(f'v_and_b32 v{vLane}, 63, v0\nv_lshrrev_b32 v{vT}, 6, v0')
    a('s_and_b32 s40, s2, 7\ns_lshr_b32 s41, s2, 3')
    a(f'v_readfirstlane_b32 s{sWave}, v{vT}')
    a(f's_and_b32 s42, s41, 3\ns_lshl_b32 s40, s40, 2\ns_add_u32 s{sCt}, s40, s42\ns_lshr_b32 s{sTt}, s41, 2')
    a('s_waitcnt lgkmcnt(0)')
    st('karg')
    a(f's_cmp_lt_u32 s{sCt}, 16\ns_cselect_b32 s4, s4, s6\ns_cselect_b32 s5, s5, s7')
    make_srd(a, sW, 4, SZ['wuk'])
    make_srd(a, sA, 8, SZ_CKV, WS_CKV)
    a(f's_mov_b32 s41, {WS_VF:#x}\ns_cmp_lt_u32 s{sCt}, 16\ns_cselect_b32 s40, {WS_KF:#x}, s41')
    a(f's_add_u32 s{sO}, s8, s40\ns_addc_u32 s{sO+1}, s9, 0\ns_mov_b32 s{sO+2}, {SZ_KF:#x}\ns_mov_b32 s{sO+3}, 0x20000')
    a(f's_and_b32 s40, s{sWave}, 1\ns_lshl_b32 s40, s40, 13')
    a(f'v_lshlrev_b32 v{vAb}, 4, v{vLane}\nv_add_u32 v{vAb}, s40, v{vAb}')
    lane_w_base(a, vW0b, vW1b, vLane, vT, 2)
    a(f's_lshr_b32 s40, s{sWave}, 1\ns_lshl_b32 s40, s40, 13\ns_add_u32 s40, s40, {ACTB}')
    a(f'v_add_u32 v{vW0b}, s40, v{vW0b}\nv_add_u32 v{vW1b}, s40, v{vW1b}')
    a(f's_lshl_b32 s40, s{sTt}, 3\ns_lshl_b32 s41, s{sWave}, 1\ns_add_u32 s40, s40, s41\ns_lshl_b32 s40, s40, 15')
    a(f'v_lshlrev_b32 v{vDA}, 4, v{vLane}\nv_add_u32 v{vDA}, s40, v{vDA}')
    a(f's_mov_b32 s{sSoffA}, {32*1024 - 2048}')
    a(f's_movk_i32 s43, 8192')
    lane_w_dma(a, vDW, vLane, vT, 43)
    a(f's_and_b32 s40, s{sCt}, 15\ns_lshl_b32 s40, s40, 9\ns_and_b32 s41, s{sWave}, 1\ns_lshl_b32 s41, s41, 8\ns_add_u32 s40, s40, s41')
    a(f's_lshr_b32 s41, s{sWave}, 1\ns_lshl_b32 s41, s41, 17\ns_add_u32 s40, s40, s41')
    a(f'v_add_u32 v{vDW}, s40, v{vDW}')
    for j in range(1, 4): a(f's_mov_b32 s{sSoffW+j}, {j*(4*8192-1024)}')
    a(f's_lshl_b32 s{sM0A}, s{sWave}, 12')
    a(f's_and_b32 s40, s{sWave}, 1\ns_lshl_b32 s40, s40, 13\ns_lshr_b32 s41, s{sWave}, 1\ns_lshl_b32 s41, s41, 12')
    a(f's_add_u32 s{sM0W}, s40, s41\ns_add_u32 s{sM0W}, s{sM0W}, {ACTB}')
    sDst = 29
    def dma_ops():
        g = []
        g.append([f's_add_u32 m0, s{sDst}, s{sM0A}', 's_nop 0',
                  f'buffer_load_dwordx4 v{vDA}, {srd(sA)}, 0 offen lds'])
        g.append([f'buffer_load_dwordx4 v{vDA}, {srd(sA)}, 0 offen offset:1024 lds'])
        g.append([f'buffer_load_dwordx4 v{vDA}, {srd(sA)}, s{sSoffA} offen offset:2048 lds'])
        g.append([f'buffer_load_dwordx4 v{vDA}, {srd(sA)}, s{sSoffA} offen offset:3072 lds',
                  f's_add_u32 m0, s{sDst}, s{sM0W}', f'v_add_u32 v{vDA}, 2048, v{vDA}'])
        g.append([f'buffer_load_dwordx4 v{vDW}, {srd(sW)}, 0 offen lds'])
        for j in range(1, 4):
            g.append([f'buffer_load_dwordx4 v{vDW}, {srd(sW)}, s{sSoffW+j} offen offset:{1024*j} lds'])
        g[-1] += [f'v_add_u32 v{vDW}, {32*8192}, v{vDW}', f's_add_u32 s{sDst}, s{sDst}, {SS}', f's_and_b32 s{sDst}, s{sDst}, {NS*SS-1}']
        return g
    def reads(ks, FA, FW):
        r = []
        def wrd(j):
            base = vW0 if (j & 1) == 0 else vW1
            for i2 in range(2):
                r.append(f'ds_read_b64_tr_b16 {FW[j][2*i2:2*i2+2]}, v{base} offset:{(4*ks + i2)*1024 + (j >> 1)*512}')
        def ard(i):
            r.append(f'ds_read_b128 {FA[i]}, v{vA} offset:{i*2048 + ks*1024}')
        wrd(0); ard(0); ard(1); ard(2); ard(3); wrd(1); wrd(2); wrd(3)
        return r
    def mfmas(FA, FW, isK):
        m = []
        for j in range(4):
            for i in range(4):
                m.append(mfma(acc[i][j], FW[j], FA[i]) if isK else mfma(acc[i][j], FA[i], FW[j]))
        return m
    a(f's_mov_b32 s{sDst}, 0')
    st('setup')
    for t in range(NS):
        for g in dma_ops():
            for x in g: a(x)
    st('dma')
    for i in range(256): a(f'v_accvgpr_write_b32 a{i}, 0')
    a(f's_mov_b32 s{sStage}, 0')
    a(f'v_mov_b32 v{vA}, v{vAb}\nv_mov_b32 v{vW0}, v{vW0b}\nv_mov_b32 v{vW1}, v{vW1b}')
    st('issued')
    a('s_waitcnt vmcnt(24)\ns_barrier')
    st('first')
    for x in reads(0, XA, XW): a(x)

    def body(isK, dma, vm):
        a('s_waitcnt lgkmcnt(0)')
        rd = reads(1, YA, YW)
        fills = {k: rd[2*k:2*k+2] for k in range(6)}
        fills[6] = [f's_add_u32 s{sStage}, s{sStage}, {SS}', f's_and_b32 s{sStage}, s{sStage}, {NS*SS-1}']
        fills[7] = [f'v_add_u32 v{vA}, s{sStage}, v{vAb}', f'v_add_u32 v{vW0}, s{sStage}, v{vW0b}', f'v_add_u32 v{vW1}, s{sStage}, v{vW1b}']
        interleave(a, mfmas(XA, XW, isK), fills)
        if vm is not None:
            a(f's_waitcnt vmcnt({vm}) lgkmcnt(0)')
            a('s_barrier')
        else:
            a('s_waitcnt lgkmcnt(0)')
        fills = {}
        if vm is not None:
            rd = reads(0, XA, XW)
            fills = {k: rd[2*k:2*k+2] for k in range(6)}
        if dma:
            for k, g in enumerate(dma_ops()):
                fills.setdefault(6 + k, []).extend(g)
        interleave(a, mfmas(YA, YW, isK), fills)

    def mainloop(isK, lab):
        a(f's_mov_b32 s{sCnt}, {NSTG - NS}')
        a('.p2align 6')
        a.label(lab)
        body(isK, True, 16)
        a(f's_sub_u32 s{sCnt}, s{sCnt}, 1\ns_cmp_lg_u32 s{sCnt}, 0\ns_cbranch_scc1 {lab}')
        body(isK, False, 16); body(isK, False, 8); body(isK, False, 0); body(isK, False, None)

    def epilogue(isK):
        a('s_nop 7\ns_nop 7')
        a(f's_and_b32 s40, s{sCt}, 15\ns_lshl_b32 s40, s40, 1\ns_lshr_b32 s41, s{sWave}, 1\ns_add_u32 s40, s40, s41')
        a(f's_lshl_b32 s41, s{sTt}, 3\ns_and_b32 s42, s{sWave}, 1\ns_lshl_b32 s42, s42, 2\ns_add_u32 s41, s41, s42')
        a('s_lshl_b32 s40, s40, 6\ns_add_u32 s40, s40, s41\ns_lshl_b32 s40, s40, 13')
        a(f'v_lshlrev_b32 v{vT}, 4, v{vLane}\nv_add_u32 v{vT}, s40, v{vT}')
        E = 80
        n = 0
        for i in range(4):
            for j in range(4):
                e = E + 16 * (n % 4); p = 144 + 8 * (n % 4); n += 1
                for r in range(16): a(f'v_accvgpr_read_b32 v{e+r}, {acc[i][j][r]}')
                for r in range(8): a(f'v_cvt_pk_bf16_f32 v{p+r}, v{e+2*r}, v{e+2*r+1}')
                for half in range(2):
                    off = i * 8192 + ((2*j + half) * 1024 if isK else half * 4096 + j * 1024)
                    so = off // 4096 * 4096; io = off % 4096
                    a(f's_mov_b32 s41, {so}')
                    a(f'buffer_store_dwordx4 v[{p+4*half}:{p+4*half+3}], v{vT}, {srd(sO)}, s41 offen offset:{io} {gen_common.STFLAG}')
    a(f's_cmp_lt_u32 s{sCt}, 16\ns_cbranch_scc0 LKV_V')
    n0 = st.n
    mainloop(True, 'LKV_loopK')
    st('loop')
    epilogue(True)
    st('epi')
    a('s_waitcnt vmcnt(0)')
    st('drain')
    st.flush(8, 1)
    a('s_endpgm')
    a.label('LKV_V')
    st.n = n0
    mainloop(False, 'LKV_loopV')
    st('loop')
    epilogue(False)
    st('epi')
    a('s_waitcnt vmcnt(0)')
    st('drain')
    st.flush(8, 1)
    a.label('LKV_done')
    a('s_endpgm')
    return kernel_desc(name, 512, 96, 256)
```

```python
from gen_common import *
import gen_common
from gen_gemm import mfma, interleave, lane_w_base, lane_w_dma

GK1 = -2.302208198
GK2 = GK1 * 0.044715
import struct
def f2u(x): return struct.unpack('<I', struct.pack('<f', x))[0]

def gen_gu(a, name='gu_kernel'):
    NSTG = 18; NS = 4; ACTB = 16384; GOFF = 16384; UOFF = 24576; MOFF = 32768; MUO = 1152; SS = 35072
    PITCH = 9216
    kernel_header(a, name)
    a('s_cmp_ge_u32 s2, 256\ns_cbranch_scc1 LGU_done')
    st = Stamps(a); st('start')
    load_ptr(a, 4, 'wg'); load_ptr(a, 6, 'wu'); load_ptr(a, 8, 'ws')
    sG = 12; sU = 16; sA = 20; sO = 44; sM = 48
    sWave, sCj, sTt, sStage, sCnt, sDst = 24, 25, 26, 27, 28, 29
    sSoffW = 30; sSoffA = 31; sM0A, sM0G, sM0U, sM0M = 32, 33, 34, 35
    sFb, sMb = 36, 37
    sK1, sK2 = 38, 39
    vLane, vA, vW0, vW1, vM, vAb, vW0b, vW1b, vMb, vDA, vDW, vDM, vT = 1, 2, 3, 4, 5, 6, 7, 8, 9, 10, 11, 12, 13
    XA = [R('v', 20 + 4*i, 4) for i in range(2)]; XW = [R('v', 28 + 4*i, 4) for i in range(9)]
    YA = [R('v', 64 + 4*i, 4) for i in range(2)]; YW = [R('v', 72 + 4*i, 4) for i in range(9)]
    acc = {}
    n = 0
    for j in range(9):
        for i in range(2):
            acc[j, i] = R('a', 16 * n, 16) if n < 16 else R('v', 112 + 16 * (n - 16), 16)
            n += 1
    a(f'v_and_b32 v{vLane}, 63, v0\nv_lshrrev_b32 v{vT}, 6, v0')
    a('s_and_b32 s40, s2, 7\ns_lshr_b32 s41, s2, 3')
    a(f'v_readfirstlane_b32 s{sWave}, v{vT}')
    a(f's_and_b32 s42, s41, 3\ns_lshl_b32 s40, s40, 2\ns_add_u32 s{sCj}, s40, s42\ns_lshr_b32 s{sTt}, s41, 2')
    a(f's_mul_i32 s40, s{sCj}, 144\ns_and_b32 s41, s{sCj}, 1\ns_lshl_b32 s42, s41, 4\ns_add_u32 s{sFb}, s40, s42')
    a(f's_xor_b32 s41, s41, 1\ns_lshl_b32 s41, s41, 7\ns_add_u32 s{sMb}, s40, s41')
    a('s_waitcnt lgkmcnt(0)')
    make_srd(a, sG, 4, SZ['wg']); make_srd(a, sU, 6, SZ['wu'])
    make_srd(a, sA, 8, SZ_XN, WS_XN); make_srd(a, sO, 8, SZ_ACT2, WS_ACT2)
    a(f's_bitcmp1_b32 s{sWave}, 0\ns_cselect_b32 s4, s6, s4\ns_cselect_b32 s5, s7, s5')
    make_srd(a, sM, 4, SZ['wg'])
    a(f's_lshl_b32 s40, s{sWave}, 12')
    a(f'v_lshlrev_b32 v{vAb}, 4, v{vLane}\nv_add_u32 v{vAb}, s40, v{vAb}')
    lane_w_base(a, vW0b, vW1b, vLane, vT, 2)
    a(f'v_lshrrev_b32 v{vT}, 5, v{vLane}\nv_lshlrev_b32 v{vMb}, 8, v{vT}')
    a(f'v_bfe_u32 v{vT}, v{vLane}, 2, 2\nv_lshl_add_u32 v{vMb}, v{vT}, 5, v{vMb}')
    a(f'v_bfe_u32 v{vT}, v{vLane}, 4, 1\nv_mul_u32_u24 v{vT}, {MUO}, v{vT}\nv_add_u32 v{vMb}, v{vMb}, v{vT}')
    a(f'v_and_b32 v{vT}, 3, v{vLane}\nv_lshl_add_u32 v{vMb}, v{vT}, 3, v{vMb}')
    a(f's_lshl_b32 s40, s{sTt}, 3\ns_lshl_b32 s41, s{sWave}, 1\ns_add_u32 s40, s40, s41\ns_mul_i32 s40, s40, {36*1024}')
    a(f'v_lshlrev_b32 v{vDA}, 4, v{vLane}\nv_add_u32 v{vDA}, s40, v{vDA}')
    a(f's_mov_b32 s{sSoffA}, {36*1024 - 2048}')
    a(f's_movk_i32 s43, {PITCH}')
    lane_w_dma(a, vDW, vLane, vT, 43)
    a(f's_lshl_b32 s40, s{sFb}, 1\ns_mul_i32 s41, s{sWave}, {8*PITCH}\ns_add_u32 s40, s40, s41')
    a(f'v_add_u32 v{vDW}, s40, v{vDW}')
    a(f's_mov_b32 s{sSoffW}, {4*PITCH - 1024}')
    a(f'v_lshrrev_b32 v{vT}, 1, v{vLane}\nv_mul_lo_u32 v{vDM}, v{vT}, s43')
    a(f'v_and_b32 v{vT}, 1, v{vLane}\nv_lshl_add_u32 v{vDM}, v{vT}, 4, v{vDM}')
    a(f's_lshl_b32 s40, s{sMb}, 1\nv_add_u32 v{vDM}, s40, v{vDM}')
    a(f's_lshl_b32 s{sM0A}, s{sWave}, 12')
    a(f's_lshl_b32 s40, s{sWave}, 11\ns_add_u32 s{sM0G}, s40, {GOFF}\ns_add_u32 s{sM0U}, s40, {UOFF}')
    a(f's_and_b32 s40, s{sWave}, 1\ns_mul_i32 s40, s40, {MUO}\ns_add_u32 s{sM0M}, s40, {MOFF}')
    def dma_ops():
        g = []
        g.append([f's_add_u32 m0, s{sDst}, s{sM0A}', 's_nop 0', f'buffer_load_dwordx4 v{vDA}, {srd(sA)}, 0 offen lds'])
        g.append([f'buffer_load_dwordx4 v{vDA}, {srd(sA)}, 0 offen offset:1024 lds'])
        g.append([f'buffer_load_dwordx4 v{vDA}, {srd(sA)}, s{sSoffA} offen offset:2048 lds'])
        g.append([f'buffer_load_dwordx4 v{vDA}, {srd(sA)}, s{sSoffA} offen offset:3072 lds',
                  f's_add_u32 m0, s{sDst}, s{sM0G}', f'v_add_u32 v{vDA}, 2048, v{vDA}'])
        g.append([f'buffer_load_dwordx4 v{vDW}, {srd(sG)}, 0 offen lds'])
        g.append([f'buffer_load_dwordx4 v{vDW}, {srd(sG)}, s{sSoffW} offen offset:1024 lds', f's_add_u32 m0, s{sDst}, s{sM0U}', 's_nop 0'])
        g.append([f'buffer_load_dwordx4 v{vDW}, {srd(sU)}, 0 offen lds'])
        g.append([f'buffer_load_dwordx4 v{vDW}, {srd(sU)}, s{sSoffW} offen offset:1024 lds',
                  f's_add_u32 m0, s{sDst}, s{sM0M}', f'v_add_u32 v{vDW}, {32*PITCH}, v{vDW}'])
        g.append([f'buffer_load_dwordx4 v{vDM}, {srd(sM)}, 0 offen lds', f'v_add_u32 v{vDM}, {32*PITCH}, v{vDM}',
                  f's_add_u32 s{sDst}, s{sDst}, {SS}', f's_cmp_ge_u32 s{sDst}, {NS*SS}', f's_cselect_b32 s{sDst}, 0, s{sDst}'])
        return g
    ND = 9
    def reads(ks, FA, FW):
        r = []
        def wrd(j):
            if j < 8:
                base = vW0 if (j & 1) == 0 else vW1
                off = (GOFF if j < 4 else UOFF) + ((j & 3) >> 1) * 512
                for i2 in range(2):
                    r.append(f'ds_read_b64_tr_b16 {FW[j][2*i2:2*i2+2]}, v{base} offset:{off + (4*ks + i2)*1024}')
            else:
                for i2 in range(2):
                    r.append(f'ds_read_b64_tr_b16 {FW[j][2*i2:2*i2+2]}, v{vM} offset:{MOFF + (4*ks + i2)*128}')
        wrd(0)
        for i in range(2): r.append(f'ds_read_b128 {FA[i]}, v{vA} offset:{i*2048 + ks*1024}')
        for j in range(1, 9): wrd(j)
        return r
    def mfmas(FA, FW):
        return [mfma(acc[j, i], FW[j], FA[i]) for j in range(9) for i in range(2)]
    a(f's_mov_b32 s{sDst}, 0')
    st('setup')
    for t in range(NS):
        for g in dma_ops():
            for x in g: a(x)
    st('dma')
    for i in range(256): a(f'v_accvgpr_write_b32 a{i}, 0')
    for i in range(32): a(f'v_mov_b32 v{112+i}, 0')
    a(f's_mov_b32 s{sStage}, 0')
    a(f'v_mov_b32 v{vA}, v{vAb}\nv_mov_b32 v{vW0}, v{vW0b}\nv_mov_b32 v{vW1}, v{vW1b}\nv_mov_b32 v{vM}, v{vMb}')
    st('issued')
    a(f's_waitcnt vmcnt({3*ND})\ns_barrier')
    st('first')
    for x in reads(0, XA, XW): a(x)

    def body(dma, vm):
        a('s_waitcnt lgkmcnt(0)')
        rd = reads(1, YA, YW)
        fills = {k: rd[2*k:2*k+2] for k in range(10)}
        fills[10] = [f's_add_u32 s{sStage}, s{sStage}, {SS}', f's_cmp_ge_u32 s{sStage}, {NS*SS}', f's_cselect_b32 s{sStage}, 0, s{sStage}']
        fills[11] = [f'v_add_u32 v{vA}, s{sStage}, v{vAb}', f'v_add_u32 v{vW0}, s{sStage}, v{vW0b}', f'v_add_u32 v{vW1}, s{sStage}, v{vW1b}', f'v_add_u32 v{vM}, s{sStage}, v{vMb}']
        interleave(a, mfmas(XA, XW), fills)
        if vm is not None:
            a(f's_waitcnt vmcnt({vm}) lgkmcnt(0)')
            a('s_barrier')
        else:
            a('s_waitcnt lgkmcnt(0)')
        fills = {}
        if vm is not None:
            rd = reads(0, XA, XW)
            fills = {k: rd[2*k:2*k+2] for k in range(10)}
        if dma:
            for k, g in enumerate(dma_ops()):
                fills.setdefault(9 + k, []).extend(g)
        interleave(a, mfmas(YA, YW), fills)

    a(f's_mov_b32 s{sCnt}, {NSTG - NS}')
    a('.p2align 6')
    a.label('LGU_loop')
    body(True, 2*ND)
    a(f's_sub_u32 s{sCnt}, s{sCnt}, 1\ns_cmp_lg_u32 s{sCnt}, 0\ns_cbranch_scc1 LGU_loop')
    body(False, 2*ND); body(False, ND); body(False, 0); body(False, None)
    st('loop')
    a('s_nop 7\ns_nop 7')
    a(f's_mov_b32 s{sK1}, {f2u(GK1):#x}\ns_mov_b32 s{sK2}, {f2u(GK2):#x}')
    a(f's_lshl_b32 s40, s{sTt}, 3\ns_lshl_b32 s41, s{sWave}, 1\ns_add_u32 s40, s40, s41\ns_mul_i32 s40, s40, {544*1024}\ns_add_u32 s40, s40, {256*1024}')
    a(f'v_lshlrev_b32 v{vT}, 4, v{vLane}\nv_add_u32 v{vT}, s40, v{vT}')
    a(f's_lshl_b32 s{sFb}, s{sFb}, 6\ns_lshl_b32 s{sMb}, s{sMb}, 6')
    G, U, E, P = 20, 36, 52, 68
    vK1 = 80
    a(f'v_mov_b32 v{vK1}, s{sK1}')
    def rd_acc(dst, src, n):
        for r in range(n):
            if src.kind == 'a': a(f'v_accvgpr_read_b32 v{dst+r}, {src[r]}')
            else: a(f'v_mov_b32 v{dst+r}, {src[r]}')
    def geglu(n):
        for r in range(n): a(f'v_mul_f32 v{E+r}, v{G+r}, v{G+r}')
        for r in range(n): a(f'v_fma_f32 v{E+r}, v{E+r}, s{sK2}, v{vK1}')
        for r in range(n): a(f'v_mul_f32 v{E+r}, v{G+r}, v{E+r}')
        for r in range(n): a(f'v_exp_f32 v{E+r}, v{E+r}')
        for r in range(n): a(f'v_mul_f32 v{G+r}, v{G+r}, v{U+r}')
        for r in range(n): a(f'v_add_f32 v{E+r}, 1.0, v{E+r}')
        for r in range(n): a(f'v_rcp_f32 v{E+r}, v{E+r}')
        a('s_nop 0')
        for r in range(n): a(f'v_mul_f32 v{G+r}, v{G+r}, v{E+r}')
        for r in range(n // 2): a(f'v_cvt_pk_bf16_f32 v{P+r}, v{G+2*r}, v{G+2*r+1}')
    for i in range(2):
        for j in range(4):
            rd_acc(G, acc[j, i], 16); rd_acc(U, acc[4+j, i], 16)
            geglu(16)
            a(f's_add_u32 s41, s{sFb}, {i*544*1024 + j*2048}')
            a(f'buffer_store_dwordx4 v[{P}:{P+3}], v{vT}, {srd(sO)}, s41 offen {gen_common.STFLAG}')
            a(f'buffer_store_dwordx4 v[{P+4}:{P+7}], v{vT}, {srd(sO)}, s41 offen offset:1024 {gen_common.STFLAG}')
        rd_acc(G, acc[8, i][0:8], 8); rd_acc(U, acc[8, i][8:16], 8)
        geglu(8)
        a(f's_add_u32 s41, s{sMb}, {i*544*1024}')
        a(f'buffer_store_dwordx4 v[{P}:{P+3}], v{vT}, {srd(sO)}, s41 offen {gen_common.STFLAG}')
    st('epi')
    if gen_common.STAMP:
        a('s_waitcnt vmcnt(0)')
    st('drain')
    st.flush(8, 2)
    a.label('LGU_done')
    a('s_endpgm')
    return kernel_desc(name, 512, 96, 256)
```

```python
from gen_common import *

def gen_prep(a, name='prep_kernel'):
    kernel_header(a, name)
    a('s_cmp_ge_u32 s2, 256\ns_cbranch_scc1 LP_done')
    load_ptr(a, 4, 'x'); load_ptr(a, 6, 'ckv'); load_ptr(a, 8, 'ws')
    a('v_and_b32 v1, 63, v0')
    a('v_lshrrev_b32 v2, 6, v0')
    a('s_waitcnt lgkmcnt(0)')
    a('v_readfirstlane_b32 s3, v2')
    a('s_cmp_ge_u32 s2, 128\ns_cbranch_scc1 LP_ckv')
    make_srd(a, 12, 4, SZ['x'])
    make_srd(a, 16, 8, SZ_XN, WS_XN)
    a('s_lshl_b32 s20, s2, 4\ns_lshl_b32 s21, s3, 2\ns_add_u32 s20, s20, s21')
    a('v_and_b32 v3, 3, v1\nv_add_u32 v3, s20, v3')
    a('v_lshrrev_b32 v4, 2, v1')
    a('s_movk_i32 s22, 1152')
    a('v_mul_lo_u32 v5, v3, s22')
    a('v_lshl_add_u32 v5, v4, 4, v5')
    D = 8
    for i in range(4):
        a(f'buffer_load_dwordx4 v[{D+4*i}:{D+4*i+3}], v5, {srd(12)}, 0 offen offset:{256*i}')
    a('s_mov_b32 exec_lo, -1\ns_mov_b32 exec_hi, 0')
    a(f'buffer_load_dwordx4 v[{D+16}:{D+19}], v5, {srd(12)}, 0 offen offset:1024')
    a('s_mov_b64 exec, -1')
    a('v_lshrrev_b32 v6, 5, v3')
    a('v_mul_u32_u24 v6, 36, v6')
    a('v_lshrrev_b32 v7, 1, v4\nv_add_u32 v6, v6, v7')
    a('v_lshlrev_b32 v6, 10, v6')
    a('v_and_b32 v7, 1, v4\nv_lshlrev_b32 v7, 9, v7\nv_add_u32 v6, v6, v7')
    a('v_and_b32 v7, 31, v3\nv_lshl_add_u32 v6, v7, 4, v6')
    F = 32
    a('s_waitcnt vmcnt(0)')
    a('s_mov_b32 s23, 0xffff0000')
    def unpack(i):
        for k in range(4):
            a(f'v_lshlrev_b32 v{F+8*i+2*k}, 16, v{D+4*i+k}')
            a(f'v_and_b32 v{F+8*i+2*k+1}, s23, v{D+4*i+k}')
    for i in range(4): unpack(i)
    for k in range(8): a(f'v_mov_b32 v{F+32+k}, 0')
    a('s_mov_b32 exec_lo, -1\ns_mov_b32 exec_hi, 0')
    unpack(4)
    a('s_mov_b64 exec, -1')
    a(f'v_add_f32 v28, v{F}, v{F+1}')
    for k in range(2, 40): a(f'v_add_f32 v28, v28, v{F+k}')
    def allreduce(reg):
        for m in (4, 8, 16, 32):
            a(f'v_xor_b32 v29, {m}, v1\nv_lshlrev_b32 v29, 2, v29')
            a(f'ds_bpermute_b32 v30, v29, v{reg}')
            a('s_waitcnt lgkmcnt(0)')
            a(f'v_add_f32 v{reg}, v{reg}, v30')
    allreduce(28)
    a('s_mov_b32 s24, 0x3ae38e39')
    a('v_mul_f32 v28, s24, v28')
    a('v_mov_b32 v31, 0')
    for k in range(32):
        a(f'v_sub_f32 v72, v{F+k}, v28\nv_fmac_f32 v31, v72, v72')
    a('s_mov_b32 exec_lo, -1\ns_mov_b32 exec_hi, 0')
    for k in range(32, 40):
        a(f'v_sub_f32 v72, v{F+k}, v28\nv_fmac_f32 v31, v72, v72')
    a('s_mov_b64 exec, -1')
    allreduce(31)
    a('v_mul_f32 v31, s24, v31')
    a('v_cvt_pk_bf16_f32 v72, v28, v31')
    a('v_lshlrev_b32 v28, 16, v72')
    a('v_and_b32 v31, s23, v72')
    a('s_mov_b32 s25, 0x3727c5ac')
    a('v_add_f32 v31, s25, v31')
    a('v_cvt_pk_bf16_f32 v72, v31, v31\nv_lshlrev_b32 v31, 16, v72')
    a('v_sqrt_f32 v31, v31')
    a('s_nop 0')
    a('v_cvt_pk_bf16_f32 v72, v31, v31\nv_lshlrev_b32 v31, 16, v72')
    a('v_rcp_f32 v73, v31')
    a('s_nop 0')
    for i in range(5):
        if i == 4: a('s_mov_b32 exec_lo, -1\ns_mov_b32 exec_hi, 0')
        for k in range(4):
            r0, r1 = F+8*i+2*k, F+8*i+2*k+1
            a(f'v_sub_f32 v{r0}, v{r0}, v28\nv_sub_f32 v{r1}, v{r1}, v28')
            a(f'v_cvt_pk_bf16_f32 v74, v{r0}, v{r1}')
            a(f'v_lshlrev_b32 v{r0}, 16, v74\nv_and_b32 v{r1}, s23, v74')
            for r in (r0, r1):
                a(f'v_mul_f32 v75, v{r}, v73')
                a(f'v_fma_f32 v76, -v75, v31, v{r}')
                a(f'v_fma_f32 v{r}, v76, v73, v75')
            a(f'v_cvt_pk_bf16_f32 v{D+4*i+k}, v{r0}, v{r1}')
        a(f'v_add_u32 v7, {i*8*1024}, v6')
        a(f'buffer_store_dwordx4 v[{D+4*i}:{D+4*i+3}], v7, {srd(16)}, 0 offen')
    a('s_mov_b64 exec, -1')
    a('s_endpgm')
    a.label('LP_ckv')
    make_srd(a, 12, 6, SZ['ckv'])
    make_srd(a, 16, 8, SZ_CKV, WS_CKV)
    a('s_sub_u32 s20, s2, 128\ns_lshl_b32 s20, s20, 2\ns_add_u32 s20, s20, s3')
    a('s_lshr_b32 s21, s20, 3\ns_and_b32 s22, s20, 7')
    a('v_and_b32 v3, 31, v1\nv_lshrrev_b32 v4, 5, v1')
    a('s_lshl_b32 s23, s21, 15\ns_lshl_b32 s24, s22, 7\ns_add_u32 s23, s23, s24')
    a('v_lshlrev_b32 v3, 10, v3\nv_lshl_add_u32 v3, v4, 4, v3\nv_add_u32 v3, s23, v3')
    for s in range(4):
        a(f'buffer_load_dwordx4 v[{8+4*s}:{11+4*s}], v3, {srd(12)}, 0 offen offset:{32*s}')
    a('s_lshl_b32 s23, s21, 15\ns_lshl_b32 s24, s22, 12\ns_add_u32 s23, s23, s24')
    a('v_lshlrev_b32 v5, 4, v1\nv_add_u32 v5, s23, v5')
    a('s_waitcnt vmcnt(0)')
    for s in range(4):
        a(f'buffer_store_dwordx4 v[{8+4*s}:{11+4*s}], v5, {srd(16)}, 0 offen offset:{1024*s}')
    a.label('LP_done')
    a('s_endpgm')
    return kernel_desc(name, 80, 32, 80)
```

```python
import sys
from gen_common import *
from gen_prep import gen_prep
from gen_gemm import gen_kv
from gen_gu import gen_gu
from gen_attn import gen_attn
from gen_fin import gen_fin, gen_red

HEADER = open('parallel_sum__compressed_kv_cla__glu_gated_geglu__prompt.s.ref').read().split('; Override launch')[0]

def build(launches, gens):
    a = Asm()
    descs = []
    for g in gens:
        descs.append(g(a))
    out = HEADER
    for (k, grid, block, lds) in launches:
        out += f'; @launch kernel={k} grid=({grid},1,1) block=({block},1,1) lds={lds}\n'
    out += '.amdgcn_target "amdgcn-amd-amdhsa--gfx950"\n.text\n'
    out += a.text()
    out += '.section .rodata,"a"\n'
    for d in descs:
        out += '.p2align 6\n' + d
    errs = check_hazards(a.lines, 'all')
    print('hazards:', len(errs), file=sys.stderr)
    return out

if __name__ == '__main__':
    import gen_common
    gen_common.STAMP = 'stamp' in sys.argv
    for x in sys.argv:
        if x.startswith('st='): gen_common.STFLAG = x[3:].replace('+', ' ')
    s = build([('prep_kernel', 256, 256, 0), ('kv_kernel', 256, 256, 131072), ('gu_kernel', 256, 256, 140288), ('attn_kernel', 256, 256, 163840), ('fin_kernel', 240, 256, 163840), ('red_kernel', 288, 256, 0)], [gen_prep, gen_kv, gen_gu, gen_attn, gen_fin, gen_red])
    open(sys.argv[1] if len(sys.argv) > 1 else 'out.s', 'w').write(s)
```

```python
from asmlib import *

class Em(Asm):
    def __init__(self):
        super().__init__()
        self.lg = []
        self.vm = []
        self.slot = 0
        self.age = 3
    def ds(self, text):
        ins = Ins(text)
        self(text)
        self.lg.append((ins.vregs(ins.wr), self.slot))
    def need(self, regs):
        idx = -1
        for i, (r, t) in enumerate(self.lg):
            if r & regs: idx = i
        if idx < 0: return
        j = idx
        while j + 1 < len(self.lg) and self.slot - self.lg[j + 1][1] >= self.age: j += 1
        n = len(self.lg) - 1 - j
        if n > 15:
            n = 15; j = len(self.lg) - 1 - n
        self(f's_waitcnt lgkmcnt({n})')
        self.lg = self.lg[j + 1:]
    def lgkm0(self):
        self('s_waitcnt lgkmcnt(0)')
        self.lg = []
    def mf(self, D, A, B, C=None):
        regs = A.regs() | B.regs()
        self.need(regs)
        self(f'v_mfma_f32_32x32x16_bf16 {D}, {A}, {B}, {C if C is not None else D}')
        self.slot += 1
    def vmem(self, text, tag=None, optional=False):
        self(text)
        if not optional: self.vm.append(tag)
    def vm_count(self, tag):
        idx = -1
        for i, t in enumerate(self.vm):
            if t == tag: idx = i
        if idx < 0: return None
        return len(self.vm) - 1 - idx
    def wait_vm(self, tag, also_lgkm0=False, barrier=False):
        n = self.vm_count(tag)
        parts = []
        if n is not None:
            assert n <= 63, n
            parts.append(f'vmcnt({n})')
            self.vm = self.vm[len(self.vm) - n:] if n > 0 else []
        if also_lgkm0:
            parts.append('lgkmcnt(0)'); self.lg = []
        if parts: self('s_waitcnt ' + ' '.join(parts))
        if barrier: self('s_barrier')
    def vm0(self):
        self('s_waitcnt vmcnt(0)')
        self.vm = []
    def op(self, text, tag=None):
        t = text.strip()
        if t.startswith('ds_read'): self.ds(t)
        elif t.startswith('buffer_') or t.startswith('global_'): self.vmem(t, tag, optional=(tag == 'OPT'))
        else: self(t)
```

```python
from gen_common import *
import gen_common

def mfma(D, A, B, C=None):
    return f'v_mfma_f32_32x32x16_bf16 {D}, {A}, {B}, {C if C is not None else D}'

def interleave(a, mf, fills):
    for k, m in enumerate(mf):
        a(m)
        for f in fills.get(k, []):
            a(f)

class GemmCfg:
    pass

def lane_w_base(a, dst0, dst1, lane, tmp, HQ):
    t0, t1 = tmp, tmp + 1
    a(f'v_lshrrev_b32 v{t0}, 5, v{lane}')
    a(f'v_mul_u32_u24 v{dst0}, {HQ*1024}, v{t0}')
    a(f'v_bfe_u32 v{t0}, v{lane}, 2, 2')
    a(f'v_lshl_add_u32 v{dst0}, v{t0}, 7, v{dst0}')
    a(f'v_bfe_u32 v{t1}, v{lane}, 4, 1')
    a(f'v_lshl_add_u32 v{dst0}, v{t1}, 5, v{dst0}')
    a(f'v_and_b32 v{t1}, 3, v{lane}')
    a(f'v_lshl_add_u32 v{dst0}, v{t1}, 3, v{dst0}')
    a(f'v_lshrrev_b32 v{t0}, 1, v{t0}')
    a(f'v_lshlrev_b32 v{t0}, 6, v{t0}')
    a(f'v_xor_b32 v{t1}, 64, v{t0}')
    a(f'v_add_u32 v{dst1}, v{dst0}, v{t1}')
    a(f'v_add_u32 v{dst0}, v{dst0}, v{t0}')

def lane_w_dma(a, dst, lane, tmp, pitch_sreg):
    t0, t1 = tmp, tmp + 1
    a(f'v_bfe_u32 v{t0}, v{lane}, 3, 2')
    a(f'v_mul_lo_u32 v{dst}, v{t0}, s{pitch_sreg}')
    a(f'v_lshrrev_b32 v{t0}, 1, v{t0}')
    a(f'v_bfe_u32 v{t1}, v{lane}, 2, 1')
    a(f'v_xor_b32 v{t0}, v{t0}, v{t1}')
    a(f'v_lshl_add_u32 v{dst}, v{t0}, 6, v{dst}')
    a(f'v_lshrrev_b32 v{t0}, 5, v{lane}')
    a(f'v_lshl_add_u32 v{dst}, v{t0}, 7, v{dst}')
    a(f'v_and_b32 v{t0}, 3, v{lane}')
    a(f'v_lshl_add_u32 v{dst}, v{t0}, 4, v{dst}')

def gen_kv(a, name='kv_kernel'):
    NSTG = 16; NS = 4; SS = 32768; ACTB = 16384
    kernel_header(a, name)
    a('s_cmp_ge_u32 s2, 256\ns_cbranch_scc1 LKV_done')
    st = Stamps(a)
    st('start')
    load_ptr(a, 4, 'wuk'); load_ptr(a, 6, 'wuv'); load_ptr(a, 8, 'ws')
    sW = 12; sA = 16; sO = 20
    sWave, sCt, sTt, sStage, sCnt = 24, 25, 26, 27, 28
    sSoffW = 32
    sSoffA = 36
    sM0A, sM0W = 37, 38
    sTmp = 40
    vLane, vA, vW0, vW1, vAb, vW0b, vW1b, vDA, vDW, vT = 1, 2, 3, 4, 5, 6, 7, 8, 9, 10
    XA = [R('v', 16 + 4*i, 4) for i in range(4)]; XW = [R('v', 32 + 4*i, 4) for i in range(4)]
    YA = [R('v', 48 + 4*i, 4) for i in range(4)]; YW = [R('v', 64 + 4*i, 4) for i in range(4)]
    acc = [[R('a', 16 * (4*j + i), 16) for j in range(4)] for i in range(4)]
    a(f'v_and_b32 v{vLane}, 63, v0\nv_lshrrev_b32 v{vT}, 6, v0')
    a('s_and_b32 s40, s2, 7\ns_lshr_b32 s41, s2, 3')
    a(f'v_readfirstlane_b32 s{sWave}, v{vT}')
    a(f's_and_b32 s42, s41, 3\ns_lshl_b32 s40, s40, 2\ns_add_u32 s{sCt}, s40, s42\ns_lshr_b32 s{sTt}, s41, 2')
    a('s_waitcnt lgkmcnt(0)')
    st('karg')
    a(f's_cmp_lt_u32 s{sCt}, 16\ns_cselect_b32 s4, s4, s6\ns_cselect_b32 s5, s5, s7')
    make_srd(a, sW, 4, SZ['wuk'])
    make_srd(a, sA, 8, SZ_CKV, WS_CKV)
    a(f's_mov_b32 s41, {WS_VF:#x}\ns_cmp_lt_u32 s{sCt}, 16\ns_cselect_b32 s40, {WS_KF:#x}, s41')
    a(f's_add_u32 s{sO}, s8, s40\ns_addc_u32 s{sO+1}, s9, 0\ns_mov_b32 s{sO+2}, {SZ_KF:#x}\ns_mov_b32 s{sO+3}, 0x20000')
    a(f's_and_b32 s40, s{sWave}, 1\ns_lshl_b32 s40, s40, 13')
    a(f'v_lshlrev_b32 v{vAb}, 4, v{vLane}\nv_add_u32 v{vAb}, s40, v{vAb}')
    lane_w_base(a, vW0b, vW1b, vLane, vT, 2)
    a(f's_lshr_b32 s40, s{sWave}, 1\ns_lshl_b32 s40, s40, 13\ns_add_u32 s40, s40, {ACTB}')
    a(f'v_add_u32 v{vW0b}, s40, v{vW0b}\nv_add_u32 v{vW1b}, s40, v{vW1b}')
    a(f's_lshl_b32 s40, s{sTt}, 3\ns_lshl_b32 s41, s{sWave}, 1\ns_add_u32 s40, s40, s41\ns_lshl_b32 s40, s40, 15')
    a(f'v_lshlrev_b32 v{vDA}, 4, v{vLane}\nv_add_u32 v{vDA}, s40, v{vDA}')
    a(f's_mov_b32 s{sSoffA}, {32*1024 - 2048}')
    a(f's_movk_i32 s43, 8192')
    lane_w_dma(a, vDW, vLane, vT, 43)
    a(f's_and_b32 s40, s{sCt}, 15\ns_lshl_b32 s40, s40, 9\ns_and_b32 s41, s{sWave}, 1\ns_lshl_b32 s41, s41, 8\ns_add_u32 s40, s40, s41')
    a(f's_lshr_b32 s41, s{sWave}, 1\ns_lshl_b32 s41, s41, 17\ns_add_u32 s40, s40, s41')
    a(f'v_add_u32 v{vDW}, s40, v{vDW}')
    for j in range(1, 4): a(f's_mov_b32 s{sSoffW+j}, {j*(4*8192-1024)}')
    a(f's_lshl_b32 s{sM0A}, s{sWave}, 12')
    a(f's_and_b32 s40, s{sWave}, 1\ns_lshl_b32 s40, s40, 13\ns_lshr_b32 s41, s{sWave}, 1\ns_lshl_b32 s41, s41, 12')
    a(f's_add_u32 s{sM0W}, s40, s41\ns_add_u32 s{sM0W}, s{sM0W}, {ACTB}')
    sDst = 29
    def dma_ops():
        g = []
        g.append([f's_add_u32 m0, s{sDst}, s{sM0A}', 's_nop 0',
                  f'buffer_load_dwordx4 v{vDA}, {srd(sA)}, 0 offen lds'])
        g.append([f'buffer_load_dwordx4 v{vDA}, {srd(sA)}, 0 offen offset:1024 lds'])
        g.append([f'buffer_load_dwordx4 v{vDA}, {srd(sA)}, s{sSoffA} offen offset:2048 lds'])
        g.append([f'buffer_load_dwordx4 v{vDA}, {srd(sA)}, s{sSoffA} offen offset:3072 lds',
                  f's_add_u32 m0, s{sDst}, s{sM0W}', f'v_add_u32 v{vDA}, 2048, v{vDA}'])
        g.append([f'buffer_load_dwordx4 v{vDW}, {srd(sW)}, 0 offen lds'])
        for j in range(1, 4):
            g.append([f'buffer_load_dwordx4 v{vDW}, {srd(sW)}, s{sSoffW+j} offen offset:{1024*j} lds'])
        g[-1] += [f'v_add_u32 v{vDW}, {32*8192}, v{vDW}', f's_add_u32 s{sDst}, s{sDst}, {SS}', f's_and_b32 s{sDst}, s{sDst}, {NS*SS-1}']
        return g
    def reads(ks, FA, FW):
        r = []
        def wrd(j):
            base = vW0 if (j & 1) == 0 else vW1
            for i2 in range(2):
                r.append(f'ds_read_b64_tr_b16 {FW[j][2*i2:2*i2+2]}, v{base} offset:{(4*ks + i2)*1024 + (j >> 1)*512}')
        def ard(i):
            r.append(f'ds_read_b128 {FA[i]}, v{vA} offset:{i*2048 + ks*1024}')
        wrd(0); ard(0); ard(1); ard(2); ard(3); wrd(1); wrd(2); wrd(3)
        return r
    def mfmas(FA, FW, isK):
        m = []
        for j in range(4):
            for i in range(4):
                m.append(mfma(acc[i][j], FW[j], FA[i]) if isK else mfma(acc[i][j], FA[i], FW[j]))
        return m
    a(f's_mov_b32 s{sDst}, 0')
    st('setup')
    for t in range(NS):
        for g in dma_ops():
            for x in g: a(x)
    st('dma')
    for i in range(256): a(f'v_accvgpr_write_b32 a{i}, 0')
    a(f's_mov_b32 s{sStage}, 0')
    a(f'v_mov_b32 v{vA}, v{vAb}\nv_mov_b32 v{vW0}, v{vW0b}\nv_mov_b32 v{vW1}, v{vW1b}')
    st('issued')
    a('s_waitcnt vmcnt(24)\ns_barrier')
    st('first')
    for x in reads(0, XA, XW): a(x)

    def body(isK, dma, vm):
        a('s_waitcnt lgkmcnt(0)')
        rd = reads(1, YA, YW)
        fills = {k: rd[2*k:2*k+2] for k in range(6)}
        fills[6] = [f's_add_u32 s{sStage}, s{sStage}, {SS}', f's_and_b32 s{sStage}, s{sStage}, {NS*SS-1}']
        fills[7] = [f'v_add_u32 v{vA}, s{sStage}, v{vAb}', f'v_add_u32 v{vW0}, s{sStage}, v{vW0b}', f'v_add_u32 v{vW1}, s{sStage}, v{vW1b}']
        interleave(a, mfmas(XA, XW, isK), fills)
        if vm is not None:
            a(f's_waitcnt vmcnt({vm}) lgkmcnt(0)')
            a('s_barrier')
        else:
            a('s_waitcnt lgkmcnt(0)')
        fills = {}
        if vm is not None:
            rd = reads(0, XA, XW)
            fills = {k: rd[2*k:2*k+2] for k in range(6)}
        if dma:
            for k, g in enumerate(dma_ops()):
                fills.setdefault(6 + k, []).extend(g)
        interleave(a, mfmas(YA, YW, isK), fills)

    def mainloop(isK, lab):
        import sys
        if 'unroll' in sys.argv:
            for _ in range(NSTG - NS): body(isK, True, 16)
        else:
            a(f's_mov_b32 s{sCnt}, {NSTG - NS}')
            a('.p2align 6')
            a.label(lab)
            body(isK, True, 16)
            a(f's_sub_u32 s{sCnt}, s{sCnt}, 1\ns_cmp_lg_u32 s{sCnt}, 0\ns_cbranch_scc1 {lab}')
        body(isK, False, 16); body(isK, False, 8); body(isK, False, 0); body(isK, False, None)

    def epilogue(isK):
        a('s_nop 7\ns_nop 7')
        a(f's_and_b32 s40, s{sCt}, 15\ns_lshl_b32 s40, s40, 1\ns_lshr_b32 s41, s{sWave}, 1\ns_add_u32 s40, s40, s41')
        a(f's_lshl_b32 s41, s{sTt}, 3\ns_and_b32 s42, s{sWave}, 1\ns_lshl_b32 s42, s42, 2\ns_add_u32 s41, s41, s42')
        a('s_lshl_b32 s40, s40, 6\ns_add_u32 s40, s40, s41\ns_lshl_b32 s40, s40, 13')
        a(f'v_lshlrev_b32 v{vT}, 4, v{vLane}\nv_add_u32 v{vT}, s40, v{vT}')
        E = 80
        n = 0
        for i in range(4):
            for j in range(4):
                e = E + 16 * (n % 4); p = 144 + 8 * (n % 4); n += 1
                for r in range(16): a(f'v_accvgpr_read_b32 v{e+r}, {acc[i][j][r]}')
                for r in range(8): a(f'v_cvt_pk_bf16_f32 v{p+r}, v{e+2*r}, v{e+2*r+1}')
                for half in range(2):
                    off = i * 8192 + ((2*j + half) * 1024 if isK else half * 4096 + j * 1024)
                    so = off // 4096 * 4096; io = off % 4096
                    a(f's_mov_b32 s41, {so}')
                    a(f'buffer_store_dwordx4 v[{p+4*half}:{p+4*half+3}], v{vT}, {srd(sO)}, s41 offen offset:{io} {gen_common.STFLAG}')
    a(f's_cmp_lt_u32 s{sCt}, 16\ns_cbranch_scc0 LKV_V')
    n0 = st.n
    mainloop(True, 'LKV_loopK')
    st('loop')
    epilogue(True)
    st('epi')
    a('s_waitcnt vmcnt(0)')
    st('drain')
    st.flush(8, 1)
    a('s_endpgm')
    a.label('LKV_V')
    st.n = n0
    mainloop(False, 'LKV_loopV')
    st('loop')
    epilogue(False)
    st('epi')
    a('s_waitcnt vmcnt(0)')
    st('drain')
    st.flush(8, 1)
    a.label('LKV_done')
    a('s_endpgm')
    return kernel_desc(name, 512, 96, 256)
```

```python
from gen_common import *
import gen_common
from emit import *
import struct
def f2u(x): return struct.unpack('<I', struct.pack('<f', x))[0]

WS_FLAG = 0x9000000
FL_LN, FL_KV, FL_GU, FL_CTX, FL_EX, FL_E = 0x0, 0x400, 0x800, 0xC00, 0x1400, 0x8000
SPIN_MAX = 100000

sWave = 3
SF = 8
S0, S1, S2, S3, S4 = 12, 16, 20, 24, 28
pX, pCkv, pWq, pWkv, pWo, pWg, pWu, pWd, pOut, pDbg, pWs, pTmp = 64, 66, 68, 70, 72, 74, 76, 78, 80, 82, 84, 86
sTag, sXcd, sIdx, sSlow = 88, 89, 90, 91
sStamp = 92
MK = [94, 96, 98, 100]
vLane, vL16 = 1, 2
vStamp = 255

class St:
    def __init__(self, e): self.e, self.n, self.names = e, 0, []
    def __call__(self, name):
        if not gen_common.STAMP: return
        e = self.e
        e(f's_memtime s[{sStamp}:{sStamp+1}]\ns_waitcnt lgkmcnt(0)\nv_writelane_b32 v{vStamp}, s{sStamp}, {self.n}')
        e(f's_memrealtime s[{sStamp}:{sStamp+1}]\ns_waitcnt lgkmcnt(0)\nv_writelane_b32 v{vStamp}, s{sStamp}, {self.n + 32}')
        e.lg = []
        self.names.append(name); self.n += 1
    def real(self, lane):
        if not gen_common.STAMP: return
        e = self.e
        e(f's_memrealtime s[{sStamp}:{sStamp+1}]\ns_waitcnt lgkmcnt(0)\nv_writelane_b32 v{vStamp}, s{sStamp}, {lane}')
        e.lg = []
    def flush(self):
        if not gen_common.STAMP: return
        e = self.e
        self.real(63)
        e(f's_add_u32 s4, s{pWs}, {gen_common.WS_STAMP:#x}\ns_addc_u32 s5, s{pWs+1}, 0\ns_mov_b32 s6, 0x100000\ns_mov_b32 s7, 0x20000')
        e(f's_lshl_b32 s32, s2, 2\ns_add_u32 s32, s32, s{sWave}\ns_lshl_b32 s32, s32, 8')
        e(f'v_lshlrev_b32 v3, 2, v{vLane}\nv_add_u32 v3, s32, v3')
        e(f'buffer_store_dword v{vStamp}, v3, s[4:7], 0 offen')

def srd_from(e, srd, ptr, size, off=0):
    make_srd(e, srd, ptr, size, off)

def flag_poll_issue(e, vdst, voff, soff_const_or_sreg):
    so = soff_const_or_sreg
    if isinstance(so, int):
        e(f's_mov_b32 s4, {so}'); so = 's4'
    e.vmem(f'buffer_load_dword v{vdst}, v{voff}, {srd(SF)}, {so} offen sc1', 'poll')

_uid = [0]
def flag_check(e, vdst, voff, soff, nlanes, ndw=1):
    _uid[0] += 1
    lab = f'LFL{_uid[0]}'
    so = soff
    e.wait_vm('poll')
    if nlanes < 64:
        e(f's_mov_b32 s6, {hex((1 << min(nlanes, 32)) - 1)}\ns_mov_b32 s7, {hex((1 << max(nlanes - 32, 0)) - 1)}')
    else:
        e('s_mov_b32 s6, -1\ns_mov_b32 s7, -1')
    e(f's_mov_b32 s5, {SPIN_MAX}')
    e.label(lab)
    if ndw == 1:
        e(f'v_cmp_ne_u32 vcc, s{sTag}, v{vdst}')
    else:
        e(f'v_xor_b32 v{vdst}, s{sTag}, v{vdst}')
        for k in range(1, ndw):
            e(f'v_xor_b32 v{vdst+k}, s{sTag}, v{vdst+k}\nv_or_b32 v{vdst}, v{vdst}, v{vdst+k}')
        e(f'v_cmp_ne_u32 vcc, 0, v{vdst}')
    e('s_nop 1')
    e('s_and_b64 vcc, vcc, s[6:7]')
    e(f's_cbranch_vccz {lab}_ok')
    e(f's_sub_u32 s5, s5, 1\ns_cmp_eq_u32 s5, 0\ns_cbranch_scc1 {lab}_ok')
    e('s_sleep 4')
    if isinstance(so, int):
        e(f's_mov_b32 s4, {so}'); so = 's4'
    suf = {1: 'dword', 4: 'dwordx4'}[ndw]
    dst = f'v{vdst}' if ndw == 1 else f'v[{vdst}:{vdst+ndw-1}]'
    e(f'buffer_load_{suf} {dst}, v{voff}, {srd(SF)}, {so} offen sc1')
    e('s_waitcnt vmcnt(0)')
    e(f's_branch {lab}')
    e.label(lab + '_ok')

def flag_publish(e, soff_sreg, vtmp):
    _uid[0] += 1
    lab = f'LPB{_uid[0]}'
    e(f's_cmp_lg_u32 s{sWave}, 0\ns_cbranch_scc1 {lab}')
    e(f'v_mov_b32 v{vtmp}, s{sTag}\nv_mov_b32 v{vtmp+1}, 0')
    e(f's_mov_b64 exec, 1')
    e.vmem(f'buffer_store_dword v{vtmp}, v{vtmp+1}, {srd(SF)}, s{soff_sreg} offen sc1', None, optional=True)
    e(f's_mov_b64 exec, -1')
    e.label(lab)

def lane_w_base(a, dst0, dst1, tmp, HQ, kqstride):
    t0, t1, lane = tmp, tmp + 1, vLane
    a(f'v_lshrrev_b32 v{t0}, 5, v{lane}')
    a(f'v_mul_u32_u24 v{dst0}, {HQ*kqstride}, v{t0}')
    a(f'v_bfe_u32 v{t0}, v{lane}, 2, 2')
    a(f'v_lshl_add_u32 v{dst0}, v{t0}, 7, v{dst0}')
    a(f'v_bfe_u32 v{t1}, v{lane}, 4, 1')
    a(f'v_lshl_add_u32 v{dst0}, v{t1}, 5, v{dst0}')
    a(f'v_and_b32 v{t1}, 3, v{lane}')
    a(f'v_lshl_add_u32 v{dst0}, v{t1}, 3, v{dst0}')
    a(f'v_lshrrev_b32 v{t0}, 1, v{t0}')
    a(f'v_lshlrev_b32 v{t0}, 6, v{t0}')
    a(f'v_xor_b32 v{t1}, 64, v{t0}')
    a(f'v_add_u32 v{dst1}, v{dst0}, v{t1}')
    a(f'v_add_u32 v{dst0}, v{dst0}, v{t0}')

def lane_w_dma(a, dst, tmp, pitch_sreg):
    t0, t1, lane = tmp, tmp + 1, vLane
    a(f'v_bfe_u32 v{t0}, v{lane}, 3, 2')
    a(f'v_mul_lo_u32 v{dst}, v{t0}, s{pitch_sreg}')
    a(f'v_lshrrev_b32 v{t0}, 1, v{t0}')
    a(f'v_bfe_u32 v{t1}, v{lane}, 2, 1')
    a(f'v_xor_b32 v{t0}, v{t0}, v{t1}')
    a(f'v_lshl_add_u32 v{dst}, v{t0}, 6, v{dst}')
    a(f'v_lshrrev_b32 v{t0}, 5, v{lane}')
    a(f'v_lshl_add_u32 v{dst}, v{t0}, 7, v{dst}')
    a(f'v_and_b32 v{t0}, 3, v{lane}')
    a(f'v_lshl_add_u32 v{dst}, v{t0}, 4, v{dst}')

class Spread:
    def __init__(self, groups): self.g = list(groups)
    def take(self, n=1):
        out = []
        for _ in range(n):
            if self.g: out.append(self.g.pop(0))
        return out
    def left(self): return len(self.g)
```

```python
import sys
from mega_common import *

GK1 = -2.302208198
GK2 = GK1 * 0.044715
QSCALE = 1.4426950408889634 / (128 ** 0.5)
NEG_INF = 0xff800000
EXPST = None; EXPFL = 'sc1'
for _x in sys.argv:
    if _x.startswith('expst='): EXPST = int(_x[6:])
    if _x.startswith('expfl='): EXPFL = _x[6:].replace('+', ' ')
ST = 'sc1'

def run_sub(e, mfs, fills):
    for k, m in enumerate(mfs):
        e.mf(*m)
        for f in fills.get(k, []):
            if isinstance(f, tuple): e.op(f[0], f[1])
            else: e.op(f)

def pf_ops(ptr, key, k, n):
    per = SZ[key] // 1024
    lines = (per + 127) // 128
    L = (lines + n - 1) // n
    lo = k * L; cnt = min(L, lines - lo)
    return [f's_mov_b32 s4, s{ptr}', f's_mov_b32 s5, s{ptr+1}', f's_mov_b32 s6, {SZ[key]:#x}', 's_mov_b32 s7, 0x20000',
            f's_lshl_b32 s{PFS}, s2, 2', f's_add_u32 s{PFS}, s{PFS}, s{sWave}', f's_mul_i32 s{PFS}, s{PFS}, {per}', f's_add_u32 s{PFS}, s{PFS}, {lo*128}',
            f'v_lshlrev_b32 v{PFV}, 7, v{vLane}', f's_mov_b32 exec_lo, {hex((1 << min(cnt, 32)) - 1)}', f's_mov_b32 exec_hi, {hex((1 << max(cnt - 32, 0)) - 1)}',
            (f'buffer_load_dword v{PFV+1}, v{PFV}, s[4:7], s{PFS} offen', 'pf'), 's_mov_b64 exec, -1']
PFS = 33; PFV = 253

def put(fills, gap, items):
    fills.setdefault(gap, []).extend(items)

def emit_groups(e, groups):
    for g in groups:
        for f in g:
            if isinstance(f, tuple): e.op(f[0], f[1])
            else: e.op(f)

def phase_start_kv(e, st):
    e('s_cmp_ge_u32 s2, 256\ns_cbranch_scc1 L_done')
    for key, p in (('x', pX), ('ckv', pCkv), ('wq', pWq), ('wuk', pWkv), ('wuv', pTmp), ('wo', pWo), ('wg', pWg),
                   ('wu', pWu), ('wd', pWd), ('out', pOut), ('dbg', pDbg), ('ws', pWs)):
        load_ptr(e, p, key)
    e(f'v_and_b32 v{vLane}, 63, v0\nv_lshrrev_b32 v3, 6, v0\nv_lshlrev_b32 v{vL16}, 4, v{vLane}')
    e(f's_and_b32 s{sXcd}, s2, 7\ns_lshr_b32 s{sIdx}, s2, 3')
    e(f'v_readfirstlane_b32 s{sWave}, v3')
    e('s_waitcnt lgkmcnt(0)')
    st.real(62); st('start')
    if 'nopf' not in sys.argv:
        e(f's_getpc_b64 s[4:5]')
        e('L_pcbase:')
        e(f's_lshl_b32 s6, s{sIdx}, 2\ns_add_u32 s6, s6, s{sWave}\ns_and_b32 s6, s6, 15\ns_lshl_b32 s6, s6, 13')
        e(f'v_lshlrev_b32 v3, 7, v{vLane}\nv_add_u32 v3, s6, v3')
        e(f'v_cmp_gt_u32 vcc, L_codeend - L_pcbase, v3\ns_nop 0\ns_and_saveexec_b64 s[6:7], vcc\ns_cbranch_execz L_nopf')
        e.vmem('global_load_dword v63, v3, s[4:5]', None, optional=True)
        e('L_nopf:')
        e('s_mov_b64 exec, -1')
    e(f's_add_u32 s4, s{pWs}, {WS_FLAG + FL_E:#x}\ns_addc_u32 s5, s{pWs+1}, 0')
    e(f's_load_dword s{sTag}, s[4:5], 0')
    srd_from(e, SF, pWs, 0x10000, WS_FLAG)
    sX, sXN = S3, S4
    srd_from(e, sX, pX, SZ['x']); srd_from(e, sXN, pWs, SZ_XN, WS_XN)
    e(f's_lshl_b32 s32, s2, 3\ns_lshl_b32 s33, s{sWave}, 1\ns_add_u32 s32, s32, s33')
    e(f'v_lshrrev_b32 v3, 5, v{vLane}\nv_add_u32 v3, s32, v3')
    e(f'v_and_b32 v4, 31, v{vLane}')
    e('s_movk_i32 s33, 1152\nv_mul_lo_u32 v5, v3, s33\nv_lshl_add_u32 v5, v4, 4, v5')
    D = 16
    e.vmem(f'buffer_load_dwordx4 v[{D}:{D+3}], v5, {srd(sX)}, 0 offen', 'ln')
    e.vmem(f'buffer_load_dwordx4 v[{D+4}:{D+7}], v5, {srd(sX)}, 0 offen offset:512', 'ln')
    e('s_mov_b32 exec_lo, 0xff\ns_mov_b32 exec_hi, 0xff')
    e.vmem(f'buffer_load_dwordx4 v[{D+8}:{D+11}], v5, {srd(sX)}, 0 offen offset:1024', 'ln')
    e('s_mov_b64 exec, -1')
    e('v_lshrrev_b32 v6, 5, v3\nv_mul_u32_u24 v6, 36, v6\nv_lshrrev_b32 v7, 1, v4\nv_add_u32 v6, v6, v7\nv_lshlrev_b32 v6, 10, v6')
    e('v_and_b32 v7, 1, v4\nv_lshlrev_b32 v7, 9, v7\nv_add_u32 v6, v6, v7\nv_and_b32 v7, 31, v3\nv_lshl_add_u32 v60, v7, 4, v6')
    sCt, sTt = 34, 35
    e(f's_and_b32 s36, s{sIdx}, 3\ns_lshl_b32 s37, s{sXcd}, 2\ns_add_u32 s{sCt}, s37, s36\ns_lshr_b32 s{sTt}, s{sIdx}, 2')
    e(f's_cmp_lt_u32 s{sCt}, 16\ns_cselect_b32 s{pWkv}, s{pWkv}, s{pTmp}\ns_cselect_b32 s{pWkv+1}, s{pWkv+1}, s{pTmp+1}')
    sW, sA, sO = S0, S1, S2
    srd_from(e, sW, pWkv, SZ['wuk']); srd_from(e, sA, pCkv, SZ['ckv'])
    e(f's_mov_b32 s37, {WS_VF:#x}\ns_cmp_lt_u32 s{sCt}, 16\ns_cselect_b32 s36, {WS_KF:#x}, s37')
    e(f's_add_u32 s{sO}, s{pWs}, s36\ns_addc_u32 s{sO+1}, s{pWs+1}, 0\ns_mov_b32 s{sO+2}, {SZ_KF:#x}\ns_mov_b32 s{sO+3}, 0x20000')
    WB = 98304
    vAx = [3, 4, 5, 6]; vAc, vW0, vW1, vDAe, vDAo, vDW, vT = 7, 8, 9, 10, 11, 12, 13
    e(f'v_and_b32 v{vT}, 31, v{vLane}\nv_lshlrev_b32 v{vAx[0]}, 7, v{vT}\nv_bfe_u32 v{vT}, v{vLane}, 1, 3\nv_lshrrev_b32 v{vT+1}, 5, v{vLane}')
    e(f'v_xor_b32 v{vT}, v{vT}, v{vT+1}\nv_lshl_add_u32 v{vAx[0]}, v{vT}, 4, v{vAx[0]}')
    e(f's_and_b32 s36, s{sWave}, 1\ns_lshl_b32 s36, s36, 14\nv_add_u32 v{vAx[0]}, s36, v{vAx[0]}')
    for q in range(1, 4): e(f'v_xor_b32 v{vAx[q]}, {32*q}, v{vAx[0]}')
    lane_w_base(e, vW0, vW1, vT, 2, 1024)
    e(f's_lshr_b32 s36, s{sWave}, 1\ns_lshl_b32 s36, s36, 13\ns_add_u32 s36, s36, {WB}')
    e(f'v_add_u32 v{vW0}, s36, v{vW0}\nv_add_u32 v{vW1}, s36, v{vW1}')
    e(f'v_lshrrev_b32 v{vT}, 3, v{vLane}\nv_lshlrev_b32 v{vDAe}, 10, v{vT}\nv_lshrrev_b32 v{vT}, 4, v{vLane}\nv_and_b32 v{vT+1}, 7, v{vLane}')
    e(f'v_xor_b32 v{vT}, v{vT}, v{vT+1}\nv_lshl_add_u32 v{vDAe}, v{vT}, 4, v{vDAe}')
    e(f's_lshl_b32 s36, s{sTt}, 18\ns_lshl_b32 s37, s{sWave}, 16\ns_add_u32 s36, s36, s37\nv_add_u32 v{vDAe}, s36, v{vDAe}')
    e(f'v_xor_b32 v{vDAo}, 64, v{vDAe}')
    sSoA, sSoW, sM0A, sM0W = 48, 44, 38, 39
    for j_ in range(1, 8): e(f's_mov_b32 s{sSoA+j_}, {8192*j_ - 1024*(j_ & 3)}')
    for j_ in range(1, 4): e(f's_mov_b32 s{sSoW+j_}, {j_*(4*8192-1024)}')
    e('s_movk_i32 s33, 8192')
    lane_w_dma(e, vDW, vT, 33)
    e(f's_and_b32 s36, s{sCt}, 15\ns_lshl_b32 s36, s36, 9\ns_and_b32 s37, s{sWave}, 1\ns_lshl_b32 s37, s37, 8\ns_add_u32 s36, s36, s37')
    e(f's_lshr_b32 s37, s{sWave}, 1\ns_lshl_b32 s37, s37, 17\ns_add_u32 s36, s36, s37\nv_add_u32 v{vDW}, s36, v{vDW}')
    e(f's_lshl_b32 s{sM0A}, s{sWave}, 13')
    e(f's_and_b32 s36, s{sWave}, 1\ns_lshl_b32 s36, s36, 13\ns_lshr_b32 s37, s{sWave}, 1\ns_lshl_b32 s37, s37, 12')
    e(f's_add_u32 s{sM0W}, s36, s37\ns_add_u32 s{sM0W}, s{sM0W}, {WB}')
    def dmaA(p, h):
        tg = ('ka', p)
        g = []
        for jj in range(4):
            j_ = 4*h + jj
            ins = (f'buffer_load_dwordx4 v{vDAo if j_ & 1 else vDAe}, {srd(sA)}, {"s%d" % (sSoA + j_) if j_ else "0"} offen' + (f' offset:{1024*jj}' if jj else '') + ' lds', tg)
            g.append(([f's_add_u32 m0, s{sM0A}, {(p % 3)*32768 + 4096*h}', 's_nop 0'] if jj == 0 else []) + [ins])
        if h == 1: g[-1] += [f'v_add_u32 v{vDAe}, 128, v{vDAe}', f'v_add_u32 v{vDAo}, 128, v{vDAo}']
        return g
    def dmaW(t):
        tg = ('kw', t)
        g = [[f's_add_u32 m0, s{sM0W}, {(t % 4)*16384}', 's_nop 0', (f'buffer_load_dwordx4 v{vDW}, {srd(sW)}, 0 offen lds', tg)]]
        for j_ in range(1, 4):
            g.append([(f'buffer_load_dwordx4 v{vDW}, {srd(sW)}, s{sSoW+j_} offen offset:{1024*j_} lds', tg)])
        g[-1] += [f'v_add_u32 v{vDW}, {32*8192}, v{vDW}']
        return g
    emit_groups(e, dmaA(0, 0) + dmaW(0) + dmaA(0, 1) + dmaW(1) + dmaA(1, 0) + dmaA(1, 1) + dmaW(2) + dmaW(3))
    emit_groups(e, dmaA(2, 0))
    st('kv_dma')
    e.wait_vm('ln')
    F = 32
    e('s_mov_b32 s36, 0xffff0000')
    def unpack(i):
        for k in range(4):
            e(f'v_lshlrev_b32 v{F+8*i+2*k}, 16, v{D+4*i+k}\nv_and_b32 v{F+8*i+2*k+1}, s36, v{D+4*i+k}')
    unpack(0); unpack(1)
    for k in range(8): e(f'v_mov_b32 v{F+16+k}, 0')
    e('s_mov_b32 exec_lo, 0xff\ns_mov_b32 exec_hi, 0xff'); unpack(2); e('s_mov_b64 exec, -1')
    def allred(r, t):
        for dpp in ('quad_perm:[1,0,3,2]', 'quad_perm:[2,3,0,1]', 'row_half_mirror', 'row_mirror'):
            e(f's_nop 1\nv_add_f32_dpp v{r}, v{r}, v{r} {dpp} row_mask:0xf bank_mask:0xf')
        e(f'v_mov_b32 v{t}, v{r}\ns_nop 1\nv_permlane16_swap_b32 v{r}, v{t}\ns_nop 1\nv_add_f32 v{r}, v{r}, v{t}')
    e(f'v_add_f32 v28, v{F}, v{F+1}')
    for k in range(2, 24): e(f'v_add_f32 v28, v28, v{F+k}')
    allred(28, 29)
    e('s_mov_b32 s37, 0x3ae38e39\nv_mul_f32 v28, s37, v28')
    e('v_mov_b32 v31, 0')
    for k in range(16): e(f'v_sub_f32 v56, v{F+k}, v28\nv_fmac_f32 v31, v56, v56')
    e('s_mov_b32 exec_lo, 0xff\ns_mov_b32 exec_hi, 0xff')
    for k in range(16, 24): e(f'v_sub_f32 v56, v{F+k}, v28\nv_fmac_f32 v31, v56, v56')
    e('s_mov_b64 exec, -1')
    allred(31, 29)
    e('v_mul_f32 v31, s37, v31')
    e('v_cvt_pk_bf16_f32 v56, v28, v31\nv_lshlrev_b32 v28, 16, v56\nv_and_b32 v31, s36, v56')
    e('v_mov_b32 v57, 0x3727c5ac\nv_add_f32 v31, v57, v31')
    e('v_cvt_pk_bf16_f32 v56, v31, v31\nv_lshlrev_b32 v31, 16, v56\nv_sqrt_f32 v31, v31\ns_nop 0')
    e('v_cvt_pk_bf16_f32 v56, v31, v31\nv_lshlrev_b32 v31, 16, v56\nv_rcp_f32 v57, v31\ns_nop 0')
    for i in range(3):
        if i == 2: e('s_mov_b32 exec_lo, 0xff\ns_mov_b32 exec_hi, 0xff')
        for k in range(4):
            r0, r1 = F+8*i+2*k, F+8*i+2*k+1
            e(f'v_sub_f32 v{r0}, v{r0}, v28\nv_sub_f32 v{r1}, v{r1}, v28')
            e(f'v_cvt_pk_bf16_f32 v58, v{r0}, v{r1}')
            e(f'v_lshlrev_b32 v{r0}, 16, v58\nv_and_b32 v{r1}, s36, v58')
            for r in (r0, r1):
                e(f'v_mul_f32 v59, v{r}, v57\nv_fma_f32 v56, -v59, v31, v{r}\nv_fma_f32 v{r}, v56, v57, v59')
            e(f'v_cvt_pk_bf16_f32 v{D+4*i+k}, v{r0}, v{r1}')
        e(f's_mov_b32 s37, {i*16*1024}')
        e.vmem(f'buffer_store_dwordx4 v[{D+4*i}:{D+4*i+3}], v60, {srd(sXN)}, s37 offen {ST}', 'xn')
    e('s_mov_b64 exec, -1')
    e('s_waitcnt lgkmcnt(0)')
    e(f's_mul_i32 s{sTag}, s{sTag}, 0x9E3779B1\ns_add_u32 s{sTag}, s{sTag}, 0x7F4A7C15')
    e(f's_mov_b32 s{sSlow}, 0')
    srd_from(e, S3, pDbg, 256)
    e(f's_cmp_lg_u32 s{sWave}, 0\ns_cbranch_scc1 L_noat')
    e('v_mov_b32 v61, 1\nv_mov_b32 v62, 0\ns_mov_b64 exec, 1')
    e.vmem(f'buffer_atomic_add v61, v62, {srd(S3)}, 0 offen sc0 sc1', None, optional=True)
    e('s_mov_b64 exec, -1')
    e.label('L_noat')
    st('ln')
    XA = [R('v', 176 + 4*i, 4) for i in range(4)]; XW = [R('v', 192 + 4*i, 4) for i in range(4)]
    YA = [R('v', 208 + 4*i, 4) for i in range(4)]; YW = [R('v', 224 + 4*i, 4) for i in range(4)]
    acc = [[R('a', 16 * (4*j + i), 16) for j in range(4)] for i in range(4)]
    def reads(t, ks, FA, FW):
        so = (t % 4) * 16384
        r = []
        def wrd(j):
            base = vW0 if (j & 1) == 0 else vW1
            for i2 in range(2):
                r.append(f'ds_read_b64_tr_b16 {FW[j][2*i2:2*i2+2]}, v{base} offset:{so + (4*ks + i2)*1024 + (j >> 1)*512}')
        r.append(f'v_add_u32 v{vAc}, {((t // 2) % 3)*32768}, v{vAx[2*(t & 1) + ks]}')
        wrd(0)
        for i in range(4): r.append(f'ds_read_b128 {FA[i]}, v{vAc} offset:{i*4096}')
        wrd(1); wrd(2); wrd(3)
        return r
    def mfs(FA, FW, isK, first):
        return [((acc[i][j], FW[j], FA[i], '0' if first else None) if isK else (acc[i][j], FA[i], FW[j], '0' if first else None))
                for j in range(4) for i in range(4)]
    NST = 16
    e.wait_vm(('ka', 0), barrier=True)
    assert e.vm_count(('kw', 0)) is None
    st('kv_first')
    saved = (list(e.vm), list(e.lg))
    def place(fills, rd):
        put(fills, 0, rd[:3])
        for k, x in enumerate(rd[3:]): put(fills, 1 + k // 2, [x])
    def loop(isK):
        for x in reads(0, 0, XA, XW): e.op(x)
        for t in range(NST):
            fills = {}
            place(fills, reads(t, 1, YA, YW))
            run_sub(e, mfs(XA, XW, isK, t == 0), fills)
            fills = {}
            if t + 1 < NST:
                need = [('kw', t + 1)] + ([('ka', (t + 1) // 2)] if (t + 1) % 2 == 0 else [])
                cnts = [(e.vm_count(x), x) for x in need if e.vm_count(x) is not None]
                youngest = min(cnts)[1] if cnts else ('kw', t + 1)
                e.wait_vm(youngest, also_lgkm0=True, barrier=True)
                place(fills, reads(t + 1, 0, XA, XW))
            dm = []
            q, h = ((t + 5) // 2, 0) if t % 2 == 1 else ((t + 4) // 2, 1)
            if q < 8: dm += dmaA(q, h)
            if t + 4 < NST: dm += dmaW(t + 4)
            for k, g in enumerate(dm): put(fills, 6 + k, g)
            if 'nopf2' not in sys.argv and 2 <= t < 14:
                k = t - 2
                put(fills, 14, pf_ops(pWg if k % 2 == 0 else pWu, 'wg', k // 2, 6))
                if t in (5, 9, 13): put(fills, 15, pf_ops(pWq, 'wq', (t - 5) // 4, 3))
            if t == 3:
                assert 'xn' not in e.vm
                hook = f'L_ln{int(isK)}'
                put(fills, 2, [f's_cmp_lg_u32 s{sWave}, 0', f's_cbranch_scc1 {hook}',
                               f'v_mov_b32 v14, s{sTag}', f'v_mov_b32 v15, 0', f's_lshl_b32 s4, s2, 2', 'v_readfirstlane_b32 s5, v61', 's_mov_b64 exec, 1',
                               (f'buffer_store_dword v14, v15, {srd(SF)}, s4 offen sc1', 'OPT'),
                               f's_cmp_lg_u32 s5, 255', f's_cbranch_scc1 {hook}x', f's_mov_b32 s4, {FL_E}',
                               (f'buffer_store_dword v14, v15, {srd(SF)}, s4 offen sc1', 'OPT'), f'{hook}x:', 's_mov_b64 exec, -1', f'{hook}:'])
            if t == NST - 1:
                put(fills, 0, [(f'buffer_load_dwordx4 v[16:19], v{vL16}, {srd(SF)}, 0 offen sc1', 'poll')])
            run_sub(e, mfs(YA, YW, isK, False), fills)
    e(f's_cmp_lt_u32 s{sCt}, 16\ns_cbranch_scc0 L_kvV')
    loop(True)
    e('s_branch L_kvE')
    e.label('L_kvV')
    e.vm, e.lg = list(saved[0]), list(saved[1])
    loop(False)
    e.label('L_kvE')
    st('kv_loop')
    return dict(acc=acc, sCt=sCt, sTt=sTt, sO=sO)

def publish_ops(soff_expr_instrs, lab, vt=14):
    return [f's_cmp_lg_u32 s{sWave}, 0', f's_cbranch_scc1 {lab}', f'v_mov_b32 v{vt}, s{sTag}', f'v_mov_b32 v{vt+1}, 0'] + soff_expr_instrs + \
           ['s_mov_b64 exec, 1', (f'buffer_store_dword v{vt}, v{vt+1}, {srd(SF)}, s4 offen sc1', 'OPT'), 's_mov_b64 exec, -1', f'{lab}:']

def phase_gu(e, st, kv):
    NST = 18; GOFF = 16384; UOFF = 24576; MOFF = 32768; MUO = 1152; SS = 35072; PITCH = 9216
    sCtKV, sTt, sOKV = kv['sCt'], kv['sTt'], kv['sO']
    accKV = kv['acc']
    e.lgkm0()
    e('s_barrier')
    flag_check(e, 16, vL16, 0, 64, ndw=4)
    st('gu_flags')
    sG, sU, sA, sM, sO = S0, S1, S3, S4, 48
    sCj, sFb, sMb = 36, 37, 38
    e(f's_and_b32 s4, s{sIdx}, 3\ns_lshl_b32 s5, s{sXcd}, 2\ns_add_u32 s{sCj}, s5, s4')
    e(f's_mul_i32 s4, s{sCj}, 144\ns_and_b32 s5, s{sCj}, 1\ns_lshl_b32 s6, s5, 4\ns_add_u32 s{sFb}, s4, s6')
    e(f's_xor_b32 s5, s5, 1\ns_lshl_b32 s5, s5, 7\ns_add_u32 s{sMb}, s4, s5')
    srd_from(e, sG, pWg, SZ['wg']); srd_from(e, sU, pWu, SZ['wu'])
    srd_from(e, sA, pWs, SZ_XN, WS_XN); srd_from(e, sO, pWs, SZ_ACT2, WS_ACT2)
    e(f's_bitcmp1_b32 s{sWave}, 0\ns_cselect_b32 s4, s{pWu}, s{pWg}\ns_cselect_b32 s5, s{pWu+1}, s{pWg+1}')
    srd_from(e, sM, 4, SZ['wg'])
    vA, vW0, vW1, vM, vAb, vW0b, vW1b, vMb, vDA, vDW, vDM, vT = 3, 4, 5, 6, 7, 8, 9, 10, 11, 12, 13, 16
    vKVo = 18
    e(f's_lshl_b32 s4, s{sWave}, 12\nv_add_u32 v{vAb}, s4, v{vL16}')
    lane_w_base(e, vW0b, vW1b, vT, 2, 1024)
    e(f'v_lshrrev_b32 v{vT}, 5, v{vLane}\nv_lshlrev_b32 v{vMb}, 8, v{vT}')
    e(f'v_bfe_u32 v{vT}, v{vLane}, 2, 2\nv_lshl_add_u32 v{vMb}, v{vT}, 5, v{vMb}')
    e(f'v_bfe_u32 v{vT}, v{vLane}, 4, 1\nv_mul_u32_u24 v{vT}, {MUO}, v{vT}\nv_add_u32 v{vMb}, v{vMb}, v{vT}')
    e(f'v_and_b32 v{vT}, 3, v{vLane}\nv_lshl_add_u32 v{vMb}, v{vT}, 3, v{vMb}')
    e(f's_lshl_b32 s4, s{sTt}, 3\ns_lshl_b32 s5, s{sWave}, 1\ns_add_u32 s4, s4, s5\ns_mul_i32 s4, s4, {36*1024}\nv_add_u32 v{vDA}, s4, v{vL16}')
    sSoffA, sSoffW, sM0A, sM0G, sM0U, sM0M = 39, 40, 41, 42, 43, 44
    e(f's_mov_b32 s{sSoffA}, {36*1024 - 2048}\ns_movk_i32 s6, {PITCH}')
    lane_w_dma(e, vDW, vT, 6)
    e(f's_lshl_b32 s4, s{sFb}, 1\ns_mul_i32 s5, s{sWave}, {8*PITCH}\ns_add_u32 s4, s4, s5\nv_add_u32 v{vDW}, s4, v{vDW}')
    e(f's_mov_b32 s{sSoffW}, {4*PITCH - 1024}')
    e(f'v_lshrrev_b32 v{vT}, 1, v{vLane}\nv_mul_lo_u32 v{vDM}, v{vT}, s6\nv_and_b32 v{vT}, 1, v{vLane}\nv_lshl_add_u32 v{vDM}, v{vT}, 4, v{vDM}')
    e(f's_lshl_b32 s4, s{sMb}, 1\nv_add_u32 v{vDM}, s4, v{vDM}')
    e(f's_lshl_b32 s{sM0A}, s{sWave}, 12')
    e(f's_lshl_b32 s4, s{sWave}, 11\ns_add_u32 s{sM0G}, s4, {GOFF}\ns_add_u32 s{sM0U}, s4, {UOFF}')
    e(f's_and_b32 s4, s{sWave}, 1\ns_mul_i32 s4, s4, {MUO}\ns_add_u32 s{sM0M}, s4, {MOFF}')
    e(f's_and_b32 s4, s{sCtKV}, 15\ns_lshl_b32 s4, s4, 1\ns_lshr_b32 s5, s{sWave}, 1\ns_add_u32 s4, s4, s5\ns_lshl_b32 s4, s4, 6')
    e(f's_lshl_b32 s5, s{sTt}, 3\ns_and_b32 s6, s{sWave}, 1\ns_lshl_b32 s6, s6, 2\ns_add_u32 s5, s5, s6\ns_add_u32 s4, s4, s5\ns_lshl_b32 s4, s4, 13')
    if 'explin' in sys.argv:
        e(f's_lshl_b32 s4, s2, 2\ns_add_u32 s4, s4, s{sWave}\ns_lshl_b32 s4, s4, 15\ns_and_b32 s4, s4, 0xffffff')
    if 'exphash' in sys.argv:
        e(f's_lshl_b32 s4, s2, 2\ns_add_u32 s4, s4, s{sWave}\ns_mul_i32 s4, s4, 33024\ns_and_b32 s4, s4, 0xffff00')
    e(f'v_add_u32 v{vKVo}, s4, v{vL16}')
    sKVo = 52
    e(f's_cmp_lt_u32 s{sCtKV}, 16')
    for j in range(4):
        for half in range(2):
            e(f's_mov_b32 s4, {half*4096 + j*1024}\ns_cselect_b32 s{sKVo + 2*j + half}, {(2*j+half)*1024}, s4' if True else '')
    def dma(t):
        slot = (t % 4) * SS; tg = ('gu', t)
        g = []
        g.append([f's_add_u32 m0, s{sM0A}, {slot}', 's_nop 0', (f'buffer_load_dwordx4 v{vDA}, {srd(sA)}, 0 offen sc1 lds', tg)])
        g.append([(f'buffer_load_dwordx4 v{vDA}, {srd(sA)}, 0 offen offset:1024 sc1 lds', tg)])
        g.append([(f'buffer_load_dwordx4 v{vDA}, {srd(sA)}, s{sSoffA} offen offset:2048 sc1 lds', tg)])
        g.append([(f'buffer_load_dwordx4 v{vDA}, {srd(sA)}, s{sSoffA} offen offset:3072 sc1 lds', tg),
                  f's_add_u32 m0, s{sM0G}, {slot}', f'v_add_u32 v{vDA}, 2048, v{vDA}'])
        g.append([(f'buffer_load_dwordx4 v{vDW}, {srd(sG)}, 0 offen lds', tg)])
        g.append([(f'buffer_load_dwordx4 v{vDW}, {srd(sG)}, s{sSoffW} offen offset:1024 lds', tg), f's_add_u32 m0, s{sM0U}, {slot}', 's_nop 0'])
        g.append([(f'buffer_load_dwordx4 v{vDW}, {srd(sU)}, 0 offen lds', tg)])
        g.append([(f'buffer_load_dwordx4 v{vDW}, {srd(sU)}, s{sSoffW} offen offset:1024 lds', tg),
                  f's_add_u32 m0, s{sM0M}, {slot}', f'v_add_u32 v{vDW}, {32*PITCH}, v{vDW}'])
        g.append([(f'buffer_load_dwordx4 v{vDM}, {srd(sM)}, 0 offen lds', tg), f'v_add_u32 v{vDM}, {32*PITCH}, v{vDM}'])
        return g
    NIMM = 4
    KP = 140
    groups = dma(0) + dma(1) + dma(2) + dma(3)
    e('s_nop 7')
    n = 0; gi = 0
    kvst = []
    for i in range(4):
        for j in range(4):
            k1 = (n + 1) * len(groups) // 16
            emit_groups(e, groups[gi:k1]); gi = k1
            t_ = 236
            dst = (52 + 8 * n) if n < NIMM else (KP + 8 * (n - NIMM))
            for r in range(16): e(f'v_accvgpr_read_b32 v{t_+r}, {accKV[i][j][r]}')
            for r in range(8): e(f'v_cvt_pk_bf16_f32 v{dst+r}, v{t_+2*r}, v{t_+2*r+1}')
            for half in range(2):
                grp = [f's_add_u32 s4, s{sKVo + 2*j + half}, {i*8192}',
                       (f'buffer_store_dwordx4 v[{dst+4*half}:{dst+4*half+3}], v{vKVo}, {srd(sOKV)}, s4 offen {ST}', 'kvst')]
                if n < NIMM: emit_groups(e, [grp])
                else: kvst.append(grp)
            n += 1
    kvst = Spread(kvst)
    st('gu_conv')
    XA = [R('v', 52 + 4*i, 4) for i in range(2)]; XW = [R('v', 60 + 4*i, 4) for i in range(9)]
    YA = [R('v', 96 + 4*i, 4) for i in range(2)]; YW = [R('v', 104 + 4*i, 4) for i in range(9)]
    acc = {}
    n = 0
    for j in range(9):
        for i in range(2):
            acc[j, i] = R('a', 16 * n, 16) if n < 16 else R('v', 20 + 16 * (n - 16), 16)
            n += 1
    def wreads(j, ks, FW):
        if j < 8:
            base = vW0 if (j & 1) == 0 else vW1
            off = (GOFF if j < 4 else UOFF) + ((j & 3) >> 1) * 512
            return [f'ds_read_b64_tr_b16 {FW[j][2*i2:2*i2+2]}, v{base} offset:{off + (4*ks + i2)*1024}' for i2 in range(2)]
        return [f'ds_read_b64_tr_b16 {FW[j][2*i2:2*i2+2]}, v{vM} offset:{MOFF + (4*ks + i2)*128}' for i2 in range(2)]
    def reads(ks, FA, FW):
        r = wreads(0, ks, FW) + [f'ds_read_b128 {FA[i]}, v{vA} offset:{i*2048 + ks*1024}' for i in range(2)]
        for j in range(1, 9): r += wreads(j, ks, FW)
        return r
    def setaddr(t):
        so = (t % 4) * SS
        return [f'v_add_u32 v{c}, {so}, v{b}' for c, b in ((vA, vAb), (vW0, vW0b), (vW1, vW1b), (vM, vMb))]
    for x in setaddr(0): e(x)
    e.wait_vm(('gu', 0), barrier=True)
    st('gu_first')
    for x in reads(0, XA, XW): e.op(x)
    def mf(FA, FW, first): return [(acc[j, i], FW[j], FA[i], '0' if first else None) for j in range(9) for i in range(2)]
    for t in range(NST):
        fills = {}
        for k, x in enumerate(reads(1, YA, YW)): put(fills, k // 2, [x])
        if t + 1 < NST: put(fills, 11, setaddr(t + 1))
        for k, g in enumerate(kvst.take(2)): put(fills, 12 + 3*k, g)
        run_sub(e, mf(XA, XW, t == 0), fills)
        fills = {}
        if t + 1 < NST:
            e.wait_vm(('gu', t + 1), also_lgkm0=True, barrier=True)
            for k, x in enumerate(reads(0, XA, XW)): put(fills, k // 2, [x])
        if t + 4 < NST:
            for k, g in enumerate(dma(t + 4)): put(fills, 9 + k, g)
        if t == 16:
            assert 'kvst' not in e.vm and kvst.left() == 0
            put(fills, 2, publish_ops([f's_lshl_b32 s4, s{sCtKV}, 3', f's_add_u32 s4, s4, s{sTt}', 's_lshl_b32 s4, s4, 2', f's_add_u32 s4, s4, {FL_KV}'], 'L_pubkv'))
        run_sub(e, mf(YA, YW, False), fills)
    st('gu_loop')
    return dict(acc=acc, sCj=sCj, sFb=sFb, sMb=sMb, sTt=sTt, sO=sO)

def phase_attn(e, st, gu):
    accGU, sFb, sMb, sTtGU, sCj, sOact = gu['acc'], gu['sFb'], gu['sMb'], gu['sTt'], gu['sCj'], gu['sO']
    sXN, sWQ, sKF, sVF, sO = S0, S1, S2, S3, sOact
    sH, sP, sNS, sNL = 39, 40, 41, 42
    sCnt, sSoffA, sSoffW, sM0A, sM0W = 43, 44, 45, 46, 47
    sKd, sVd, sKoff, sVoff, sKmax, sWoff, sM0K, sM0V, sJt = 52, 53, 54, 55, 56, 57, 58, 59, 60
    sT0, sT1, sT2 = 61, 62, 63
    sK1, sK2 = 28, 29
    sHo = 30
    vA, vW0, vW1, vAb, vW0b, vW1b, vDA, vDW, vDKV, vK, vV = 3, 4, 5, 6, 7, 8, 9, 10, 11, 12, 13
    vT = 228
    e.lgkm0()
    e('s_barrier')
    e(f's_and_b32 s4, s{sIdx}, 3\ns_lshl_b32 s5, s{sXcd}, 2\ns_add_u32 s{sH}, s5, s4\ns_lshr_b32 s{sP}, s{sIdx}, 2')
    e(f's_lshl_b32 s{sNS}, s{sP}, 1\ns_add_u32 s{sNS}, s{sNS}, 2\ns_lshl_b32 s4, s{sP}, 1\ns_sub_u32 s{sNL}, 32, s4')
    srd_from(e, sWQ, pWq, SZ['wq']); srd_from(e, sXN, pWs, SZ_XN, WS_XN)
    srd_from(e, sKF, pWs, SZ_KF, WS_KF); srd_from(e, sVF, pWs, SZ_VF, WS_VF)
    e(f's_lshl_b32 s{sWoff}, s{sWave}, 12')
    e(f'v_add_u32 v{vDKV}, s{sWoff}, v{vL16}')
    e(f's_lshl_b32 s{sKoff}, s{sH}, 19')
    e(f's_sub_u32 s4, s{sNL}, 1\ns_lshl_b32 s4, s4, 14\ns_add_u32 s{sKmax}, s{sKoff}, s4\ns_mov_b32 s{sVoff}, s{sKoff}')
    QB = 65536; QSS = 24576; ACTB = 16384
    e(f's_add_u32 s4, s{sWoff}, {QB}\nv_add_u32 v{vAb}, s4, v{vL16}')
    lane_w_base(e, vW0b, vW1b, vT, 2, 1024)
    e(f'v_add_u32 v{vW0b}, {QB+ACTB}, v{vW0b}\nv_add_u32 v{vW1b}, {QB+ACTB}, v{vW1b}')
    e(f's_lshl_b32 s4, s{sP}, 2\ns_add_u32 s4, s4, s{sWave}\ns_mul_i32 s4, s4, {36*1024}\nv_add_u32 v{vDA}, s4, v{vL16}')
    e(f's_lshl_b32 s4, s{sP}, 3\ns_sub_u32 s4, 60, s4\ns_mul_i32 s4, s4, {36*1024}\ns_sub_u32 s{sSoffA}, s4, 2048')
    e('s_movk_i32 s6, 8192')
    lane_w_dma(e, vDW, vT, 6)
    e(f's_lshl_b32 s4, s{sH}, 8\ns_lshl_b32 s5, s{sWave}, 16\ns_add_u32 s4, s4, s5\nv_add_u32 v{vDW}, s4, v{vDW}')
    e(f's_mov_b32 s{sSoffW}, {4*8192 - 1024}')
    e(f's_add_u32 s{sM0A}, s{sWoff}, {QB}')
    e(f's_lshl_b32 s4, s{sWave}, 11\ns_add_u32 s{sM0W}, s4, {QB+ACTB}')
    def qdma(t):
        slot = (t % 4) * QSS; tg = ('q', t)
        g = []
        g.append([f's_add_u32 m0, s{sM0A}, {slot}', 's_nop 0', (f'buffer_load_dwordx4 v{vDA}, {srd(sXN)}, 0 offen sc1 lds', tg)])
        g.append([(f'buffer_load_dwordx4 v{vDA}, {srd(sXN)}, 0 offen offset:1024 sc1 lds', tg)])
        g.append([(f'buffer_load_dwordx4 v{vDA}, {srd(sXN)}, s{sSoffA} offen offset:2048 sc1 lds', tg)])
        g.append([(f'buffer_load_dwordx4 v{vDA}, {srd(sXN)}, s{sSoffA} offen offset:3072 sc1 lds', tg),
                  f's_add_u32 m0, s{sM0W}, {slot}', f'v_add_u32 v{vDA}, 2048, v{vDA}'])
        g.append([(f'buffer_load_dwordx4 v{vDW}, {srd(sWQ)}, 0 offen lds', tg)])
        g.append([(f'buffer_load_dwordx4 v{vDW}, {srd(sWQ)}, s{sSoffW} offen offset:1024 lds', tg), f'v_add_u32 v{vDW}, {32*8192}, v{vDW}'])
        return g
    GP = 56
    conv = []
    T0 = 184
    for i in range(2):
        m = accGU[8, i]
        for r in range(8): conv.append(f'v_cvt_pk_bf16_f32 {m[r]}, {m[2*r]}, {m[2*r+1]}')
    k = 0
    for j in range(4):
        for i in range(2):
            n = 2*j + i
            for which, src in ((0, accGU[j, i]), (1, accGU[4 + j, i])):
                t_ = T0 + 16 * (k % 2); k += 1
                for r in range(16): conv.append(f'v_accvgpr_read_b32 v{t_+r}, {src[r]}')
                for r in range(8): conv.append(f'v_cvt_pk_bf16_f32 v{GP + 16*n + 8*which + r}, v{t_+2*r}, v{t_+2*r+1}')
    groups = qdma(0) + qdma(1) + qdma(2)
    per = (len(conv) + len(groups) - 1) // len(groups)
    e('s_nop 7')
    for k, g in enumerate(groups):
        emit_groups(e, [g])
        for x in conv[k*per:(k+1)*per]: e(x)
    st('q_conv')
    e(f's_mov_b32 s{sK1}, {f2u(GK1):#x}\ns_mov_b32 s{sK2}, {f2u(GK2):#x}\ns_mov_b32 s31, 0xffff0000')
    vK1 = 230
    e(f'v_mov_b32 v{vK1}, s{sK1}')
    e(f's_lshl_b32 s4, s{sTtGU}, 3\ns_lshl_b32 s5, s{sWave}, 1\ns_add_u32 s4, s4, s5\ns_mul_i32 s4, s4, {544*1024}\ns_add_u32 s{sHo}, s4, {256*1024}')
    e(f's_lshl_b32 s{sFb}, s{sFb}, 6\ns_add_u32 s{sFb}, s{sFb}, s{sHo}\ns_lshl_b32 s{sMb}, s{sMb}, 6\ns_add_u32 s{sMb}, s{sMb}, s{sHo}')
    Gt, Ut, Et, Pt = 184, 192, 200, 208
    frs = []
    for i in range(2):
        for j in range(4):
            n = 2*j + i
            for half in range(2):
                frs.append((GP + 16*n + 4*half, GP + 16*n + 8 + 4*half, sFb, i*544*1024 + j*2048 + half*1024))
        m = accGU[8, i].base
        frs.append((m, m + 4, sMb, i*544*1024))
    def gelu_frag(k):
        gp, up, sb, off = frs[k]
        o = []
        for r in range(4):
            o += [f'v_lshlrev_b32 v{Gt+2*r}, 16, v{gp+r}', f'v_and_b32 v{Gt+2*r+1}, s31, v{gp+r}']
        for r in range(8): o.append(f'v_mul_f32 v{Et+r}, v{Gt+r}, v{Gt+r}')
        for r in range(4):
            o += [f'v_lshlrev_b32 v{Ut+2*r}, 16, v{up+r}', f'v_and_b32 v{Ut+2*r+1}, s31, v{up+r}']
        for r in range(8): o.append(f'v_fma_f32 v{Et+r}, v{Et+r}, s{sK2}, v{vK1}')
        for r in range(8): o.append(f'v_mul_f32 v{Et+r}, v{Gt+r}, v{Et+r}')
        for r in range(8): o += [f'v_exp_f32 v{Et+r}, v{Et+r}', f'v_mul_f32 v{Gt+r}, v{Gt+r}, v{Ut+r}']
        for r in range(8): o.append(f'v_add_f32 v{Et+r}, 1.0, v{Et+r}')
        for r in range(8): o.append(f'v_rcp_f32 v{Et+r}, v{Et+r}')
        for r in range(8): o.append(f'v_mul_f32 v{Gt+r}, v{Gt+r}, v{Et+r}')
        for r in range(4): o.append(f'v_cvt_pk_bf16_f32 v{gp+r}, v{Gt+2*r}, v{Gt+2*r+1}')
        return o
    def h_store(k):
        gp, up, sb, off = frs[k]
        return [f's_add_u32 s4, s{sb}, {off}', (f'buffer_store_dwordx4 v[{gp}:{gp+3}], v{vL16}, {srd(sO)}, s4 offen {ST}', 'hst')]
    QA = [[R('a', 64*x + 16*j, 16) for j in range(4)] for x in range(2)]
    XA = [R('a', 128 + 4*i, 4) for i in range(2)]; XW = [R('a', 136 + 4*i, 4) for i in range(4)]
    YA = [R('a', 152 + 4*i, 4) for i in range(2)]; YW = [R('a', 160 + 4*i, 4) for i in range(4)]
    def q_reads(ks, FA, FW):
        r = []
        def wrd(j):
            base = vW0 if (j & 1) == 0 else vW1
            for i2 in range(2):
                r.append(f'ds_read_b64_tr_b16 {FW[j][2*i2:2*i2+2]}, v{base} offset:{(4*ks + i2)*1024 + (j >> 1)*512}')
        wrd(0)
        for i in range(2): r.append(f'ds_read_b128 {FA[i]}, v{vA} offset:{i*2048 + ks*1024}')
        for j in range(1, 4): wrd(j)
        return r
    def q_mf(FA, FW, first):
        return [(QA[x][j], FW[j], FA[1 - x], '0' if first else None) for j in range(4) for x in range(2)]
    def qaddr(t):
        so = (t % 4) * QSS
        return [f'v_add_u32 v{c}, {so}, v{b}' for c, b in ((vA, vAb), (vW0, vW0b), (vW1, vW1b))]
    def dma_tile(srd_, soff, tag):
        return [(f'buffer_load_dwordx4 v{vDKV}, {srd(srd_)}, s{soff} offen offset:{1024*i} sc1 lds', tag) for i in range(4)]
    def adv(soff):
        return [f's_add_u32 s{soff}, s{soff}, 16384', f's_min_u32 s{soff}, s{soff}, s{sKmax}']
    def tile_groups(srd_, soff, ldsoff, tag):
        d = dma_tile(srd_, soff, tag)
        return [[f's_add_u32 m0, s{sWoff}, {ldsoff}', 's_nop 0', d[0]], [d[1]], [d[2]], [d[3]] + adv(soff)]
    for x in qaddr(0): e(x)
    e.wait_vm(('q', 0), barrier=True)
    st('q_first')
    for x in q_reads(0, XA, XW): e.op(x)
    NST = 18
    vPoll, vPo = 232, 233
    for t in range(NST):
        gl = gelu_frag(t) + h_store(t)
        gsp = [gl[k * len(gl) // 16:(k + 1) * len(gl) // 16] for k in range(16)]
        fills = {}
        for k, x in enumerate(q_reads(1, YA, YW)): put(fills, k // 2, [x])
        for k in range(8): put(fills, k, gsp[k])
        if t == 10:
            put(fills, 7, [f'v_and_b32 v{vPo}, 7, v{vLane}', f'v_lshlrev_b32 v{vPo}, 2, v{vPo}', f'v_lshrrev_b32 v{vPoll}, 3, v{vLane}',
                           f'v_and_b32 v{vPoll}, 1, v{vPoll}', f'v_lshlrev_b32 v{vPoll}, 9, v{vPoll}', f'v_add_u32 v{vPo}, v{vPo}, v{vPoll}',
                           f's_lshr_b32 s5, s{sH}, 1', 's_lshl_b32 s5, s5, 5', f's_add_u32 s{sT2}, s5, {FL_KV}',
                           (f'buffer_load_dword v{vPoll}, v{vPo}, {srd(SF)}, s{sT2} offen sc1', 'poll')])
        run_sub(e, q_mf(XA, XW, t == 0), fills)
        fills = {}
        if t + 1 < NST:
            e.wait_vm(('q', t + 1), also_lgkm0=True, barrier=True)
            for x in qaddr(t + 1): e(x)
            for k, x in enumerate(q_reads(0, XA, XW)): put(fills, k // 2, [x])
        if t == 13:
            flag_check(e, vPoll, vPo, f's{sT2}', 16)
        dm = []
        if t + 3 < NST: dm += qdma(t + 3)
        for k, g in enumerate(dm): put(fills, min(1 + k * 7 // max(len(dm), 1), 7), g)
        for k in range(8): put(fills, k, gsp[8 + k])
        run_sub(e, q_mf(YA, YW, False), fills)
    st('q_loop')
    return attn_main(e, st, locals())

def attn_main(e, st, L):
    g = lambda k: L[k]
    sKF, sVF, sO = g('sKF'), g('sVF'), g('sO')
    sH, sP, sNS, sNL, sCnt = g('sH'), g('sP'), g('sNS'), g('sNL'), g('sCnt')
    sKd, sVd, sKoff, sVoff, sKmax, sWoff, sM0K, sM0V, sJt = [g(k) for k in ('sKd', 'sVd', 'sKoff', 'sVoff', 'sKmax', 'sWoff', 'sM0K', 'sM0V', 'sJt')]
    sT0, sT1, sT2 = g('sT0'), g('sT1'), g('sT2')
    vDKV, vK, vV = g('vDKV'), g('vK'), g('vV')
    QA, tile_groups, dma_tile, adv = g('QA'), g('tile_groups'), g('dma_tile'), g('adv')
    sCj, sTtGU = g('sCj'), g('sTtGU')
    vDelta = [17, 18]; vl = [19, 20]; vDl = 21; vNI = 22; vT = 14
    Q = [[R('v', 24 + 32*x + 4*s, 4) for s in range(8)] for x in range(2)]
    S = [[R('v', 88 + 32*x + 16*kb, 16) for kb in range(2)] for x in range(2)]
    P = [[R('v', 152 + 16*x + 4*u, 4) for u in range(4)] for x in range(2)]
    NM = [R('v', 184 + 16*x, 16) for x in range(2)]
    O = [[R('a', 64*x + 16*t, 16) for t in range(4)] for x in range(2)]
    F = [R('a', 128 + 4*i, 4) for i in range(16)]
    TMP = 216
    L_, S_ = 0, 1
    e.lgkm0()
    e('s_barrier')
    groups = tile_groups(sKF, sKoff, 0, ('K', 0)) + tile_groups(sKF, sKoff, 16384, ('K', 1)) + tile_groups(sVF, sVoff, 65536, ('V', 0)) + \
             tile_groups(sKF, sKoff, 32768, ('K', 2)) + tile_groups(sKF, sKoff, 49152, ('K', 3)) + tile_groups(sVF, sVoff, 65536 + 16384, ('V', 1))
    e(f's_mov_b32 s{sT0}, {f2u(QSCALE):#x}')
    e('s_nop 7')
    order = [(x, j) for x in range(2) for j in range(4)]
    gi = 0
    for oi, (x, j) in enumerate(order):
        emit_groups(e, groups[3*oi:3*oi+3])
        t_ = TMP + 16 * (j % 2)
        for r in range(16): e(f'v_accvgpr_read_b32 v{t_+r}, {QA[x][j][r]}')
        for r in range(16): e(f'v_mul_f32 v{t_+r}, s{sT0}, v{t_+r}')
        for half in range(2):
            for r in range(4):
                e(f'v_cvt_pk_bf16_f32 {Q[x][2*j+half][r]}, v{t_+8*half+2*r}, v{t_+8*half+2*r+1}')
    e.wait_vm(('K', 0), barrier=True)
    for f in range(16): e.ds(f'ds_read_b128 {F[f]}, v{vL16} offset:{f*1024}')
    e(f'v_and_b32 v{vT}, 31, v{vLane}\nv_lshrrev_b32 v{vT+1}, 5, v{vLane}\nv_lshlrev_b32 v{vT+1}, 2, v{vT+1}\nv_sub_u32 v{vT}, v{vT}, v{vT+1}')
    e(f's_lshl_b32 s{sT0}, s{sWave}, 5')
    e(f's_sub_u32 s{sT1}, 15, s{sP}\ns_lshl_b32 s{sT1}, s{sT1}, 7\ns_add_u32 s{sT1}, s{sT1}, s{sT0}')
    e(f'v_add_u32 v{vDelta[L_]}, s{sT1}, v{vT}')
    e(f's_lshl_b32 s{sT1}, s{sP}, 7\ns_add_u32 s{sT1}, s{sT1}, s{sT0}')
    e(f'v_add_u32 v{vDelta[S_]}, s{sT1}, v{vT}')
    e(f'v_mov_b32 v{vNI}, {NEG_INF:#x}')
    def mask_burst(x, kb, Sx=None):
        Sx = Sx if Sx is not None else S[x][kb]
        o = [f's_add_u32 s{sT2}, s{sJt}, {32*kb}', f'v_subrev_u32 v{vDl}, s{sT2}, v{vDelta[x]}']
        def cmp(r):
            cr = (r & 3) + 8 * (r >> 2)
            return f'v_cmp_ge_i32 s[{MK[r%4]}:{MK[r%4]+1}], v{vDl}, {cr}'
        o += [cmp(0), cmp(1), cmp(2)]
        for r in range(16):
            o.append(f'v_cndmask_b32 {Sx[r]}, v{vNI}, {Sx[r]}, s[{MK[r%4]}:{MK[r%4]+1}]')
            if r + 3 < 16: o.append(cmp(r + 3))
        return o
    zer = [f'v_accvgpr_write_b32 a{i}, 0' for i in range(128)]
    k = 0
    for x in range(2):
        for kb in range(2):
            for s_ in range(8):
                e.mf(S[x][kb], F[kb*8+s_], Q[x][s_], '0' if s_ == 0 else None)
                for z in zer[4*k:4*k+4]: e(z)
                k += 1
    e(f's_mov_b32 s{sJt}, 0')
    e('s_nop 7\ns_nop 7')
    for x in range(2):
        for kb in range(2):
            for i in mask_burst(x, kb): e(i)
        m = TMP
        allr = [S[x][kb][r] for kb in range(2) for r in range(16)]
        e(f'v_max3_f32 v{m}, {allr[0]}, {allr[1]}, {allr[2]}')
        for k in range(3, 31, 2): e(f'v_max3_f32 v{m}, v{m}, {allr[k]}, {allr[k+1]}')
        e(f'v_max_f32 v{m}, v{m}, {allr[31]}')
        e(f'v_mov_b32 v{m+1}, v{m}\ns_nop 1\nv_permlane32_swap_b32 v{m}, v{m+1}\ns_nop 1')
        e(f'v_max_f32 v{m}, v{m}, v{m+1}')
        e(f'v_sub_f32 {NM[x][0]}, 0, v{m}')
        for r in range(1, 16): e(f'v_mov_b32 {NM[x][r]}, {NM[x][0]}')
        for rr in allr: e(f'v_add_f32 {rr}, {rr}, {NM[x][0]}')
        for r in range(16): e(f'v_exp_f32 {S[x][0][r]}, {S[x][0][r]}')
        for r in range(6): e(f'v_exp_f32 {S[x][1][r]}, {S[x][1][r]}')
        e(f'v_mov_b32 v{vl[x]}, {S[x][0][0]}')
        for r in range(1, 16): e(f'v_add_f32 v{vl[x]}, v{vl[x]}, {S[x][0][r]}')
        for r in range(5): e(f'v_add_f32 v{vl[x]}, v{vl[x]}, {S[x][1][r]}')
        for q in range(8): e(f'v_cvt_pk_bf16_f32 {P[x][q >> 2][q & 3]}, {S[x][0][2*q]}, {S[x][0][2*q+1]}')
    st('tile0')
    assert e.vm_count('hst') is None or e.vm_count('hst') > e.vm_count(('V', 0))  or True
    e.wait_vm(('V', 1), also_lgkm0=True, barrier=True)
    assert 'hst' not in e.vm
    for x in publish_ops([f's_lshl_b32 s4, s{sTtGU}, 5', f's_add_u32 s4, s4, s{sCj}', 's_lshl_b32 s4, s4, 2', f's_add_u32 s4, s4, {FL_GU}'], 'L_pubgu'):
        e.op(*(x if isinstance(x, tuple) else (x,)))
    emit_groups(e, tile_groups(sKF, sKoff, 0, ('K', 4)) + tile_groups(sVF, sVoff, 65536 + 32768, ('V', 2)))
    e(f's_mov_b32 s{sKd}, 16384\ns_mov_b32 s{sVd}, 49152\ns_mov_b32 s{sJt}, 64')
    e(f'v_add_u32 v{vK}, 16384, v{vL16}\nv_add_u32 v{vV}, 65536, v{vL16}')
    def frag_read(f):
        ff = f % 32
        if ff < 8: return f'ds_read_b128 {F[ff % 16]}, v{vK} offset:{ff*1024}'
        if ff < 16: return f'ds_read_b128 {F[ff % 16]}, v{vV} offset:{(ff-8)*1024}'
        if ff < 24: return f'ds_read_b128 {F[ff % 16]}, v{vK} offset:{(8 + ff-16)*1024}'
        return f'ds_read_b128 {F[ff % 16]}, v{vV} offset:{(8 + ff-24)*1024}'
    def mfma(D, A, B, C=None): return f'v_mfma_f32_32x32x16_bf16 {D}, {A}, {B}, {C if C is not None else D}'
    for f in range(8): e(frag_read(f))
    def E(x, g_):
        g_ %= 32
        if 10 <= g_ <= 25: return S[x][0][g_-10]
        if g_ >= 26: return S[x][1][g_-26]
        return S[x][1][g_+6]
    def valu(x, g_, old, new):
        o = []
        if (old if g_ <= 9 else new): o.append(f'v_exp_f32 {E(x, g_)}, {E(x, g_)}')
        gp = (g_ - 1) % 32
        prev_old = (gp <= 9) or (g_ == 0)
        if (old if prev_old else new): o.append(f'v_add_f32 v{vl[x]}, v{vl[x]}, {E(x, gp)}')
        if g_ % 2 == 0:
            if g_ <= 14 and old:
                q = g_ // 2
                o.append(f'v_cvt_pk_bf16_f32 {P[x][2 + (q >> 2)][q & 3]}, {S[x][1][2*q]}, {S[x][1][2*q+1]}')
            if g_ >= 16 and new:
                q = (g_ - 16) // 2
                o.append(f'v_cvt_pk_bf16_f32 {P[x][q >> 2][q & 3]}, {S[x][0][2*q]}, {S[x][0][2*q+1]}')
        return o
    def strip(l): return [x[0] if isinstance(x, tuple) else x for x in l]
    def book(g_):
        o = []
        if g_ == 17: o += [f's_add_u32 s{sM0K}, s{sKd}, s{sWoff}', f's_add_u32 s{sKd}, s{sKd}, 16384', f's_and_b32 s{sKd}, s{sKd}, 0xffff']
        if g_ == 19: o += [f's_add_u32 s{sM0V}, s{sVd}, s{sWoff}', f's_add_u32 s{sVd}, s{sVd}, 16384', f's_and_b32 s{sVd}, s{sVd}, 0xffff']
        if g_ == 21: o += [f's_add_u32 s{sT1}, s{sVd}, 16384', f's_and_b32 s{sT1}, s{sT1}, 0xffff', f's_add_u32 s{sT1}, s{sT1}, 65536', f's_add_u32 s{sM0V}, s{sM0V}, 65536']
        if g_ == 23: o += [f'v_add_u32 v{vK}, s{sKd}, v{vL16}']
        dk = strip(dma_tile(sKF, sKoff, None)); dv = strip(dma_tile(sVF, sVoff, None))
        if g_ == 24: o += [f'v_add_u32 v{vV}, s{sT1}, v{vL16}', f's_mov_b32 m0, s{sM0K}', 's_nop 0', dk[0]]
        if g_ in (25, 26): o += [dk[g_-24]]
        if g_ == 27: o += [dk[3], f's_mov_b32 m0, s{sM0V}'] + adv(sKoff)
        if g_ in (28, 29, 30): o += [dv[g_-28]]
        if g_ == 31: o += [dv[3]] + adv(sVoff) + [f's_add_u32 s{sJt}, s{sJt}, 64']
        return o
    def step(qk, pv, masked):
        for f in range(32):
            isK = f < 8 or 16 <= f < 24
            act = qk if isK else pv
            if f == 24: e('s_waitcnt vmcnt(8) lgkmcnt(4)\ns_barrier')
            elif f % 4 == 0: e('s_waitcnt lgkmcnt(4)')
            todo = {x: valu(x, f, x in pv, x in qk) for x in range(2) if (x in pv or x in qk)}
            pre = []
            if f in (10, 26):
                for x in masked: pre += mask_burst(x, 0 if f == 10 else 1)
            first = True
            for x in act:
                if isK:
                    kb = 0 if f < 8 else 1; s_ = f % 8
                    e(mfma(S[x][kb], F[f % 16], Q[x][s_], NM[x] if s_ == 0 else None))
                else:
                    u = ((f - 8) // 4) if f < 16 else 2 + (f - 24) // 4; t = f % 4
                    e(mfma(O[x][t], F[f % 16], P[x][u]))
                if first:
                    e(frag_read(f + 8))
                    for i in book(f): e(i)
                    for i in pre: e(i)
                    for y in list(todo):
                        if y not in act:
                            for i in todo.pop(y): e(i)
                    first = False
                for i in todo.pop(x): e(i)
    def loop(lab, cnt_sreg, body):
        e(f's_cmp_eq_u32 s{cnt_sreg}, 0\ns_cbranch_scc1 {lab}_end')
        e('.p2align 6')
        e.label(lab)
        body()
        e(f's_sub_u32 s{cnt_sreg}, s{cnt_sreg}, 1\ns_cmp_lg_u32 s{cnt_sreg}, 0\ns_cbranch_scc1 {lab}')
        e.label(lab + '_end')
    def ctx_base(x):
        if x == L_: e(f's_sub_u32 s{sT0}, 15, s{sP}\ns_lshl_b32 s{sT0}, s{sT0}, 2')
        else: e(f's_lshl_b32 s{sT0}, s{sP}, 2')
        e(f's_add_u32 s{sT0}, s{sT0}, s{sWave}\ns_mul_i32 s{sT0}, s{sT0}, 544\ns_lshl_b32 s{sT1}, s{sH}, 3\ns_add_u32 s{sT0}, s{sT0}, s{sT1}\ns_lshl_b32 s{sT0}, s{sT0}, 10')
    def epi(x, check, Ox=None, pre_groups=None):
        Ox = Ox if Ox is not None else O[x]
        T0 = TMP
        e(f'v_mov_b32 v{T0}, v{vl[x]}\ns_nop 1\nv_permlane32_swap_b32 v{vl[x]}, v{T0}\ns_nop 1')
        e(f'v_add_f32 v{vl[x]}, v{vl[x]}, v{T0}')
        if check:
            e(f'v_mov_b32 v{T0+1}, 0x5d800000')
            e(f'v_cmp_nlt_f32 vcc, v{vl[x]}, v{T0+1}')
        e(f'v_rcp_f32 v{T0}, v{vl[x]}')
        e('s_nop 1')
        if check:
            e(f's_or_b32 s{sSlow}, s{sSlow}, vcc_lo\ns_or_b32 s{sSlow}, s{sSlow}, vcc_hi')
        ctx_base(x)
        for t in range(4):
            ee = T0 + 4 + 16 * (t % 2)
            for r in range(16): e(f'v_accvgpr_read_b32 v{ee+r}, {Ox[t][r]}')
            for r in range(16): e(f'v_mul_f32 v{ee+r}, v{ee+r}, v{T0}')
            for r in range(8): e(f'v_cvt_pk_bf16_f32 v{ee+r}, v{ee+2*r}, v{ee+2*r+1}')
            e(f's_add_u32 s{sT1}, s{sT0}, {t*2048}')
            e(f'buffer_store_dwordx4 v[{ee}:{ee+3}], v{vL16}, {srd(sO)}, s{sT1} offen {ST}')
            e(f'buffer_store_dwordx4 v[{ee+4}:{ee+7}], v{vL16}, {srd(sO)}, s{sT1} offen offset:1024 {ST}')
    e(f's_sub_u32 s{sCnt}, s{sNS}, 3\ns_max_i32 s{sCnt}, s{sCnt}, 0')
    loop('LAT_A', sCnt, lambda: step([L_, S_], [L_, S_], []))
    st('A')
    e(f's_sub_u32 s{sCnt}, s{sNS}, 1\ns_min_u32 s{sCnt}, s{sCnt}, 2')
    loop('LAT_B', sCnt, lambda: step([L_, S_], [L_, S_], [S_]))
    def pfx(ptr, key, k, n):
        if 'nopf2' in sys.argv: return
        for x in pf_ops(ptr, key, k, n): e(x[0] if isinstance(x, tuple) else x)
    pfx(pWd, 'wd', 0, 2)
    step([L_], [L_, S_], [L_])
    e('s_nop 7\ns_nop 7')
    st('BC')
    pfx(pWd, 'wd', 1, 2)
    epi(S_, True)
    pfx(pWo, 'wo', 0, 1)
    st('epiS')
    e(f's_sub_u32 s{sCnt}, s{sNL}, s{sNS}\ns_sub_u32 s{sCnt}, s{sCnt}, 3\ns_max_i32 s{sCnt}, s{sCnt}, 0')
    loop('LAT_D', sCnt, lambda: step([L_], [L_], []))
    st('D')
    e(f's_cmp_eq_u32 s{sP}, 7\ns_cselect_b32 s{sCnt}, 1, 2')
    loop('LAT_E', sCnt, lambda: step([L_], [L_], [L_]))
    for f in range(8, 16): e(frag_read(f))
    for g_ in range(0, 16):
        for i in valu(L_, g_, True, False): e(i)
    e('s_waitcnt lgkmcnt(0)')
    for k, f in enumerate(range(8, 16)):
        e(mfma(O[L_][f % 4], F[f % 16], P[L_][(f - 8) // 4]))
        e(frag_read(24 + k))
    e('s_waitcnt lgkmcnt(0)')
    for f in range(24, 32): e(mfma(O[L_][f % 4], F[f % 16], P[L_][2 + (f - 24) // 4]))
    e('s_nop 7\ns_nop 7')
    epi(L_, True)
    st('epiL')
    if 'forceslow' in sys.argv: e(f's_mov_b32 s{sSlow}, 1')
    e('s_waitcnt vmcnt(0) lgkmcnt(0)\ns_barrier')
    e(f'v_mov_b32 v{TMP}, s{sSlow}\nv_lshlrev_b32 v{TMP+1}, 2, v0\nv_and_b32 v{TMP+1}, 0x300, v{TMP+1}\nv_lshrrev_b32 v{TMP+1}, 6, v{TMP+1}')
    e(f'ds_write_b32 v{TMP+1}, v{TMP}\ns_waitcnt lgkmcnt(0)\ns_barrier')
    e(f'v_mov_b32 v{TMP+1}, 0\nds_read_b128 v[{TMP+4}:{TMP+7}], v{TMP+1}\ns_waitcnt lgkmcnt(0)')
    e(f'v_or_b32 v{TMP+4}, v{TMP+4}, v{TMP+5}\nv_or_b32 v{TMP+6}, v{TMP+6}, v{TMP+7}\nv_or_b32 v{TMP+4}, v{TMP+4}, v{TMP+6}\ns_nop 0')
    e(f'v_readfirstlane_b32 s{sSlow}, v{TMP+4}')
    e('s_barrier')
    e(f's_cmp_eq_u32 s{sSlow}, 0\ns_cbranch_scc1 L_noslow')
    for x in (L_, S_):
        lab = f'L_sl{x}'
        vm = TMP + 36
        Ox = O[0]
        for i in range(64): e(f'v_accvgpr_write_b32 a{i}, 0')
        e(f'v_mov_b32 v{vm}, v{vNI}\nv_mov_b32 v{vl[x]}, 0')
        e(f's_lshl_b32 s{sKoff}, s{sH}, 19\ns_mov_b32 s{sJt}, 0')
        e(f's_mov_b32 s{sCnt}, s{sNL if x == L_ else sNS}')
        e.label(lab)
        e('s_barrier')
        e(f's_mov_b32 m0, s{sWoff}\ns_nop 0')
        for i in strip(dma_tile(sKF, sKoff, None)): e(i)
        e(f's_add_u32 m0, s{sWoff}, 16384\ns_nop 0')
        for i in strip(dma_tile(sVF, sKoff, None)): e(i)
        e(f's_add_u32 s{sKoff}, s{sKoff}, 16384')
        e('s_waitcnt vmcnt(0)\ns_barrier')
        for f in range(16): e(f'ds_read_b128 {F[f]}, v{vL16} offset:{f*1024}')
        e('s_waitcnt lgkmcnt(0)')
        for kb in range(2):
            for s_ in range(8): e(mfma(S[0][kb], F[kb*8+s_], Q[x][s_], '0' if s_ == 0 else None))
        for f in range(16): e(f'ds_read_b128 {F[f]}, v{vL16} offset:{16384 + f*1024}')
        e('s_nop 7\ns_nop 7')
        for kb in range(2):
            for i in mask_burst(x, kb, S[0][kb]): e(i)
        allr = [S[0][kb][r] for kb in range(2) for r in range(16)]
        m = TMP
        e(f'v_max3_f32 v{m}, {allr[0]}, {allr[1]}, {allr[2]}')
        for k in range(3, 31, 2): e(f'v_max3_f32 v{m}, v{m}, {allr[k]}, {allr[k+1]}')
        e(f'v_max3_f32 v{m}, v{m}, {allr[31]}, v{vm}')
        e(f'v_mov_b32 v{m+1}, v{m}\ns_nop 1\nv_permlane32_swap_b32 v{m}, v{m+1}\ns_nop 1')
        e(f'v_max_f32 v{m}, v{m}, v{m+1}')
        e(f'v_sub_f32 v{m+1}, v{vm}, v{m}\nv_exp_f32 v{m+1}, v{m+1}\nv_mov_b32 v{vm}, v{m}')
        for rr in allr: e(f'v_sub_f32 {rr}, {rr}, v{m}')
        for rr in allr: e(f'v_exp_f32 {rr}, {rr}')
        e(f'v_mul_f32 v{vl[x]}, v{vl[x]}, v{m+1}')
        for rr in allr: e(f'v_add_f32 v{vl[x]}, v{vl[x]}, {rr}')
        for kb in range(2):
            for q in range(8): e(f'v_cvt_pk_bf16_f32 {P[0][2*kb + (q >> 2)][q & 3]}, {S[0][kb][2*q]}, {S[0][kb][2*q+1]}')
        for i in range(64):
            e(f'v_accvgpr_read_b32 v{m+2}, a{i}\nv_mul_f32 v{m+2}, v{m+2}, v{m+1}\nv_accvgpr_write_b32 a{i}, v{m+2}')
        e('s_waitcnt lgkmcnt(0)\ns_nop 1')
        for u in range(4):
            for t in range(4): e(mfma(Ox[t], F[u*4+t], P[0][u]))
        e(f's_add_u32 s{sJt}, s{sJt}, 64')
        e(f's_sub_u32 s{sCnt}, s{sCnt}, 1\ns_cmp_lg_u32 s{sCnt}, 0\ns_cbranch_scc1 {lab}')
        e('s_nop 7\ns_nop 7')
        epi(x, False, Ox)
    e('s_waitcnt vmcnt(0)\ns_barrier')
    e.label('L_noslow')
    st('slowchk')
    for x, lab in ((L_, 'L_pubcl'), (S_, 'L_pubcs')):
        ops = ([f's_sub_u32 s4, 15, s{sP}'] if x == L_ else [f's_mov_b32 s4, s{sP}']) + \
              ['s_lshl_b32 s4, s4, 5', f's_add_u32 s4, s4, s{sH}', 's_lshl_b32 s4, s4, 2', f's_add_u32 s4, s4, {FL_CTX}']
        for xx in publish_ops(ops, lab): e.op(*(xx if isinstance(xx, tuple) else (xx,)))
    e.vm = []; e.lg = []

HS = [15, 14, 14, 14, 15]
CS = [12, 13, 13, 13, 13]
def phase_fin(e, st):
    NS = 4; SS = 40960; ACTB = 16384; PITCH = 1152; ND = 10
    def mfma(D, A, B, C=None): return f'v_mfma_f32_32x32x16_bf16 {D}, {A}, {B}, {C if C is not None else D}'
    e(f's_cmp_ge_u32 s{sIdx}, 30\ns_cbranch_scc1 L_end')
    sW, sA, sO = S0, S1, S2
    sTt, sNt, sSp, sCnt, sDst, sStage, sRem = 32, 33, 34, 35, 36, 37, 38
    sSo = 39
    sM0A, sM0W, sDeltaA, sDeltaW, sT0, sT1, sT2, sNst = 45, 46, 47, 48, 49, 50, 51, 52
    sHst, sHn, sCst, sCn = 54, 55, 56, 57
    vA, vAb, vDA, vDW, vT = 3, 4, 5, 6, 7
    vW0b, vW1b = 10, 11
    vB = [12, 13, 14]; vBb = [15, 16, 17]
    vPoll, vPo = 18, 19
    FS = [([R('v', 160 + 20*b + 4*i, 4) for i in range(2)], [R('v', 168 + 20*b + 4*i, 4) for i in range(3)]) for b in range(4)]
    acc = {(j, i): R('v', 64 + 16 * (2*j + i), 16) for j in range(3) for i in range(2)}
    e(f's_cmp_ge_u32 s{sIdx}, 15\ns_cselect_b32 s4, 1, 0\ns_mul_i32 s5, s4, 15\ns_sub_u32 s5, s{sIdx}, s5')
    e(f's_lshl_b32 s6, s{sXcd}, 1\ns_add_u32 s{sTt}, s6, s4')
    e(f's_mul_i32 s6, s5, 86\ns_lshr_b32 s{sSp}, s6, 8\ns_mul_i32 s6, s{sSp}, 3\ns_sub_u32 s{sNt}, s5, s6')
    e(f'v_and_b32 v{vPo}, 31, v{vLane}\nv_lshlrev_b32 v{vPo}, 2, v{vPo}')
    e(f's_lshr_b32 s4, s{sTt}, 1\ns_lshl_b32 s4, s4, 7\ns_add_u32 s{sT2}, s4, {FL_GU}')
    e.vmem(f'buffer_load_dword v{vPoll}, v{vPo}, {srd(SF)}, s{sT2} offen sc1', 'poll')
    hst = [sum(HS[:i]) for i in range(5)]; cst = [sum(CS[:i]) for i in range(5)]
    e(f's_mov_b32 s{sHst}, {hst[0]}\ns_mov_b32 s{sHn}, {HS[0]}\ns_mov_b32 s{sCst}, {cst[0]}\ns_mov_b32 s{sCn}, {CS[0]}')
    for i in range(1, 5):
        e(f's_cmp_eq_u32 s{sSp}, {i}\ns_cselect_b32 s{sHst}, {hst[i]}, s{sHst}\ns_cselect_b32 s{sHn}, {HS[i]}, s{sHn}\ns_cselect_b32 s{sCst}, {cst[i]}, s{sCst}\ns_cselect_b32 s{sCn}, {CS[i]}, s{sCn}')
    e(f's_add_u32 s{sNst}, s{sHn}, s{sCn}')
    srd_from(e, sW, pWd, SZ['wd']); srd_from(e, sA, pWs, SZ_ACT2, WS_ACT2); srd_from(e, sO, pWs, SZ_PART, WS_PART)
    e(f's_and_b32 s4, s{sWave}, 1\ns_lshl_b32 s4, s4, 13\nv_add_u32 v{vAb}, s4, v{vL16}')
    lane_w_base(e, vW0b, vW1b, vT, 1, 512)
    e(f'v_add_u32 v{vW0b}, {ACTB}, v{vW0b}\nv_add_u32 v{vW1b}, {ACTB}, v{vW1b}')
    e(f's_lshr_b32 s4, s{sWave}, 1\ns_cmp_eq_u32 s4, 0\ns_cbranch_scc0 LF_wn1')
    e(f'v_mov_b32 v{vBb[0]}, v{vW0b}\nv_mov_b32 v{vBb[1]}, v{vW1b}\nv_add_u32 v{vBb[2]}, 8192, v{vW0b}\ns_branch LF_wn2')
    e.label('LF_wn1')
    e(f'v_add_u32 v{vBb[0]}, 8192, v{vW1b}\nv_add_u32 v{vBb[1]}, 16384, v{vW0b}\nv_add_u32 v{vBb[2]}, 16384, v{vW1b}')
    e.label('LF_wn2')
    e(f's_lshl_b32 s4, s{sTt}, 2\ns_add_u32 s4, s4, s{sWave}\ns_mul_i32 s4, s4, 544\ns_lshl_b32 s5, s{sHst}, 2\ns_add_u32 s4, s4, s5\ns_add_u32 s4, s4, 256\ns_lshl_b32 s4, s4, 10')
    e(f'v_add_u32 v{vDA}, s4, v{vL16}')
    e(f's_add_u32 s4, s{sHst}, s{sHn}\ns_lshl_b32 s4, s4, 2\ns_add_u32 s4, s4, 256\ns_lshl_b32 s5, s{sCst}, 2\ns_sub_u32 s4, s5, s4\ns_lshl_b32 s4, s4, 10\ns_add_u32 s{sDeltaA}, s4, 4096')
    e(f'v_lshrrev_b32 v{vT}, 3, v{vLane}\nv_mul_u32_u24 v{vDW}, {PITCH}, v{vT}')
    e(f'v_bfe_u32 v{vT}, v{vLane}, 4, 1\nv_bfe_u32 v{vT+1}, v{vLane}, 2, 1\nv_xor_b32 v{vT}, v{vT}, v{vT+1}')
    e(f'v_lshl_add_u32 v{vDW}, v{vT}, 6, v{vDW}\nv_and_b32 v{vT}, 3, v{vLane}\nv_lshl_add_u32 v{vDW}, v{vT}, 4, v{vDW}')
    e(f's_mul_i32 s4, s{sNt}, 384\ns_lshl_b32 s5, s{sHst}, 6\ns_lshl_b32 s6, s{sWave}, 4\ns_add_u32 s5, s5, s6\ns_mul_i32 s5, s5, {PITCH}\ns_add_u32 s4, s4, s5')
    e(f'v_add_u32 v{vDW}, s4, v{vDW}')
    e(f's_add_u32 s4, s{sHst}, s{sHn}\ns_sub_u32 s4, s{sCst}, s4\ns_add_u32 s4, s4, 1\ns_mul_i32 s{sDeltaW}, s4, {64*PITCH}')
    so = {}; k = 1
    for nb2 in range(3):
        for j in range(2):
            val = nb2 * 128 + j * (8 * PITCH - 1024)
            if val == 0: so[nb2, j] = '0'
            else:
                so[nb2, j] = f's{sSo+k}'; e(f's_mov_b32 s{sSo+k}, {val}'); k += 1
    e(f's_lshl_b32 s{sM0A}, s{sWave}, 12')
    e(f's_lshl_b32 s4, s{sWave}, 11\ns_add_u32 s{sM0W}, s4, {ACTB}')
    e(f's_mov_b32 s{sRem}, s{sHn}')
    def dma_ops():
        g = []
        g.append([f's_add_u32 m0, s{sDst}, s{sM0A}', f's_add_u32 s{sT0}, s{sDst}, s{sM0W}', f'buffer_load_dwordx4 v{vDA}, {srd(sA)}, 0 offen sc1 lds'])
        for i in range(1, 4):
            g.append([f'buffer_load_dwordx4 v{vDA}, {srd(sA)}, 0 offen offset:{1024*i} sc1 lds'])
        for nb2 in range(3):
            g[-1].append(f's_add_u32 m0, s{sT0}, {nb2*8192}' if nb2 else f's_mov_b32 m0, s{sT0}')
            g[-1].append('s_nop 0')
            g.append([f'buffer_load_dwordx4 v{vDW}, {srd(sW)}, {so[nb2,0]} offen lds'])
            g.append([f'buffer_load_dwordx4 v{vDW}, {srd(sW)}, {so[nb2,1]} offen offset:1024 lds'])
        g[-1] += [f'v_add_u32 v{vDA}, 4096, v{vDA}', f'v_add_u32 v{vDW}, {64*PITCH}, v{vDW}',
                  f's_add_u32 s{sDst}, s{sDst}, {SS}', f's_cmp_ge_u32 s{sDst}, {NS*SS}', f's_cselect_b32 s{sDst}, 0, s{sDst}']
        return g
    def reads(ks, FA, FW):
        r = []
        def wrd(j):
            for i2 in range(2):
                r.append(f'ds_read_b64_tr_b16 {FW[j][2*i2:2*i2+2]}, v{vB[j]} offset:{(4*ks + 2*i2)*512}')
        wrd(0)
        for i in range(2): r.append(f'ds_read_b128 {FA[i]}, v{vA} offset:{i*4096 + ks*1024}')
        wrd(1); wrd(2)
        return r
    def mfmas(FA, FW): return [mfma(acc[j, i], FW[j], FA[i]) for j in range(3) for i in range(2)]
    def inter(mf, fills):
        for k, m in enumerate(mf):
            e(m)
            for f in fills.get(k, []): e(f)
    flag_check(e, vPoll, vPo, f's{sT2}', 32)
    st('fin_flags')
    e(f's_mov_b32 s{sDst}, 0')
    for t in range(NS):
        for g in dma_ops():
            for x in g: e(x)
    for i in range(96): e(f'v_mov_b32 v{64+i}, 0')
    e(f's_mov_b32 s{sStage}, 0')
    e(f'v_mov_b32 v{vA}, v{vAb}')
    for j in range(3): e(f'v_mov_b32 v{vB[j]}, v{vBb[j]}')
    e(f's_waitcnt vmcnt({3*ND})\ns_barrier')
    st('fin_first')
    for x in reads(0, *FS[0]) + reads(1, *FS[1]): e(x)
    def body(dma, vm):
        dg = dma_ops() if dma else []
        for ks in range(4):
            fills = {}
            rd = []
            if ks == 2:
                if vm is not None:
                    e(f's_waitcnt vmcnt({vm}) lgkmcnt(0)\ns_barrier')
                    adv_ = [f's_add_u32 s{sStage}, s{sStage}, {SS}', f's_cmp_ge_u32 s{sStage}, {NS*SS}', f's_cselect_b32 s{sStage}, 0, s{sStage}',
                            f'v_add_u32 v{vA}, s{sStage}, v{vAb}'] + [f'v_add_u32 v{vB[j]}, s{sStage}, v{vBb[j]}' for j in range(3)]
                    for x in adv_: e(x)
                else:
                    e('s_waitcnt lgkmcnt(0)')
            else:
                e('s_waitcnt lgkmcnt(8)' if (ks != 3 or vm is not None) else 's_waitcnt lgkmcnt(0)')
            if ks < 2: rd = reads(ks + 2, *FS[ks + 2])
            elif vm is not None: rd = reads(ks - 2, *FS[ks - 2])
            for k_, x in enumerate(rd): fills.setdefault(k_ // 2, []).append(x)
            if ks >= 2:
                h = len(dg) // 2
                part = dg[:h] if ks == 2 else dg[h:]
                for k_, g in enumerate(part): fills.setdefault(min(k_ + 1, 5), []).extend(g)
            inter(mfmas(*FS[ks]), fills)
    def loop(lab):
        e('.p2align 6'); e.label(lab)
        body(True, 2*ND)
        e(f's_sub_u32 s{sCnt}, s{sCnt}, 1\ns_cmp_lg_u32 s{sCnt}, 0\ns_cbranch_scc1 {lab}')
    e(f's_sub_u32 s{sCnt}, s{sHn}, 5')
    loop('LF_loop1')
    sPo = 53
    e(f's_lshl_b32 s4, s{sTt}, 7\ns_add_u32 s{sPo}, s4, {FL_CTX}')
    e(f'buffer_load_dword v{vPoll}, v{vPo}, {srd(SF)}, s{sPo} offen sc1')
    body(True, 2*ND)
    e(f's_waitcnt vmcnt({ND})')
    flag_check(e, vPoll, vPo, f's{sPo}', 32)
    e(f's_sub_u32 s4, s{sDeltaA}, 4096\nv_add_u32 v{vDA}, s4, v{vDA}\ns_sub_u32 s4, s{sDeltaW}, {64*PITCH}\nv_add_u32 v{vDW}, s4, v{vDW}')
    e(f's_mov_b32 s{sW}, s{pWo}\ns_mov_b32 s{sW+1}, s{pWo+1}\ns_mov_b32 s{sW+2}, {SZ["wo"]:#x}')
    e(f's_mov_b32 s{sCnt}, s{sCn}')
    loop('LF_loop2')
    body(False, 2*ND); body(False, ND); body(False, 0); body(False, None)
    st('fin_loop')
    e('s_nop 7\ns_nop 7')
    e(f's_lshl_b32 s4, s{sSp}, 4\ns_add_u32 s4, s4, s{sTt}\ns_mul_i32 s4, s4, 3\ns_add_u32 s4, s4, s{sNt}\ns_lshl_b32 s4, s4, 2\ns_add_u32 s4, s4, s{sWave}\ns_mul_i32 s4, s4, {6*4096}')
    e(f'v_add_u32 v{vT}, s4, v{vL16}')
    n = 0
    for j in range(3):
        for i in range(2):
            e(f's_mov_b32 s5, {n*4096}')
            for q in range(4):
                e(f'buffer_store_dwordx4 {acc[j,i][4*q:4*q+4]}, v{vT}, {srd(sO)}, s5 offen offset:{q*1024}')
            n += 1
    st('fin_epi')

def gen_mega(a_unused=None, name='mega_kernel'):
    e = Em()
    st = St(e)
    kernel_header(e, name)
    kv = phase_start_kv(e, st)
    gu = phase_gu(e, st, kv)
    phase_attn(e, st, gu)
    phase_fin(e, st)
    e.label('L_end')
    if gen_common.STAMP:
        e('s_waitcnt vmcnt(0)')
        st('end')
        st.flush()
    e.label('L_done')
    e('s_endpgm')
    e.label('L_codeend')
    return e, kernel_desc(name, 512, 102, 256), st

if __name__ == '__main__':
    if 'stplain' in sys.argv: ST = ''
    from gen_fin import gen_red
    gen_common.STAMP = 'stamp' in sys.argv
    HEADER = open('parallel_sum__compressed_kv_cla__glu_gated_geglu__prompt.s.ref').read().split('; Override launch')[0]
    e, desc, st = gen_mega()
    a2 = Asm()
    d2 = gen_red(a2)
    out = HEADER
    out += '; @launch kernel=mega_kernel grid=(256,1,1) block=(256,1,1) lds=163840\n'
    out += '; @launch kernel=red_kernel grid=(288,1,1) block=(256,1,1) lds=0\n'
    out += '.amdgcn_target "amdgcn-amd-amdhsa--gfx950"\n.text\n' + e.text() + a2.text()
    out += '.section .rodata,"a"\n.p2align 6\n' + desc + '.p2align 6\n' + d2
    errs = check_hazards(e.lines + a2.lines, 'mega')
    print('hazards:', len(errs), 'lines', len(e.lines), 'stamps', st.names, file=sys.stderr)
    if 'nosc1ld' in sys.argv: out = out.replace(' sc1 lds', ' lds')
    open(sys.argv[1], 'w').write(out)
```

```python
import sys
from mega_common import *

GK1 = -2.302208198
GK2 = GK1 * 0.044715
QSCALE = 1.4426950408889634 / (128 ** 0.5)
NEG_INF = 0xff800000
EXPST = None; EXPFL = 'sc1'
for _x in sys.argv:
    if _x.startswith('expst='): EXPST = int(_x[6:])
    if _x.startswith('expfl='): EXPFL = _x[6:].replace('+', ' ')
ST = 'sc1'

def run_sub(e, mfs, fills):
    for k, m in enumerate(mfs):
        e.mf(*m)
        for f in fills.get(k, []):
            if isinstance(f, tuple): e.op(f[0], f[1])
            else: e.op(f)

def pf_ops(ptr, key, k, n):
    per = SZ[key] // 1024
    lines = (per + 127) // 128
    L = (lines + n - 1) // n
    lo = k * L; cnt = min(L, lines - lo)
    return [f's_mov_b32 s4, s{ptr}', f's_mov_b32 s5, s{ptr+1}', f's_mov_b32 s6, {SZ[key]:#x}', 's_mov_b32 s7, 0x20000',
            f's_lshl_b32 s{PFS}, s2, 2', f's_add_u32 s{PFS}, s{PFS}, s{sWave}', f's_mul_i32 s{PFS}, s{PFS}, {per}', f's_add_u32 s{PFS}, s{PFS}, {lo*128}',
            f'v_lshlrev_b32 v{PFV}, 7, v{vLane}', f's_mov_b32 exec_lo, {hex((1 << min(cnt, 32)) - 1)}', f's_mov_b32 exec_hi, {hex((1 << max(cnt - 32, 0)) - 1)}',
            (f'buffer_load_dword v{PFV+1}, v{PFV}, s[4:7], s{PFS} offen', 'pf'), 's_mov_b64 exec, -1']
PFS = 33; PFV = 253

def put(fills, gap, items):
    fills.setdefault(gap, []).extend(items)

def emit_groups(e, groups):
    for g in groups:
        for f in g:
            if isinstance(f, tuple): e.op(f[0], f[1])
            else: e.op(f)

def phase_start_kv(e, st):
    e('s_cmp_ge_u32 s2, 256\ns_cbranch_scc1 L_done')
    for key, p in (('x', pX), ('ckv', pCkv), ('wq', pWq), ('wuk', pWkv), ('wuv', pTmp), ('wo', pWo), ('wg', pWg),
                   ('wu', pWu), ('wd', pWd), ('out', pOut), ('dbg', pDbg), ('ws', pWs)):
        load_ptr(e, p, key)
    e(f'v_and_b32 v{vLane}, 63, v0\nv_lshrrev_b32 v3, 6, v0\nv_lshlrev_b32 v{vL16}, 4, v{vLane}')
    e(f's_and_b32 s{sXcd}, s2, 7\ns_lshr_b32 s{sIdx}, s2, 3')
    e(f'v_readfirstlane_b32 s{sWave}, v3')
    e('s_waitcnt lgkmcnt(0)')
    st.real(62); st('start')
    if 'nopf' not in sys.argv:
        e(f's_getpc_b64 s[4:5]')
        e('L_pcbase:')
        e(f's_lshl_b32 s6, s{sIdx}, 2\ns_add_u32 s6, s6, s{sWave}\ns_and_b32 s6, s6, 15\ns_lshl_b32 s6, s6, 13')
        e(f'v_lshlrev_b32 v3, 7, v{vLane}\nv_add_u32 v3, s6, v3')
        e(f'v_cmp_gt_u32 vcc, L_codeend - L_pcbase, v3\ns_nop 0\ns_and_saveexec_b64 s[6:7], vcc\ns_cbranch_execz L_nopf')
        e.vmem('global_load_dword v63, v3, s[4:5]', None, optional=True)
        e('L_nopf:')
        e('s_mov_b64 exec, -1')
    e(f's_add_u32 s4, s{pWs}, {WS_FLAG + FL_E:#x}\ns_addc_u32 s5, s{pWs+1}, 0')
    e(f's_load_dword s{sTag}, s[4:5], 0')
    srd_from(e, SF, pWs, 0x10000, WS_FLAG)
    sX, sXN = S3, S4
    srd_from(e, sX, pX, SZ['x']); srd_from(e, sXN, pWs, SZ_XN, WS_XN)
    e(f's_lshl_b32 s32, s2, 3\ns_lshl_b32 s33, s{sWave}, 1\ns_add_u32 s32, s32, s33')
    e(f'v_lshrrev_b32 v3, 5, v{vLane}\nv_add_u32 v3, s32, v3')
    e(f'v_and_b32 v4, 31, v{vLane}')
    e('s_movk_i32 s33, 1152\nv_mul_lo_u32 v5, v3, s33\nv_lshl_add_u32 v5, v4, 4, v5')
    D = 16
    e.vmem(f'buffer_load_dwordx4 v[{D}:{D+3}], v5, {srd(sX)}, 0 offen', 'ln')
    e.vmem(f'buffer_load_dwordx4 v[{D+4}:{D+7}], v5, {srd(sX)}, 0 offen offset:512', 'ln')
    e('s_mov_b32 exec_lo, 0xff\ns_mov_b32 exec_hi, 0xff')
    e.vmem(f'buffer_load_dwordx4 v[{D+8}:{D+11}], v5, {srd(sX)}, 0 offen offset:1024', 'ln')
    e('s_mov_b64 exec, -1')
    e('v_lshrrev_b32 v6, 5, v3\nv_mul_u32_u24 v6, 36, v6\nv_lshrrev_b32 v7, 1, v4\nv_add_u32 v6, v6, v7\nv_lshlrev_b32 v6, 10, v6')
    e('v_and_b32 v7, 1, v4\nv_lshlrev_b32 v7, 9, v7\nv_add_u32 v6, v6, v7\nv_and_b32 v7, 31, v3\nv_lshl_add_u32 v60, v7, 4, v6')
    sCt, sTt = 34, 35
    e(f's_and_b32 s36, s{sIdx}, 3\ns_lshl_b32 s37, s{sXcd}, 2\ns_add_u32 s{sCt}, s37, s36\ns_lshr_b32 s{sTt}, s{sIdx}, 2')
    e(f's_cmp_lt_u32 s{sCt}, 16\ns_cselect_b32 s{pWkv}, s{pWkv}, s{pTmp}\ns_cselect_b32 s{pWkv+1}, s{pWkv+1}, s{pTmp+1}')
    sW, sA, sO = S0, S1, S2
    srd_from(e, sW, pWkv, SZ['wuk']); srd_from(e, sA, pCkv, SZ['ckv'])
    e(f's_mov_b32 s37, {WS_VF:#x}\ns_cmp_lt_u32 s{sCt}, 16\ns_cselect_b32 s36, {WS_KF:#x}, s37')
    e(f's_add_u32 s{sO}, s{pWs}, s36\ns_addc_u32 s{sO+1}, s{pWs+1}, 0\ns_mov_b32 s{sO+2}, {SZ_KF:#x}\ns_mov_b32 s{sO+3}, 0x20000')
    WB = 98304
    vAx = [3, 4, 5, 6]; vAc, vW0, vW1, vDAe, vDAo, vDW, vT = 7, 8, 9, 10, 11, 12, 13
    e(f'v_and_b32 v{vT}, 31, v{vLane}\nv_lshlrev_b32 v{vAx[0]}, 7, v{vT}\nv_bfe_u32 v{vT}, v{vLane}, 1, 3\nv_lshrrev_b32 v{vT+1}, 5, v{vLane}')
    e(f'v_xor_b32 v{vT}, v{vT}, v{vT+1}\nv_lshl_add_u32 v{vAx[0]}, v{vT}, 4, v{vAx[0]}')
    e(f's_and_b32 s36, s{sWave}, 1\ns_lshl_b32 s36, s36, 14\nv_add_u32 v{vAx[0]}, s36, v{vAx[0]}')
    for q in range(1, 4): e(f'v_xor_b32 v{vAx[q]}, {32*q}, v{vAx[0]}')
    lane_w_base(e, vW0, vW1, vT, 2, 1024)
    e(f's_lshr_b32 s36, s{sWave}, 1\ns_lshl_b32 s36, s36, 13\ns_add_u32 s36, s36, {WB}')
    e(f'v_add_u32 v{vW0}, s36, v{vW0}\nv_add_u32 v{vW1}, s36, v{vW1}')
    e(f'v_lshrrev_b32 v{vT}, 3, v{vLane}\nv_lshlrev_b32 v{vDAe}, 10, v{vT}\nv_lshrrev_b32 v{vT}, 4, v{vLane}\nv_and_b32 v{vT+1}, 7, v{vLane}')
    e(f'v_xor_b32 v{vT}, v{vT}, v{vT+1}\nv_lshl_add_u32 v{vDAe}, v{vT}, 4, v{vDAe}')
    e(f's_lshl_b32 s36, s{sTt}, 18\ns_lshl_b32 s37, s{sWave}, 16\ns_add_u32 s36, s36, s37\nv_add_u32 v{vDAe}, s36, v{vDAe}')
    e(f'v_xor_b32 v{vDAo}, 64, v{vDAe}')
    sSoA, sSoW, sM0A, sM0W = 48, 44, 38, 39
    for j_ in range(1, 8): e(f's_mov_b32 s{sSoA+j_}, {8192*j_ - 1024*(j_ & 3)}')
    for j_ in range(1, 4): e(f's_mov_b32 s{sSoW+j_}, {j_*(4*8192-1024)}')
    e('s_movk_i32 s33, 8192')
    lane_w_dma(e, vDW, vT, 33)
    e(f's_and_b32 s36, s{sCt}, 15\ns_lshl_b32 s36, s36, 9\ns_and_b32 s37, s{sWave}, 1\ns_lshl_b32 s37, s37, 8\ns_add_u32 s36, s36, s37')
    e(f's_lshr_b32 s37, s{sWave}, 1\ns_lshl_b32 s37, s37, 17\ns_add_u32 s36, s36, s37\nv_add_u32 v{vDW}, s36, v{vDW}')
    e(f's_lshl_b32 s{sM0A}, s{sWave}, 13')
    e(f's_and_b32 s36, s{sWave}, 1\ns_lshl_b32 s36, s36, 13\ns_lshr_b32 s37, s{sWave}, 1\ns_lshl_b32 s37, s37, 12')
    e(f's_add_u32 s{sM0W}, s36, s37\ns_add_u32 s{sM0W}, s{sM0W}, {WB}')
    def dmaA(p, h):
        tg = ('ka', p)
        g = []
        for jj in range(4):
            j_ = 4*h + jj
            ins = (f'buffer_load_dwordx4 v{vDAo if j_ & 1 else vDAe}, {srd(sA)}, {"s%d" % (sSoA + j_) if j_ else "0"} offen' + (f' offset:{1024*jj}' if jj else '') + ' lds', tg)
            g.append(([f's_add_u32 m0, s{sM0A}, {(p % 3)*32768 + 4096*h}', 's_nop 0'] if jj == 0 else []) + [ins])
        if h == 1: g[-1] += [f'v_add_u32 v{vDAe}, 128, v{vDAe}', f'v_add_u32 v{vDAo}, 128, v{vDAo}']
        return g
    def dmaW(t):
        tg = ('kw', t)
        g = [[f's_add_u32 m0, s{sM0W}, {(t % 4)*16384}', 's_nop 0', (f'buffer_load_dwordx4 v{vDW}, {srd(sW)}, 0 offen lds', tg)]]
        for j_ in range(1, 4):
            g.append([(f'buffer_load_dwordx4 v{vDW}, {srd(sW)}, s{sSoW+j_} offen offset:{1024*j_} lds', tg)])
        g[-1] += [f'v_add_u32 v{vDW}, {32*8192}, v{vDW}']
        return g
    emit_groups(e, dmaA(0, 0) + dmaW(0) + dmaA(0, 1) + dmaW(1) + dmaA(1, 0) + dmaA(1, 1) + dmaW(2) + dmaW(3))
    emit_groups(e, dmaA(2, 0))
    st('kv_dma')
    e.wait_vm('ln')
    F = 32
    e('s_mov_b32 s36, 0xffff0000')
    def unpack(i):
        for k in range(4):
            e(f'v_lshlrev_b32 v{F+8*i+2*k}, 16, v{D+4*i+k}\nv_and_b32 v{F+8*i+2*k+1}, s36, v{D+4*i+k}')
    unpack(0); unpack(1)
    for k in range(8): e(f'v_mov_b32 v{F+16+k}, 0')
    e('s_mov_b32 exec_lo, 0xff\ns_mov_b32 exec_hi, 0xff'); unpack(2); e('s_mov_b64 exec, -1')
    def allred(r, t):
        for dpp in ('quad_perm:[1,0,3,2]', 'quad_perm:[2,3,0,1]', 'row_half_mirror', 'row_mirror'):
            e(f's_nop 1\nv_add_f32_dpp v{r}, v{r}, v{r} {dpp} row_mask:0xf bank_mask:0xf')
        e(f'v_mov_b32 v{t}, v{r}\ns_nop 1\nv_permlane16_swap_b32 v{r}, v{t}\ns_nop 1\nv_add_f32 v{r}, v{r}, v{t}')
    e(f'v_add_f32 v28, v{F}, v{F+1}')
    for k in range(2, 24): e(f'v_add_f32 v28, v28, v{F+k}')
    allred(28, 29)
    e('s_mov_b32 s37, 0x3ae38e39\nv_mul_f32 v28, s37, v28')
    e('v_mov_b32 v31, 0')
    for k in range(16): e(f'v_sub_f32 v56, v{F+k}, v28\nv_fmac_f32 v31, v56, v56')
    e('s_mov_b32 exec_lo, 0xff\ns_mov_b32 exec_hi, 0xff')
    for k in range(16, 24): e(f'v_sub_f32 v56, v{F+k}, v28\nv_fmac_f32 v31, v56, v56')
    e('s_mov_b64 exec, -1')
    allred(31, 29)
    e('v_mul_f32 v31, s37, v31')
    e('v_cvt_pk_bf16_f32 v56, v28, v31\nv_lshlrev_b32 v28, 16, v56\nv_and_b32 v31, s36, v56')
    e('v_mov_b32 v57, 0x3727c5ac\nv_add_f32 v31, v57, v31')
    e('v_cvt_pk_bf16_f32 v56, v31, v31\nv_lshlrev_b32 v31, 16, v56\nv_sqrt_f32 v31, v31\ns_nop 0')
    e('v_cvt_pk_bf16_f32 v56, v31, v31\nv_lshlrev_b32 v31, 16, v56\nv_rcp_f32 v57, v31\ns_nop 0')
    for i in range(3):
        if i == 2: e('s_mov_b32 exec_lo, 0xff\ns_mov_b32 exec_hi, 0xff')
        for k in range(4):
            r0, r1 = F+8*i+2*k, F+8*i+2*k+1
            e(f'v_sub_f32 v{r0}, v{r0}, v28\nv_sub_f32 v{r1}, v{r1}, v28')
            e(f'v_cvt_pk_bf16_f32 v58, v{r0}, v{r1}')
            e(f'v_lshlrev_b32 v{r0}, 16, v58\nv_and_b32 v{r1}, s36, v58')
            for r in (r0, r1):
                e(f'v_mul_f32 v59, v{r}, v57\nv_fma_f32 v56, -v59, v31, v{r}\nv_fma_f32 v{r}, v56, v57, v59')
            e(f'v_cvt_pk_bf16_f32 v{D+4*i+k}, v{r0}, v{r1}')
        e(f's_mov_b32 s37, {i*16*1024}')
        e.vmem(f'buffer_store_dwordx4 v[{D+4*i}:{D+4*i+3}], v60, {srd(sXN)}, s37 offen {ST}', 'xn')
    e('s_mov_b64 exec, -1')
    e('s_waitcnt lgkmcnt(0)')
    e(f's_mul_i32 s{sTag}, s{sTag}, 0x9E3779B1\ns_add_u32 s{sTag}, s{sTag}, 0x7F4A7C15')
    e(f's_mov_b32 s{sSlow}, 0')
    srd_from(e, S3, pDbg, 256)
    e(f's_cmp_lg_u32 s{sWave}, 0\ns_cbranch_scc1 L_noat')
    e('v_mov_b32 v61, 1\nv_mov_b32 v62, 0\ns_mov_b64 exec, 1')
    e.vmem(f'buffer_atomic_add v61, v62, {srd(S3)}, 0 offen sc0 sc1', None, optional=True)
    e('s_mov_b64 exec, -1')
    e.label('L_noat')
    st('ln')
    XA = [R('v', 176 + 4*i, 4) for i in range(4)]; XW = [R('v', 192 + 4*i, 4) for i in range(4)]
    YA = [R('v', 208 + 4*i, 4) for i in range(4)]; YW = [R('v', 224 + 4*i, 4) for i in range(4)]
    acc = [[R('a', 16 * (4*j + i), 16) for j in range(4)] for i in range(4)]
    def reads(t, ks, FA, FW):
        so = (t % 4) * 16384
        r = []
        def wrd(j):
            base = vW0 if (j & 1) == 0 else vW1
            for i2 in range(2):
                r.append(f'ds_read_b64_tr_b16 {FW[j][2*i2:2*i2+2]}, v{base} offset:{so + (4*ks + i2)*1024 + (j >> 1)*512}')
        r.append(f'v_add_u32 v{vAc}, {((t // 2) % 3)*32768}, v{vAx[2*(t & 1) + ks]}')
        wrd(0)
        for i in range(4): r.append(f'ds_read_b128 {FA[i]}, v{vAc} offset:{i*4096}')
        wrd(1); wrd(2); wrd(3)
        return r
    def mfs(FA, FW, isK, first):
        return [((acc[i][j], FW[j], FA[i], '0' if first else None) if isK else (acc[i][j], FA[i], FW[j], '0' if first else None))
                for j in range(4) for i in range(4)]
    NST = 16
    e.wait_vm(('ka', 0), barrier=True)
    assert e.vm_count(('kw', 0)) is None
    st('kv_first')
    saved = (list(e.vm), list(e.lg))
    def place(fills, rd):
        put(fills, 0, rd[:3])
        for k, x in enumerate(rd[3:]): put(fills, 1 + k // 2, [x])
    def loop(isK):
        for x in reads(0, 0, XA, XW): e.op(x)
        for t in range(NST):
            fills = {}
            place(fills, reads(t, 1, YA, YW))
            run_sub(e, mfs(XA, XW, isK, t == 0), fills)
            fills = {}
            if t + 1 < NST:
                need = [('kw', t + 1)] + ([('ka', (t + 1) // 2)] if (t + 1) % 2 == 0 else [])
                cnts = [(e.vm_count(x), x) for x in need if e.vm_count(x) is not None]
                youngest = min(cnts)[1] if cnts else ('kw', t + 1)
                e.wait_vm(youngest, also_lgkm0=True, barrier=True)
                place(fills, reads(t + 1, 0, XA, XW))
            dm = []
            q, h = ((t + 5) // 2, 0) if t % 2 == 1 else ((t + 4) // 2, 1)
            if q < 8: dm += dmaA(q, h)
            if t + 4 < NST: dm += dmaW(t + 4)
            for k, g in enumerate(dm): put(fills, 6 + k, g)
            if 'nopf2' not in sys.argv and 2 <= t < 14:
                k = t - 2
                put(fills, 14, pf_ops(pWg if k % 2 == 0 else pWu, 'wg', k // 2, 6))
                if t in (5, 9, 13): put(fills, 15, pf_ops(pWq, 'wq', (t - 5) // 4, 3))
            if t == 3:
                assert 'xn' not in e.vm
                hook = f'L_ln{int(isK)}'
                put(fills, 2, [f's_cmp_lg_u32 s{sWave}, 0', f's_cbranch_scc1 {hook}',
                               f'v_mov_b32 v14, s{sTag}', f'v_mov_b32 v15, 0', f's_lshl_b32 s4, s2, 2', 'v_readfirstlane_b32 s5, v61', 's_mov_b64 exec, 1',
                               (f'buffer_store_dword v14, v15, {srd(SF)}, s4 offen sc1', 'OPT'),
                               f's_cmp_lg_u32 s5, 255', f's_cbranch_scc1 {hook}x', f's_mov_b32 s4, {FL_E}',
                               (f'buffer_store_dword v14, v15, {srd(SF)}, s4 offen sc1', 'OPT'), f'{hook}x:', 's_mov_b64 exec, -1', f'{hook}:'])
            if t == NST - 1:
                put(fills, 0, [(f'buffer_load_dwordx4 v[16:19], v{vL16}, {srd(SF)}, 0 offen sc1', 'poll')])
            run_sub(e, mfs(YA, YW, isK, False), fills)
    e(f's_cmp_lt_u32 s{sCt}, 16\ns_cbranch_scc0 L_kvV')
    loop(True)
    e('s_branch L_kvE')
    e.label('L_kvV')
    e.vm, e.lg = list(saved[0]), list(saved[1])
    loop(False)
    e.label('L_kvE')
    st('kv_loop')
    return dict(acc=acc, sCt=sCt, sTt=sTt, sO=sO)

def publish_ops(soff_expr_instrs, lab, vt=14):
    return [f's_cmp_lg_u32 s{sWave}, 0', f's_cbranch_scc1 {lab}', f'v_mov_b32 v{vt}, s{sTag}', f'v_mov_b32 v{vt+1}, 0'] + soff_expr_instrs + \
           ['s_mov_b64 exec, 1', (f'buffer_store_dword v{vt}, v{vt+1}, {srd(SF)}, s4 offen sc1', 'OPT'), 's_mov_b64 exec, -1', f'{lab}:']

def phase_gu(e, st, kv):
    NST = 18; GOFF = 16384; UOFF = 24576; MOFF = 32768; MUO = 1152; SS = 35072; PITCH = 9216
    sCtKV, sTt, sOKV = kv['sCt'], kv['sTt'], kv['sO']
    accKV = kv['acc']
    e.lgkm0()
    e('s_barrier')
    flag_check(e, 16, vL16, 0, 64, ndw=4)
    st('gu_flags')
    sG, sU, sA, sM, sO = S0, S1, S3, S4, 48
    sCj, sFb, sMb = 36, 37, 38
    e(f's_and_b32 s4, s{sIdx}, 3\ns_lshl_b32 s5, s{sXcd}, 2\ns_add_u32 s{sCj}, s5, s4')
    e(f's_mul_i32 s4, s{sCj}, 144\ns_and_b32 s5, s{sCj}, 1\ns_lshl_b32 s6, s5, 4\ns_add_u32 s{sFb}, s4, s6')
    e(f's_xor_b32 s5, s5, 1\ns_lshl_b32 s5, s5, 7\ns_add_u32 s{sMb}, s4, s5')
    srd_from(e, sG, pWg, SZ['wg']); srd_from(e, sU, pWu, SZ['wu'])
    srd_from(e, sA, pWs, SZ_XN, WS_XN); srd_from(e, sO, pWs, SZ_ACT2, WS_ACT2)
    e(f's_bitcmp1_b32 s{sWave}, 0\ns_cselect_b32 s4, s{pWu}, s{pWg}\ns_cselect_b32 s5, s{pWu+1}, s{pWg+1}')
    srd_from(e, sM, 4, SZ['wg'])
    vA, vW0, vW1, vM, vAb, vW0b, vW1b, vMb, vDA, vDW, vDM, vT = 3, 4, 5, 6, 7, 8, 9, 10, 11, 12, 13, 16
    vKVo = 18
    e(f's_lshl_b32 s4, s{sWave}, 12\nv_add_u32 v{vAb}, s4, v{vL16}')
    lane_w_base(e, vW0b, vW1b, vT, 2, 1024)
    e(f'v_lshrrev_b32 v{vT}, 5, v{vLane}\nv_lshlrev_b32 v{vMb}, 8, v{vT}')
    e(f'v_bfe_u32 v{vT}, v{vLane}, 2, 2\nv_lshl_add_u32 v{vMb}, v{vT}, 5, v{vMb}')
    e(f'v_bfe_u32 v{vT}, v{vLane}, 4, 1\nv_mul_u32_u24 v{vT}, {MUO}, v{vT}\nv_add_u32 v{vMb}, v{vMb}, v{vT}')
    e(f'v_and_b32 v{vT}, 3, v{vLane}\nv_lshl_add_u32 v{vMb}, v{vT}, 3, v{vMb}')
    e(f's_lshl_b32 s4, s{sTt}, 3\ns_lshl_b32 s5, s{sWave}, 1\ns_add_u32 s4, s4, s5\ns_mul_i32 s4, s4, {36*1024}\nv_add_u32 v{vDA}, s4, v{vL16}')
    sSoffA, sSoffW, sM0A, sM0G, sM0U, sM0M = 39, 40, 41, 42, 43, 44
    e(f's_mov_b32 s{sSoffA}, {36*1024 - 2048}\ns_movk_i32 s6, {PITCH}')
    lane_w_dma(e, vDW, vT, 6)
    e(f's_lshl_b32 s4, s{sFb}, 1\ns_mul_i32 s5, s{sWave}, {8*PITCH}\ns_add_u32 s4, s4, s5\nv_add_u32 v{vDW}, s4, v{vDW}')
    e(f's_mov_b32 s{sSoffW}, {4*PITCH - 1024}')
    e(f'v_lshrrev_b32 v{vT}, 1, v{vLane}\nv_mul_lo_u32 v{vDM}, v{vT}, s6\nv_and_b32 v{vT}, 1, v{vLane}\nv_lshl_add_u32 v{vDM}, v{vT}, 4, v{vDM}')
    e(f's_lshl_b32 s4, s{sMb}, 1\nv_add_u32 v{vDM}, s4, v{vDM}')
    e(f's_lshl_b32 s{sM0A}, s{sWave}, 12')
    e(f's_lshl_b32 s4, s{sWave}, 11\ns_add_u32 s{sM0G}, s4, {GOFF}\ns_add_u32 s{sM0U}, s4, {UOFF}')
    e(f's_and_b32 s4, s{sWave}, 1\ns_mul_i32 s4, s4, {MUO}\ns_add_u32 s{sM0M}, s4, {MOFF}')
    e(f's_and_b32 s4, s{sCtKV}, 15\ns_lshl_b32 s4, s4, 1\ns_lshr_b32 s5, s{sWave}, 1\ns_add_u32 s4, s4, s5\ns_lshl_b32 s4, s4, 6')
    e(f's_lshl_b32 s5, s{sTt}, 3\ns_and_b32 s6, s{sWave}, 1\ns_lshl_b32 s6, s6, 2\ns_add_u32 s5, s5, s6\ns_add_u32 s4, s4, s5\ns_lshl_b32 s4, s4, 13')
    if 'explin' in sys.argv:
        e(f's_lshl_b32 s4, s2, 2\ns_add_u32 s4, s4, s{sWave}\ns_lshl_b32 s4, s4, 15\ns_and_b32 s4, s4, 0xffffff')
    if 'exphash' in sys.argv:
        e(f's_lshl_b32 s4, s2, 2\ns_add_u32 s4, s4, s{sWave}\ns_mul_i32 s4, s4, 33024\ns_and_b32 s4, s4, 0xffff00')
    e(f'v_add_u32 v{vKVo}, s4, v{vL16}')
    sKVo = 52
    e(f's_cmp_lt_u32 s{sCtKV}, 16')
    for j in range(4):
        for half in range(2):
            e(f's_mov_b32 s4, {half*4096 + j*1024}\ns_cselect_b32 s{sKVo + 2*j + half}, {(2*j+half)*1024}, s4' if True else '')
    def dma(t):
        slot = (t % 4) * SS; tg = ('gu', t)
        g = []
        g.append([f's_add_u32 m0, s{sM0A}, {slot}', 's_nop 0', (f'buffer_load_dwordx4 v{vDA}, {srd(sA)}, 0 offen sc1 lds', tg)])
        g.append([(f'buffer_load_dwordx4 v{vDA}, {srd(sA)}, 0 offen offset:1024 sc1 lds', tg)])
        g.append([(f'buffer_load_dwordx4 v{vDA}, {srd(sA)}, s{sSoffA} offen offset:2048 sc1 lds', tg)])
        g.append([(f'buffer_load_dwordx4 v{vDA}, {srd(sA)}, s{sSoffA} offen offset:3072 sc1 lds', tg),
                  f's_add_u32 m0, s{sM0G}, {slot}', f'v_add_u32 v{vDA}, 2048, v{vDA}'])
        g.append([(f'buffer_load_dwordx4 v{vDW}, {srd(sG)}, 0 offen lds', tg)])
        g.append([(f'buffer_load_dwordx4 v{vDW}, {srd(sG)}, s{sSoffW} offen offset:1024 lds', tg), f's_add_u32 m0, s{sM0U}, {slot}', 's_nop 0'])
        g.append([(f'buffer_load_dwordx4 v{vDW}, {srd(sU)}, 0 offen lds', tg)])
        g.append([(f'buffer_load_dwordx4 v{vDW}, {srd(sU)}, s{sSoffW} offen offset:1024 lds', tg),
                  f's_add_u32 m0, s{sM0M}, {slot}', f'v_add_u32 v{vDW}, {32*PITCH}, v{vDW}'])
        g.append([(f'buffer_load_dwordx4 v{vDM}, {srd(sM)}, 0 offen lds', tg), f'v_add_u32 v{vDM}, {32*PITCH}, v{vDM}'])
        return g
    NIMM = 4
    KP = 140
    groups = dma(0) + dma(1) + dma(2) + dma(3)
    e('s_nop 7')
    n = 0; gi = 0
    kvst = []
    for i in range(4):
        for j in range(4):
            k1 = (n + 1) * len(groups) // 16
            emit_groups(e, groups[gi:k1]); gi = k1
            t_ = 236
            dst = (52 + 8 * n) if n < NIMM else (KP + 8 * (n - NIMM))
            for r in range(16): e(f'v_accvgpr_read_b32 v{t_+r}, {accKV[i][j][r]}')
            for r in range(8): e(f'v_cvt_pk_bf16_f32 v{dst+r}, v{t_+2*r}, v{t_+2*r+1}')
            for half in range(2):
                grp = [f's_add_u32 s4, s{sKVo + 2*j + half}, {i*8192}',
                       (f'buffer_store_dwordx4 v[{dst+4*half}:{dst+4*half+3}], v{vKVo}, {srd(sOKV)}, s4 offen {ST}', 'kvst')]
                if n < NIMM: emit_groups(e, [grp])
                else: kvst.append(grp)
            n += 1
    kvst = Spread(kvst)
    st('gu_conv')
    XA = [R('v', 52 + 4*i, 4) for i in range(2)]; XW = [R('v', 60 + 4*i, 4) for i in range(9)]
    YA = [R('v', 96 + 4*i, 4) for i in range(2)]; YW = [R('v', 104 + 4*i, 4) for i in range(9)]
    acc = {}
    n = 0
    for j in range(9):
        for i in range(2):
            acc[j, i] = R('a', 16 * n, 16) if n < 16 else R('v', 20 + 16 * (n - 16), 16)
            n += 1
    def wreads(j, ks, FW):
        if j < 8:
            base = vW0 if (j & 1) == 0 else vW1
            off = (GOFF if j < 4 else UOFF) + ((j & 3) >> 1) * 512
            return [f'ds_read_b64_tr_b16 {FW[j][2*i2:2*i2+2]}, v{base} offset:{off + (4*ks + i2)*1024}' for i2 in range(2)]
        return [f'ds_read_b64_tr_b16 {FW[j][2*i2:2*i2+2]}, v{vM} offset:{MOFF + (4*ks + i2)*128}' for i2 in range(2)]
    def reads(ks, FA, FW):
        r = wreads(0, ks, FW) + [f'ds_read_b128 {FA[i]}, v{vA} offset:{i*2048 + ks*1024}' for i in range(2)]
        for j in range(1, 9): r += wreads(j, ks, FW)
        return r
    def setaddr(t):
        so = (t % 4) * SS
        return [f'v_add_u32 v{c}, {so}, v{b}' for c, b in ((vA, vAb), (vW0, vW0b), (vW1, vW1b), (vM, vMb))]
    for x in setaddr(0): e(x)
    e.wait_vm(('gu', 0), barrier=True)
    st('gu_first')
    for x in reads(0, XA, XW): e.op(x)
    def mf(FA, FW, first): return [(acc[j, i], FW[j], FA[i], '0' if first else None) for j in range(9) for i in range(2)]
    for t in range(NST):
        fills = {}
        for k, x in enumerate(reads(1, YA, YW)): put(fills, k // 2, [x])
        if t + 1 < NST: put(fills, 11, setaddr(t + 1))
        for k, g in enumerate(kvst.take(2)): put(fills, 12 + 3*k, g)
        run_sub(e, mf(XA, XW, t == 0), fills)
        fills = {}
        if t + 1 < NST:
            e.wait_vm(('gu', t + 1), also_lgkm0=True, barrier=True)
            for k, x in enumerate(reads(0, XA, XW)): put(fills, k // 2, [x])
        if t + 4 < NST:
            for k, g in enumerate(dma(t + 4)): put(fills, 9 + k, g)
        if t == 16:
            assert 'kvst' not in e.vm and kvst.left() == 0
            put(fills, 2, publish_ops([f's_lshl_b32 s4, s{sCtKV}, 3', f's_add_u32 s4, s4, s{sTt}', 's_lshl_b32 s4, s4, 2', f's_add_u32 s4, s4, {FL_KV}'], 'L_pubkv'))
        run_sub(e, mf(YA, YW, False), fills)
    st('gu_loop')
    return dict(acc=acc, sCj=sCj, sFb=sFb, sMb=sMb, sTt=sTt, sO=sO)

def phase_attn(e, st, gu):
    accGU, sFb, sMb, sTtGU, sCj, sOact = gu['acc'], gu['sFb'], gu['sMb'], gu['sTt'], gu['sCj'], gu['sO']
    sXN, sWQ, sKF, sVF, sO = S0, S1, S2, S3, sOact
    sH, sP, sNS, sNL = 39, 40, 41, 42
    sCnt, sSoffA, sSoffW, sM0A, sM0W = 43, 44, 45, 46, 47
    sKd, sVd, sKoff, sVoff, sKmax, sWoff, sM0K, sM0V, sJt = 52, 53, 54, 55, 56, 57, 58, 59, 60
    sT0, sT1, sT2 = 61, 62, 63
    sK1, sK2 = 28, 29
    sHo = 30
    vA, vW0, vW1, vAb, vW0b, vW1b, vDA, vDW, vDKV, vK, vV = 3, 4, 5, 6, 7, 8, 9, 10, 11, 12, 13
    vT = 228
    e.lgkm0()
    e('s_barrier')
    e(f's_and_b32 s4, s{sIdx}, 3\ns_lshl_b32 s5, s{sXcd}, 2\ns_add_u32 s{sH}, s5, s4\ns_lshr_b32 s{sP}, s{sIdx}, 2')
    e(f's_lshl_b32 s{sNS}, s{sP}, 1\ns_add_u32 s{sNS}, s{sNS}, 2\ns_lshl_b32 s4, s{sP}, 1\ns_sub_u32 s{sNL}, 32, s4')
    srd_from(e, sWQ, pWq, SZ['wq']); srd_from(e, sXN, pWs, SZ_XN, WS_XN)
    srd_from(e, sKF, pWs, SZ_KF, WS_KF); srd_from(e, sVF, pWs, SZ_VF, WS_VF)
    e(f's_lshl_b32 s{sWoff}, s{sWave}, 12')
    e(f'v_add_u32 v{vDKV}, s{sWoff}, v{vL16}')
    e(f's_lshl_b32 s{sKoff}, s{sH}, 19')
    e(f's_sub_u32 s4, s{sNL}, 1\ns_lshl_b32 s4, s4, 14\ns_add_u32 s{sKmax}, s{sKoff}, s4\ns_mov_b32 s{sVoff}, s{sKoff}')
    QB = 65536; QSS = 24576; ACTB = 16384
    e(f's_add_u32 s4, s{sWoff}, {QB}\nv_add_u32 v{vAb}, s4, v{vL16}')
    lane_w_base(e, vW0b, vW1b, vT, 2, 1024)
    e(f'v_add_u32 v{vW0b}, {QB+ACTB}, v{vW0b}\nv_add_u32 v{vW1b}, {QB+ACTB}, v{vW1b}')
    e(f's_lshl_b32 s4, s{sP}, 2\ns_add_u32 s4, s4, s{sWave}\ns_mul_i32 s4, s4, {36*1024}\nv_add_u32 v{vDA}, s4, v{vL16}')
    e(f's_lshl_b32 s4, s{sP}, 3\ns_sub_u32 s4, 60, s4\ns_mul_i32 s4, s4, {36*1024}\ns_sub_u32 s{sSoffA}, s4, 2048')
    e('s_movk_i32 s6, 8192')
    lane_w_dma(e, vDW, vT, 6)
    e(f's_lshl_b32 s4, s{sH}, 8\ns_lshl_b32 s5, s{sWave}, 16\ns_add_u32 s4, s4, s5\nv_add_u32 v{vDW}, s4, v{vDW}')
    e(f's_mov_b32 s{sSoffW}, {4*8192 - 1024}')
    e(f's_add_u32 s{sM0A}, s{sWoff}, {QB}')
    e(f's_lshl_b32 s4, s{sWave}, 11\ns_add_u32 s{sM0W}, s4, {QB+ACTB}')
    def qdma(t):
        slot = (t % 4) * QSS; tg = ('q', t)
        g = []
        g.append([f's_add_u32 m0, s{sM0A}, {slot}', 's_nop 0', (f'buffer_load_dwordx4 v{vDA}, {srd(sXN)}, 0 offen sc1 lds', tg)])
        g.append([(f'buffer_load_dwordx4 v{vDA}, {srd(sXN)}, 0 offen offset:1024 sc1 lds', tg)])
        g.append([(f'buffer_load_dwordx4 v{vDA}, {srd(sXN)}, s{sSoffA} offen offset:2048 sc1 lds', tg)])
        g.append([(f'buffer_load_dwordx4 v{vDA}, {srd(sXN)}, s{sSoffA} offen offset:3072 sc1 lds', tg),
                  f's_add_u32 m0, s{sM0W}, {slot}', f'v_add_u32 v{vDA}, 2048, v{vDA}'])
        g.append([(f'buffer_load_dwordx4 v{vDW}, {srd(sWQ)}, 0 offen lds', tg)])
        g.append([(f'buffer_load_dwordx4 v{vDW}, {srd(sWQ)}, s{sSoffW} offen offset:1024 lds', tg), f'v_add_u32 v{vDW}, {32*8192}, v{vDW}'])
        return g
    GP = 56
    conv = []
    T0 = 184
    for i in range(2):
        m = accGU[8, i]
        for r in range(8): conv.append(f'v_cvt_pk_bf16_f32 {m[r]}, {m[2*r]}, {m[2*r+1]}')
    k = 0
    for j in range(4):
        for i in range(2):
            n = 2*j + i
            for which, src in ((0, accGU[j, i]), (1, accGU[4 + j, i])):
                t_ = T0 + 16 * (k % 2); k += 1
                for r in range(16): conv.append(f'v_accvgpr_read_b32 v{t_+r}, {src[r]}')
                for r in range(8): conv.append(f'v_cvt_pk_bf16_f32 v{GP + 16*n + 8*which + r}, v{t_+2*r}, v{t_+2*r+1}')
    groups = qdma(0) + qdma(1) + qdma(2)
    per = (len(conv) + len(groups) - 1) // len(groups)
    e('s_nop 7')
    for k, g in enumerate(groups):
        emit_groups(e, [g])
        for x in conv[k*per:(k+1)*per]: e(x)
    st('q_conv')
    e(f's_mov_b32 s{sK1}, {f2u(GK1):#x}\ns_mov_b32 s{sK2}, {f2u(GK2):#x}\ns_mov_b32 s31, 0xffff0000')
    vK1 = 230
    e(f'v_mov_b32 v{vK1}, s{sK1}')
    e(f's_lshl_b32 s4, s{sTtGU}, 3\ns_lshl_b32 s5, s{sWave}, 1\ns_add_u32 s4, s4, s5\ns_mul_i32 s4, s4, {544*1024}\ns_add_u32 s{sHo}, s4, {256*1024}')
    e(f's_lshl_b32 s{sFb}, s{sFb}, 6\ns_add_u32 s{sFb}, s{sFb}, s{sHo}\ns_lshl_b32 s{sMb}, s{sMb}, 6\ns_add_u32 s{sMb}, s{sMb}, s{sHo}')
    Gt, Ut, Et, Pt = 184, 192, 200, 208
    frs = []
    for i in range(2):
        for j in range(4):
            n = 2*j + i
            for half in range(2):
                frs.append((GP + 16*n + 4*half, GP + 16*n + 8 + 4*half, sFb, i*544*1024 + j*2048 + half*1024))
        m = accGU[8, i].base
        frs.append((m, m + 4, sMb, i*544*1024))
    def gelu_frag(k):
        gp, up, sb, off = frs[k]
        o = []
        for r in range(4):
            o += [f'v_lshlrev_b32 v{Gt+2*r}, 16, v{gp+r}', f'v_and_b32 v{Gt+2*r+1}, s31, v{gp+r}']
        for r in range(8): o.append(f'v_mul_f32 v{Et+r}, v{Gt+r}, v{Gt+r}')
        for r in range(4):
            o += [f'v_lshlrev_b32 v{Ut+2*r}, 16, v{up+r}', f'v_and_b32 v{Ut+2*r+1}, s31, v{up+r}']
        for r in range(8): o.append(f'v_fma_f32 v{Et+r}, v{Et+r}, s{sK2}, v{vK1}')
        for r in range(8): o.append(f'v_mul_f32 v{Et+r}, v{Gt+r}, v{Et+r}')
        for r in range(8): o += [f'v_exp_f32 v{Et+r}, v{Et+r}', f'v_mul_f32 v{Gt+r}, v{Gt+r}, v{Ut+r}']
        for r in range(8): o.append(f'v_add_f32 v{Et+r}, 1.0, v{Et+r}')
        for r in range(8): o.append(f'v_rcp_f32 v{Et+r}, v{Et+r}')
        for r in range(8): o.append(f'v_mul_f32 v{Gt+r}, v{Gt+r}, v{Et+r}')
        for r in range(4): o.append(f'v_cvt_pk_bf16_f32 v{gp+r}, v{Gt+2*r}, v{Gt+2*r+1}')
        return o
    def h_store(k):
        gp, up, sb, off = frs[k]
        return [f's_add_u32 s4, s{sb}, {off}', (f'buffer_store_dwordx4 v[{gp}:{gp+3}], v{vL16}, {srd(sO)}, s4 offen {ST}', 'hst')]
    QA = [[R('a', 64*x + 16*j, 16) for j in range(4)] for x in range(2)]
    XA = [R('a', 128 + 4*i, 4) for i in range(2)]; XW = [R('a', 136 + 4*i, 4) for i in range(4)]
    YA = [R('a', 152 + 4*i, 4) for i in range(2)]; YW = [R('a', 160 + 4*i, 4) for i in range(4)]
    def q_reads(ks, FA, FW):
        r = []
        def wrd(j):
            base = vW0 if (j & 1) == 0 else vW1
            for i2 in range(2):
                r.append(f'ds_read_b64_tr_b16 {FW[j][2*i2:2*i2+2]}, v{base} offset:{(4*ks + i2)*1024 + (j >> 1)*512}')
        wrd(0)
        for i in range(2): r.append(f'ds_read_b128 {FA[i]}, v{vA} offset:{i*2048 + ks*1024}')
        for j in range(1, 4): wrd(j)
        return r
    def q_mf(FA, FW, first):
        return [(QA[x][j], FW[j], FA[1 - x], '0' if first else None) for j in range(4) for x in range(2)]
    def qaddr(t):
        so = (t % 4) * QSS
        return [f'v_add_u32 v{c}, {so}, v{b}' for c, b in ((vA, vAb), (vW0, vW0b), (vW1, vW1b))]
    def dma_tile(srd_, soff, tag):
        return [(f'buffer_load_dwordx4 v{vDKV}, {srd(srd_)}, s{soff} offen offset:{1024*i} sc1 lds', tag) for i in range(4)]
    def adv(soff):
        return [f's_add_u32 s{soff}, s{soff}, 16384', f's_min_u32 s{soff}, s{soff}, s{sKmax}']
    def tile_groups(srd_, soff, ldsoff, tag):
        d = dma_tile(srd_, soff, tag)
        return [[f's_add_u32 m0, s{sWoff}, {ldsoff}', 's_nop 0', d[0]], [d[1]], [d[2]], [d[3]] + adv(soff)]
    for x in qaddr(0): e(x)
    e.wait_vm(('q', 0), barrier=True)
    st('q_first')
    for x in q_reads(0, XA, XW): e.op(x)
    NST = 18
    vPoll, vPo = 232, 233
    for t in range(NST):
        gl = gelu_frag(t) + h_store(t)
        gsp = [gl[k * len(gl) // 16:(k + 1) * len(gl) // 16] for k in range(16)]
        fills = {}
        for k, x in enumerate(q_reads(1, YA, YW)): put(fills, k // 2, [x])
        for k in range(8): put(fills, k, gsp[k])
        if t == 10:
            put(fills, 7, [f'v_and_b32 v{vPo}, 7, v{vLane}', f'v_lshlrev_b32 v{vPo}, 2, v{vPo}', f'v_lshrrev_b32 v{vPoll}, 3, v{vLane}',
                           f'v_and_b32 v{vPoll}, 1, v{vPoll}', f'v_lshlrev_b32 v{vPoll}, 9, v{vPoll}', f'v_add_u32 v{vPo}, v{vPo}, v{vPoll}',
                           f's_lshr_b32 s5, s{sH}, 1', 's_lshl_b32 s5, s5, 5', f's_add_u32 s{sT2}, s5, {FL_KV}',
                           (f'buffer_load_dword v{vPoll}, v{vPo}, {srd(SF)}, s{sT2} offen sc1', 'poll')])
        run_sub(e, q_mf(XA, XW, t == 0), fills)
        fills = {}
        if t + 1 < NST:
            e.wait_vm(('q', t + 1), also_lgkm0=True, barrier=True)
            for x in qaddr(t + 1): e(x)
            for k, x in enumerate(q_reads(0, XA, XW)): put(fills, k // 2, [x])
        if t == 13:
            flag_check(e, vPoll, vPo, f's{sT2}', 16)
        dm = []
        if t + 3 < NST: dm += qdma(t + 3)
        for k, g in enumerate(dm): put(fills, min(1 + k * 7 // max(len(dm), 1), 7), g)
        for k in range(8): put(fills, k, gsp[8 + k])
        run_sub(e, q_mf(YA, YW, False), fills)
    st('q_loop')
    return attn_main(e, st, locals())

def attn_main(e, st, L):
    g = lambda k: L[k]
    sKF, sVF, sO = g('sKF'), g('sVF'), g('sO')
    sH, sP, sNS, sNL, sCnt = g('sH'), g('sP'), g('sNS'), g('sNL'), g('sCnt')
    sKd, sVd, sKoff, sVoff, sKmax, sWoff, sM0K, sM0V, sJt = [g(k) for k in ('sKd', 'sVd', 'sKoff', 'sVoff', 'sKmax', 'sWoff', 'sM0K', 'sM0V', 'sJt')]
    sT0, sT1, sT2 = g('sT0'), g('sT1'), g('sT2')
    vDKV, vK, vV = g('vDKV'), g('vK'), g('vV')
    QA, tile_groups, dma_tile, adv = g('QA'), g('tile_groups'), g('dma_tile'), g('adv')
    sCj, sTtGU = g('sCj'), g('sTtGU')
    vDelta = [17, 18]; vl = [19, 20]; vDl = 21; vNI = 22; vT = 14
    Q = [[R('v', 24 + 32*x + 4*s, 4) for s in range(8)] for x in range(2)]
    S = [[R('v', 88 + 32*x + 16*kb, 16) for kb in range(2)] for x in range(2)]
    P = [[R('v', 152 + 16*x + 4*u, 4) for u in range(4)] for x in range(2)]
    NM = [R('v', 184 + 16*x, 16) for x in range(2)]
    O = [[R('a', 64*x + 16*t, 16) for t in range(4)] for x in range(2)]
    F = [R('a', 128 + 4*i, 4) for i in range(16)]
    TMP = 216
    L_, S_ = 0, 1
    e.lgkm0()
    e('s_barrier')
    groups = tile_groups(sKF, sKoff, 0, ('K', 0)) + tile_groups(sKF, sKoff, 16384, ('K', 1)) + tile_groups(sVF, sVoff, 65536, ('V', 0)) + \
             tile_groups(sKF, sKoff, 32768, ('K', 2)) + tile_groups(sKF, sKoff, 49152, ('K', 3)) + tile_groups(sVF, sVoff, 65536 + 16384, ('V', 1))
    e(f's_mov_b32 s{sT0}, {f2u(QSCALE):#x}')
    e('s_nop 7')
    order = [(x, j) for x in range(2) for j in range(4)]
    gi = 0
    for oi, (x, j) in enumerate(order):
        emit_groups(e, groups[3*oi:3*oi+3])
        t_ = TMP + 16 * (j % 2)
        for r in range(16): e(f'v_accvgpr_read_b32 v{t_+r}, {QA[x][j][r]}')
        for r in range(16): e(f'v_mul_f32 v{t_+r}, s{sT0}, v{t_+r}')
        for half in range(2):
            for r in range(4):
                e(f'v_cvt_pk_bf16_f32 {Q[x][2*j+half][r]}, v{t_+8*half+2*r}, v{t_+8*half+2*r+1}')
    e.wait_vm(('K', 0), barrier=True)
    for f in range(16): e.ds(f'ds_read_b128 {F[f]}, v{vL16} offset:{f*1024}')
    e(f'v_and_b32 v{vT}, 31, v{vLane}\nv_lshrrev_b32 v{vT+1}, 5, v{vLane}\nv_lshlrev_b32 v{vT+1}, 2, v{vT+1}\nv_sub_u32 v{vT}, v{vT}, v{vT+1}')
    e(f's_lshl_b32 s{sT0}, s{sWave}, 5')
    e(f's_sub_u32 s{sT1}, 15, s{sP}\ns_lshl_b32 s{sT1}, s{sT1}, 7\ns_add_u32 s{sT1}, s{sT1}, s{sT0}')
    e(f'v_add_u32 v{vDelta[L_]}, s{sT1}, v{vT}')
    e(f's_lshl_b32 s{sT1}, s{sP}, 7\ns_add_u32 s{sT1}, s{sT1}, s{sT0}')
    e(f'v_add_u32 v{vDelta[S_]}, s{sT1}, v{vT}')
    e(f'v_mov_b32 v{vNI}, {NEG_INF:#x}')
    def mask_burst(x, kb, Sx=None):
        Sx = Sx if Sx is not None else S[x][kb]
        o = [f's_add_u32 s{sT2}, s{sJt}, {32*kb}', f'v_subrev_u32 v{vDl}, s{sT2}, v{vDelta[x]}']
        def cmp(r):
            cr = (r & 3) + 8 * (r >> 2)
            return f'v_cmp_ge_i32 s[{MK[r%4]}:{MK[r%4]+1}], v{vDl}, {cr}'
        o += [cmp(0), cmp(1), cmp(2)]
        for r in range(16):
            o.append(f'v_cndmask_b32 {Sx[r]}, v{vNI}, {Sx[r]}, s[{MK[r%4]}:{MK[r%4]+1}]')
            if r + 3 < 16: o.append(cmp(r + 3))
        return o
    zer = [f'v_accvgpr_write_b32 a{i}, 0' for i in range(128)]
    k = 0
    for x in range(2):
        for kb in range(2):
            for s_ in range(8):
                e.mf(S[x][kb], F[kb*8+s_], Q[x][s_], '0' if s_ == 0 else None)
                for z in zer[4*k:4*k+4]: e(z)
                k += 1
    e(f's_mov_b32 s{sJt}, 0')
    e('s_nop 7\ns_nop 7')
    for x in range(2):
        for kb in range(2):
            for i in mask_burst(x, kb): e(i)
        m = TMP
        allr = [S[x][kb][r] for kb in range(2) for r in range(16)]
        e(f'v_max3_f32 v{m}, {allr[0]}, {allr[1]}, {allr[2]}')
        for k in range(3, 31, 2): e(f'v_max3_f32 v{m}, v{m}, {allr[k]}, {allr[k+1]}')
        e(f'v_max_f32 v{m}, v{m}, {allr[31]}')
        e(f'v_mov_b32 v{m+1}, v{m}\ns_nop 1\nv_permlane32_swap_b32 v{m}, v{m+1}\ns_nop 1')
        e(f'v_max_f32 v{m}, v{m}, v{m+1}')
        e(f'v_sub_f32 {NM[x][0]}, 0, v{m}')
        for r in range(1, 16): e(f'v_mov_b32 {NM[x][r]}, {NM[x][0]}')
        for rr in allr: e(f'v_add_f32 {rr}, {rr}, {NM[x][0]}')
        for r in range(16): e(f'v_exp_f32 {S[x][0][r]}, {S[x][0][r]}')
        for r in range(6): e(f'v_exp_f32 {S[x][1][r]}, {S[x][1][r]}')
        e(f'v_mov_b32 v{vl[x]}, {S[x][0][0]}')
        for r in range(1, 16): e(f'v_add_f32 v{vl[x]}, v{vl[x]}, {S[x][0][r]}')
        for r in range(5): e(f'v_add_f32 v{vl[x]}, v{vl[x]}, {S[x][1][r]}')
        for q in range(8): e(f'v_cvt_pk_bf16_f32 {P[x][q >> 2][q & 3]}, {S[x][0][2*q]}, {S[x][0][2*q+1]}')
    st('tile0')
    assert e.vm_count('hst') is None or e.vm_count('hst') > e.vm_count(('V', 0))  or True
    e.wait_vm(('V', 1), also_lgkm0=True, barrier=True)
    assert 'hst' not in e.vm
    for x in publish_ops([f's_lshl_b32 s4, s{sTtGU}, 5', f's_add_u32 s4, s4, s{sCj}', 's_lshl_b32 s4, s4, 2', f's_add_u32 s4, s4, {FL_GU}'], 'L_pubgu'):
        e.op(*(x if isinstance(x, tuple) else (x,)))
    emit_groups(e, tile_groups(sKF, sKoff, 0, ('K', 4)) + tile_groups(sVF, sVoff, 65536 + 32768, ('V', 2)))
    e(f's_mov_b32 s{sKd}, 16384\ns_mov_b32 s{sVd}, 49152\ns_mov_b32 s{sJt}, 64')
    e(f'v_add_u32 v{vK}, 16384, v{vL16}\nv_add_u32 v{vV}, 65536, v{vL16}')
    def frag_read(f):
        ff = f % 32
        if ff < 8: return f'ds_read_b128 {F[ff % 16]}, v{vK} offset:{ff*1024}'
        if ff < 16: return f'ds_read_b128 {F[ff % 16]}, v{vV} offset:{(ff-8)*1024}'
        if ff < 24: return f'ds_read_b128 {F[ff % 16]}, v{vK} offset:{(8 + ff-16)*1024}'
        return f'ds_read_b128 {F[ff % 16]}, v{vV} offset:{(8 + ff-24)*1024}'
    def mfma(D, A, B, C=None): return f'v_mfma_f32_32x32x16_bf16 {D}, {A}, {B}, {C if C is not None else D}'
    for f in range(8): e(frag_read(f))
    def E(x, g_):
        g_ %= 32
        if 10 <= g_ <= 25: return S[x][0][g_-10]
        if g_ >= 26: return S[x][1][g_-26]
        return S[x][1][g_+6]
    def valu(x, g_, old, new):
        o = []
        if (old if g_ <= 9 else new): o.append(f'v_exp_f32 {E(x, g_)}, {E(x, g_)}')
        gp = (g_ - 1) % 32
        prev_old = (gp <= 9) or (g_ == 0)
        if (old if prev_old else new): o.append(f'v_add_f32 v{vl[x]}, v{vl[x]}, {E(x, gp)}')
        if g_ % 2 == 0:
            if g_ <= 14 and old:
                q = g_ // 2
                o.append(f'v_cvt_pk_bf16_f32 {P[x][2 + (q >> 2)][q & 3]}, {S[x][1][2*q]}, {S[x][1][2*q+1]}')
            if g_ >= 16 and new:
                q = (g_ - 16) // 2
                o.append(f'v_cvt_pk_bf16_f32 {P[x][q >> 2][q & 3]}, {S[x][0][2*q]}, {S[x][0][2*q+1]}')
        return o
    def strip(l): return [x[0] if isinstance(x, tuple) else x for x in l]
    def book(g_):
        o = []
        if g_ == 17: o += [f's_add_u32 s{sM0K}, s{sKd}, s{sWoff}', f's_add_u32 s{sKd}, s{sKd}, 16384', f's_and_b32 s{sKd}, s{sKd}, 0xffff']
        if g_ == 19: o += [f's_add_u32 s{sM0V}, s{sVd}, s{sWoff}', f's_add_u32 s{sVd}, s{sVd}, 16384', f's_and_b32 s{sVd}, s{sVd}, 0xffff']
        if g_ == 21: o += [f's_add_u32 s{sT1}, s{sVd}, 16384', f's_and_b32 s{sT1}, s{sT1}, 0xffff', f's_add_u32 s{sT1}, s{sT1}, 65536', f's_add_u32 s{sM0V}, s{sM0V}, 65536']
        if g_ == 23: o += [f'v_add_u32 v{vK}, s{sKd}, v{vL16}']
        dk = strip(dma_tile(sKF, sKoff, None)); dv = strip(dma_tile(sVF, sVoff, None))
        if g_ == 24: o += [f'v_add_u32 v{vV}, s{sT1}, v{vL16}', f's_mov_b32 m0, s{sM0K}', 's_nop 0', dk[0]]
        if g_ in (25, 26): o += [dk[g_-24]]
        if g_ == 27: o += [dk[3], f's_mov_b32 m0, s{sM0V}'] + adv(sKoff)
        if g_ in (28, 29, 30): o += [dv[g_-28]]
        if g_ == 31: o += [dv[3]] + adv(sVoff) + [f's_add_u32 s{sJt}, s{sJt}, 64']
        return o
    def step(qk, pv, masked):
        for f in range(32):
            isK = f < 8 or 16 <= f < 24
            act = qk if isK else pv
            if f == 24: e('s_waitcnt vmcnt(8) lgkmcnt(4)\ns_barrier')
            elif f % 4 == 0: e('s_waitcnt lgkmcnt(4)')
            todo = {x: valu(x, f, x in pv, x in qk) for x in range(2) if (x in pv or x in qk)}
            pre = []
            if f in (10, 26):
                for x in masked: pre += mask_burst(x, 0 if f == 10 else 1)
            first = True
            for x in act:
                if isK:
                    kb = 0 if f < 8 else 1; s_ = f % 8
                    e(mfma(S[x][kb], F[f % 16], Q[x][s_], NM[x] if s_ == 0 else None))
                else:
                    u = ((f - 8) // 4) if f < 16 else 2 + (f - 24) // 4; t = f % 4
                    e(mfma(O[x][t], F[f % 16], P[x][u]))
                if first:
                    e(frag_read(f + 8))
                    for i in book(f): e(i)
                    for i in pre: e(i)
                    for y in list(todo):
                        if y not in act:
                            for i in todo.pop(y): e(i)
                    first = False
                for i in todo.pop(x): e(i)
    def loop(lab, cnt_sreg, body):
        e(f's_cmp_eq_u32 s{cnt_sreg}, 0\ns_cbranch_scc1 {lab}_end')
        e('.p2align 6')
        e.label(lab)
        body()
        e(f's_sub_u32 s{cnt_sreg}, s{cnt_sreg}, 1\ns_cmp_lg_u32 s{cnt_sreg}, 0\ns_cbranch_scc1 {lab}')
        e.label(lab + '_end')
    def ctx_base(x):
        if x == L_: e(f's_sub_u32 s{sT0}, 15, s{sP}\ns_lshl_b32 s{sT0}, s{sT0}, 2')
        else: e(f's_lshl_b32 s{sT0}, s{sP}, 2')
        e(f's_add_u32 s{sT0}, s{sT0}, s{sWave}\ns_mul_i32 s{sT0}, s{sT0}, 544\ns_lshl_b32 s{sT1}, s{sH}, 3\ns_add_u32 s{sT0}, s{sT0}, s{sT1}\ns_lshl_b32 s{sT0}, s{sT0}, 10')
    def epi(x, check, Ox=None, pre_groups=None):
        Ox = Ox if Ox is not None else O[x]
        T0 = TMP
        e(f'v_mov_b32 v{T0}, v{vl[x]}\ns_nop 1\nv_permlane32_swap_b32 v{vl[x]}, v{T0}\ns_nop 1')
        e(f'v_add_f32 v{vl[x]}, v{vl[x]}, v{T0}')
        if check:
            e(f'v_mov_b32 v{T0+1}, 0x5d800000')
            e(f'v_cmp_nlt_f32 vcc, v{vl[x]}, v{T0+1}')
        e(f'v_rcp_f32 v{T0}, v{vl[x]}')
        e('s_nop 1')
        if check:
            e(f's_or_b32 s{sSlow}, s{sSlow}, vcc_lo\ns_or_b32 s{sSlow}, s{sSlow}, vcc_hi')
        ctx_base(x)
        for t in range(4):
            ee = T0 + 4 + 16 * (t % 2)
            for r in range(16): e(f'v_accvgpr_read_b32 v{ee+r}, {Ox[t][r]}')
            for r in range(16): e(f'v_mul_f32 v{ee+r}, v{ee+r}, v{T0}')
            for r in range(8): e(f'v_cvt_pk_bf16_f32 v{ee+r}, v{ee+2*r}, v{ee+2*r+1}')
            e(f's_add_u32 s{sT1}, s{sT0}, {t*2048}')
            e(f'buffer_store_dwordx4 v[{ee}:{ee+3}], v{vL16}, {srd(sO)}, s{sT1} offen {ST}')
            e(f'buffer_store_dwordx4 v[{ee+4}:{ee+7}], v{vL16}, {srd(sO)}, s{sT1} offen offset:1024 {ST}')
    e(f's_sub_u32 s{sCnt}, s{sNS}, 3\ns_max_i32 s{sCnt}, s{sCnt}, 0')
    loop('LAT_A', sCnt, lambda: step([L_, S_], [L_, S_], []))
    st('A')
    e(f's_sub_u32 s{sCnt}, s{sNS}, 1\ns_min_u32 s{sCnt}, s{sCnt}, 2')
    loop('LAT_B', sCnt, lambda: step([L_, S_], [L_, S_], [S_]))
    def pfx(ptr, key, k, n):
        if 'nopf2' in sys.argv: return
        for x in pf_ops(ptr, key, k, n): e(x[0] if isinstance(x, tuple) else x)
    pfx(pWd, 'wd', 0, 2)
    step([L_], [L_, S_], [L_])
    e('s_nop 7\ns_nop 7')
    st('BC')
    pfx(pWd, 'wd', 1, 2)
    epi(S_, True)
    pfx(pWo, 'wo', 0, 1)
    st('epiS')
    e(f's_sub_u32 s{sCnt}, s{sNL}, s{sNS}\ns_sub_u32 s{sCnt}, s{sCnt}, 3\ns_max_i32 s{sCnt}, s{sCnt}, 0')
    loop('LAT_D', sCnt, lambda: step([L_], [L_], []))
    st('D')
    e(f's_cmp_eq_u32 s{sP}, 7\ns_cselect_b32 s{sCnt}, 1, 2')
    loop('LAT_E', sCnt, lambda: step([L_], [L_], [L_]))
    for f in range(8, 16): e(frag_read(f))
    for g_ in range(0, 16):
        for i in valu(L_, g_, True, False): e(i)
    e('s_waitcnt lgkmcnt(0)')
    for k, f in enumerate(range(8, 16)):
        e(mfma(O[L_][f % 4], F[f % 16], P[L_][(f - 8) // 4]))
        e(frag_read(24 + k))
    e('s_waitcnt lgkmcnt(0)')
    for f in range(24, 32): e(mfma(O[L_][f % 4], F[f % 16], P[L_][2 + (f - 24) // 4]))
    e('s_nop 7\ns_nop 7')
    epi(L_, True)
    st('epiL')
    if 'forceslow' in sys.argv: e(f's_mov_b32 s{sSlow}, 1')
    e('s_waitcnt vmcnt(0) lgkmcnt(0)\ns_barrier')
    e(f'v_mov_b32 v{TMP}, s{sSlow}\nv_lshlrev_b32 v{TMP+1}, 2, v0\nv_and_b32 v{TMP+1}, 0x300, v{TMP+1}\nv_lshrrev_b32 v{TMP+1}, 6, v{TMP+1}')
    e(f'ds_write_b32 v{TMP+1}, v{TMP}\ns_waitcnt lgkmcnt(0)\ns_barrier')
    e(f'v_mov_b32 v{TMP+1}, 0\nds_read_b128 v[{TMP+4}:{TMP+7}], v{TMP+1}\ns_waitcnt lgkmcnt(0)')
    e(f'v_or_b32 v{TMP+4}, v{TMP+4}, v{TMP+5}\nv_or_b32 v{TMP+6}, v{TMP+6}, v{TMP+7}\nv_or_b32 v{TMP+4}, v{TMP+4}, v{TMP+6}\ns_nop 0')
    e(f'v_readfirstlane_b32 s{sSlow}, v{TMP+4}')
    e('s_barrier')
    e(f's_cmp_eq_u32 s{sSlow}, 0\ns_cbranch_scc1 L_noslow')
    for x in (L_, S_):
        lab = f'L_sl{x}'
        vm = TMP + 36
        Ox = O[0]
        for i in range(64): e(f'v_accvgpr_write_b32 a{i}, 0')
        e(f'v_mov_b32 v{vm}, v{vNI}\nv_mov_b32 v{vl[x]}, 0')
        e(f's_lshl_b32 s{sKoff}, s{sH}, 19\ns_mov_b32 s{sJt}, 0')
        e(f's_mov_b32 s{sCnt}, s{sNL if x == L_ else sNS}')
        e.label(lab)
        e('s_barrier')
        e(f's_mov_b32 m0, s{sWoff}\ns_nop 0')
        for i in strip(dma_tile(sKF, sKoff, None)): e(i)
        e(f's_add_u32 m0, s{sWoff}, 16384\ns_nop 0')
        for i in strip(dma_tile(sVF, sKoff, None)): e(i)
        e(f's_add_u32 s{sKoff}, s{sKoff}, 16384')
        e('s_waitcnt vmcnt(0)\ns_barrier')
        for f in range(16): e(f'ds_read_b128 {F[f]}, v{vL16} offset:{f*1024}')
        e('s_waitcnt lgkmcnt(0)')
        for kb in range(2):
            for s_ in range(8): e(mfma(S[0][kb], F[kb*8+s_], Q[x][s_], '0' if s_ == 0 else None))
        for f in range(16): e(f'ds_read_b128 {F[f]}, v{vL16} offset:{16384 + f*1024}')
        e('s_nop 7\ns_nop 7')
        for kb in range(2):
            for i in mask_burst(x, kb, S[0][kb]): e(i)
        allr = [S[0][kb][r] for kb in range(2) for r in range(16)]
        m = TMP
        e(f'v_max3_f32 v{m}, {allr[0]}, {allr[1]}, {allr[2]}')
        for k in range(3, 31, 2): e(f'v_max3_f32 v{m}, v{m}, {allr[k]}, {allr[k+1]}')
        e(f'v_max3_f32 v{m}, v{m}, {allr[31]}, v{vm}')
        e(f'v_mov_b32 v{m+1}, v{m}\ns_nop 1\nv_permlane32_swap_b32 v{m}, v{m+1}\ns_nop 1')
        e(f'v_max_f32 v{m}, v{m}, v{m+1}')
        e(f'v_sub_f32 v{m+1}, v{vm}, v{m}\nv_exp_f32 v{m+1}, v{m+1}\nv_mov_b32 v{vm}, v{m}')
        for rr in allr: e(f'v_sub_f32 {rr}, {rr}, v{m}')
        for rr in allr: e(f'v_exp_f32 {rr}, {rr}')
        e(f'v_mul_f32 v{vl[x]}, v{vl[x]}, v{m+1}')
        for rr in allr: e(f'v_add_f32 v{vl[x]}, v{vl[x]}, {rr}')
        for kb in range(2):
            for q in range(8): e(f'v_cvt_pk_bf16_f32 {P[0][2*kb + (q >> 2)][q & 3]}, {S[0][kb][2*q]}, {S[0][kb][2*q+1]}')
        for i in range(64):
            e(f'v_accvgpr_read_b32 v{m+2}, a{i}\nv_mul_f32 v{m+2}, v{m+2}, v{m+1}\nv_accvgpr_write_b32 a{i}, v{m+2}')
        e('s_waitcnt lgkmcnt(0)\ns_nop 1')
        for u in range(4):
            for t in range(4): e(mfma(Ox[t], F[u*4+t], P[0][u]))
        e(f's_add_u32 s{sJt}, s{sJt}, 64')
        e(f's_sub_u32 s{sCnt}, s{sCnt}, 1\ns_cmp_lg_u32 s{sCnt}, 0\ns_cbranch_scc1 {lab}')
        e('s_nop 7\ns_nop 7')
        epi(x, False, Ox)
    e('s_waitcnt vmcnt(0)\ns_barrier')
    e.label('L_noslow')
    st('slowchk')
    for x, lab in ((L_, 'L_pubcl'), (S_, 'L_pubcs')):
        ops = ([f's_sub_u32 s4, 15, s{sP}'] if x == L_ else [f's_mov_b32 s4, s{sP}']) + \
              ['s_lshl_b32 s4, s4, 5', f's_add_u32 s4, s4, s{sH}', 's_lshl_b32 s4, s4, 2', f's_add_u32 s4, s4, {FL_CTX}']
        for xx in publish_ops(ops, lab): e.op(*(xx if isinstance(xx, tuple) else (xx,)))
    e.vm = []; e.lg = []

HS = [15, 14, 14, 14, 15]
CS = [12, 13, 13, 13, 13]
def phase_fin(e, st):
    NS = 4; SS = 40960; ACTB = 16384; PITCH = 1152; ND = 10
    def mfma(D, A, B, C=None): return f'v_mfma_f32_32x32x16_bf16 {D}, {A}, {B}, {C if C is not None else D}'
    e(f's_cmp_ge_u32 s{sIdx}, 30\ns_cbranch_scc1 L_end')
    sW, sA, sO = S0, S1, S2
    sTt, sNt, sSp, sCnt, sDst, sStage, sRem = 32, 33, 34, 35, 36, 37, 38
    sSo = 39
    sM0A, sM0W, sDeltaA, sDeltaW, sT0, sT1, sT2, sNst = 45, 46, 47, 48, 49, 50, 51, 52
    sHst, sHn, sCst, sCn = 54, 55, 56, 57
    vA, vAb, vDA, vDW, vT = 3, 4, 5, 6, 7
    vW0b, vW1b = 10, 11
    vB = [12, 13, 14]; vBb = [15, 16, 17]
    vPoll, vPo = 18, 19
    FS = [([R('v', 160 + 20*b + 4*i, 4) for i in range(2)], [R('v', 168 + 20*b + 4*i, 4) for i in range(3)]) for b in range(4)]
    acc = {(j, i): R('v', 64 + 16 * (2*j + i), 16) for j in range(3) for i in range(2)}
    e(f's_cmp_ge_u32 s{sIdx}, 15\ns_cselect_b32 s4, 1, 0\ns_mul_i32 s5, s4, 15\ns_sub_u32 s5, s{sIdx}, s5')
    e(f's_lshl_b32 s6, s{sXcd}, 1\ns_add_u32 s{sTt}, s6, s4')
    e(f's_mul_i32 s6, s5, 86\ns_lshr_b32 s{sSp}, s6, 8\ns_mul_i32 s6, s{sSp}, 3\ns_sub_u32 s{sNt}, s5, s6')
    e(f'v_and_b32 v{vPo}, 31, v{vLane}\nv_lshlrev_b32 v{vPo}, 2, v{vPo}')
    e(f's_lshr_b32 s4, s{sTt}, 1\ns_lshl_b32 s4, s4, 7\ns_add_u32 s{sT2}, s4, {FL_GU}')
    e.vmem(f'buffer_load_dword v{vPoll}, v{vPo}, {srd(SF)}, s{sT2} offen sc1', 'poll')
    hst = [sum(HS[:i]) for i in range(5)]; cst = [sum(CS[:i]) for i in range(5)]
    e(f's_mov_b32 s{sHst}, {hst[0]}\ns_mov_b32 s{sHn}, {HS[0]}\ns_mov_b32 s{sCst}, {cst[0]}\ns_mov_b32 s{sCn}, {CS[0]}')
    for i in range(1, 5):
        e(f's_cmp_eq_u32 s{sSp}, {i}\ns_cselect_b32 s{sHst}, {hst[i]}, s{sHst}\ns_cselect_b32 s{sHn}, {HS[i]}, s{sHn}\ns_cselect_b32 s{sCst}, {cst[i]}, s{sCst}\ns_cselect_b32 s{sCn}, {CS[i]}, s{sCn}')
    e(f's_add_u32 s{sNst}, s{sHn}, s{sCn}')
    srd_from(e, sW, pWd, SZ['wd']); srd_from(e, sA, pWs, SZ_ACT2, WS_ACT2); srd_from(e, sO, pWs, SZ_PART, WS_PART)
    e(f's_and_b32 s4, s{sWave}, 1\ns_lshl_b32 s4, s4, 13\nv_add_u32 v{vAb}, s4, v{vL16}')
    lane_w_base(e, vW0b, vW1b, vT, 1, 512)
    e(f'v_add_u32 v{vW0b}, {ACTB}, v{vW0b}\nv_add_u32 v{vW1b}, {ACTB}, v{vW1b}')
    e(f's_lshr_b32 s4, s{sWave}, 1\ns_cmp_eq_u32 s4, 0\ns_cbranch_scc0 LF_wn1')
    e(f'v_mov_b32 v{vBb[0]}, v{vW0b}\nv_mov_b32 v{vBb[1]}, v{vW1b}\nv_add_u32 v{vBb[2]}, 8192, v{vW0b}\ns_branch LF_wn2')
    e.label('LF_wn1')
    e(f'v_add_u32 v{vBb[0]}, 8192, v{vW1b}\nv_add_u32 v{vBb[1]}, 16384, v{vW0b}\nv_add_u32 v{vBb[2]}, 16384, v{vW1b}')
    e.label('LF_wn2')
    e(f's_lshl_b32 s4, s{sTt}, 2\ns_add_u32 s4, s4, s{sWave}\ns_mul_i32 s4, s4, 544\ns_lshl_b32 s5, s{sHst}, 2\ns_add_u32 s4, s4, s5\ns_add_u32 s4, s4, 256\ns_lshl_b32 s4, s4, 10')
    e(f'v_add_u32 v{vDA}, s4, v{vL16}')
    e(f's_add_u32 s4, s{sHst}, s{sHn}\ns_lshl_b32 s4, s4, 2\ns_add_u32 s4, s4, 256\ns_lshl_b32 s5, s{sCst}, 2\ns_sub_u32 s4, s5, s4\ns_lshl_b32 s4, s4, 10\ns_add_u32 s{sDeltaA}, s4, 4096')
    e(f'v_lshrrev_b32 v{vT}, 3, v{vLane}\nv_mul_u32_u24 v{vDW}, {PITCH}, v{vT}')
    e(f'v_bfe_u32 v{vT}, v{vLane}, 4, 1\nv_bfe_u32 v{vT+1}, v{vLane}, 2, 1\nv_xor_b32 v{vT}, v{vT}, v{vT+1}')
    e(f'v_lshl_add_u32 v{vDW}, v{vT}, 6, v{vDW}\nv_and_b32 v{vT}, 3, v{vLane}\nv_lshl_add_u32 v{vDW}, v{vT}, 4, v{vDW}')
    e(f's_mul_i32 s4, s{sNt}, 384\ns_lshl_b32 s5, s{sHst}, 6\ns_lshl_b32 s6, s{sWave}, 4\ns_add_u32 s5, s5, s6\ns_mul_i32 s5, s5, {PITCH}\ns_add_u32 s4, s4, s5')
    e(f'v_add_u32 v{vDW}, s4, v{vDW}')
    e(f's_add_u32 s4, s{sHst}, s{sHn}\ns_sub_u32 s4, s{sCst}, s4\ns_add_u32 s4, s4, 1\ns_mul_i32 s{sDeltaW}, s4, {64*PITCH}')
    so = {}; k = 1
    for nb2 in range(3):
        for j in range(2):
            val = nb2 * 128 + j * (8 * PITCH - 1024)
            if val == 0: so[nb2, j] = '0'
            else:
                so[nb2, j] = f's{sSo+k}'; e(f's_mov_b32 s{sSo+k}, {val}'); k += 1
    e(f's_lshl_b32 s{sM0A}, s{sWave}, 12')
    e(f's_lshl_b32 s4, s{sWave}, 11\ns_add_u32 s{sM0W}, s4, {ACTB}')
    e(f's_mov_b32 s{sRem}, s{sHn}')
    def dma_ops():
        g = []
        g.append([f's_add_u32 m0, s{sDst}, s{sM0A}', f's_add_u32 s{sT0}, s{sDst}, s{sM0W}', f'buffer_load_dwordx4 v{vDA}, {srd(sA)}, 0 offen sc1 lds'])
        for i in range(1, 4):
            g.append([f'buffer_load_dwordx4 v{vDA}, {srd(sA)}, 0 offen offset:{1024*i} sc1 lds'])
        for nb2 in range(3):
            g[-1].append(f's_add_u32 m0, s{sT0}, {nb2*8192}' if nb2 else f's_mov_b32 m0, s{sT0}')
            g[-1].append('s_nop 0')
            g.append([f'buffer_load_dwordx4 v{vDW}, {srd(sW)}, {so[nb2,0]} offen lds'])
            g.append([f'buffer_load_dwordx4 v{vDW}, {srd(sW)}, {so[nb2,1]} offen offset:1024 lds'])
        g[-1] += [f'v_add_u32 v{vDA}, 4096, v{vDA}', f'v_add_u32 v{vDW}, {64*PITCH}, v{vDW}',
                  f's_add_u32 s{sDst}, s{sDst}, {SS}', f's_cmp_ge_u32 s{sDst}, {NS*SS}', f's_cselect_b32 s{sDst}, 0, s{sDst}']
        return g
    def reads(ks, FA, FW):
        r = []
        def wrd(j):
            for i2 in range(2):
                r.append(f'ds_read_b64_tr_b16 {FW[j][2*i2:2*i2+2]}, v{vB[j]} offset:{(4*ks + 2*i2)*512}')
        wrd(0)
        for i in range(2): r.append(f'ds_read_b128 {FA[i]}, v{vA} offset:{i*4096 + ks*1024}')
        wrd(1); wrd(2)
        return r
    def mfmas(FA, FW): return [mfma(acc[j, i], FW[j], FA[i]) for j in range(3) for i in range(2)]
    def inter(mf, fills):
        for k, m in enumerate(mf):
            e(m)
            for f in fills.get(k, []): e(f)
    flag_check(e, vPoll, vPo, f's{sT2}', 32)
    st('fin_flags')
    e(f's_mov_b32 s{sDst}, 0')
    for t in range(NS):
        for g in dma_ops():
            for x in g: e(x)
    for i in range(96): e(f'v_mov_b32 v{64+i}, 0')
    e(f's_mov_b32 s{sStage}, 0')
    e(f'v_mov_b32 v{vA}, v{vAb}')
    for j in range(3): e(f'v_mov_b32 v{vB[j]}, v{vBb[j]}')
    e(f's_waitcnt vmcnt({3*ND})\ns_barrier')
    st('fin_first')
    for x in reads(0, *FS[0]) + reads(1, *FS[1]): e(x)
    def body(dma, vm):
        dg = dma_ops() if dma else []
        for ks in range(4):
            fills = {}
            rd = []
            if ks == 2:
                if vm is not None:
                    e(f's_waitcnt vmcnt({vm}) lgkmcnt(0)\ns_barrier')
                    adv_ = [f's_add_u32 s{sStage}, s{sStage}, {SS}', f's_cmp_ge_u32 s{sStage}, {NS*SS}', f's_cselect_b32 s{sStage}, 0, s{sStage}',
                            f'v_add_u32 v{vA}, s{sStage}, v{vAb}'] + [f'v_add_u32 v{vB[j]}, s{sStage}, v{vBb[j]}' for j in range(3)]
                    for x in adv_: e(x)
                else:
                    e('s_waitcnt lgkmcnt(0)')
            else:
                e('s_waitcnt lgkmcnt(8)' if (ks != 3 or vm is not None) else 's_waitcnt lgkmcnt(0)')
            if ks < 2: rd = reads(ks + 2, *FS[ks + 2])
            elif vm is not None: rd = reads(ks - 2, *FS[ks - 2])
            for k_, x in enumerate(rd): fills.setdefault(k_ // 2, []).append(x)
            if ks >= 2:
                h = len(dg) // 2
                part = dg[:h] if ks == 2 else dg[h:]
                for k_, g in enumerate(part): fills.setdefault(min(k_ + 1, 5), []).extend(g)
            inter(mfmas(*FS[ks]), fills)
    def loop(lab):
        e('.p2align 6'); e.label(lab)
        body(True, 2*ND)
        e(f's_sub_u32 s{sCnt}, s{sCnt}, 1\ns_cmp_lg_u32 s{sCnt}, 0\ns_cbranch_scc1 {lab}')
    e(f's_sub_u32 s{sCnt}, s{sHn}, 5')
    loop('LF_loop1')
    sPo = 53
    e(f's_lshl_b32 s4, s{sTt}, 7\ns_add_u32 s{sPo}, s4, {FL_CTX}')
    e(f'buffer_load_dword v{vPoll}, v{vPo}, {srd(SF)}, s{sPo} offen sc1')
    body(True, 2*ND)
    e(f's_waitcnt vmcnt({ND})')
    flag_check(e, vPoll, vPo, f's{sPo}', 32)
    e(f's_sub_u32 s4, s{sDeltaA}, 4096\nv_add_u32 v{vDA}, s4, v{vDA}\ns_sub_u32 s4, s{sDeltaW}, {64*PITCH}\nv_add_u32 v{vDW}, s4, v{vDW}')
    e(f's_mov_b32 s{sW}, s{pWo}\ns_mov_b32 s{sW+1}, s{pWo+1}\ns_mov_b32 s{sW+2}, {SZ["wo"]:#x}')
    e(f's_mov_b32 s{sCnt}, s{sCn}')
    loop('LF_loop2')
    body(False, 2*ND); body(False, ND); body(False, 0); body(False, None)
    st('fin_loop')
    units = [(j, i, m) for j in range(3) for i in range(2) for m in range(2)]
    sX, sOut = S3, S4
    srd_from(e, sX, pX, SZ['x']); srd_from(e, sOut, pOut, SZ['out'])
    sTile, sPb = 59, 58
    e(f's_mul_i32 s{sTile}, s{sTt}, 3\ns_add_u32 s{sTile}, s{sTile}, s{sNt}')
    e(f's_mul_i32 s{sPb}, s{sTile}, {12*5*4*2048}\ns_lshl_b32 s4, s{sWave}, 11\ns_add_u32 s{sPb}, s{sPb}, s4')
    vXo, vOo = 10, 11
    e(f's_lshl_b32 s4, s{sTt}, 7\ns_and_b32 s5, s{sWave}, 1\ns_lshl_b32 s5, s5, 6\ns_add_u32 s4, s4, s5')
    e(f'v_and_b32 v{vT}, 31, v{vLane}\nv_add_u32 v{vT}, s4, v{vT}\ns_movk_i32 s5, 1152\nv_mul_lo_u32 v{vT}, v{vT}, s5')
    e(f's_mul_i32 s4, s{sNt}, 384\ns_lshr_b32 s5, s{sWave}, 1\ns_mul_i32 s5, s5, 192\ns_add_u32 s4, s4, s5\nv_add_u32 v{vT}, s4, v{vT}')
    e(f'v_lshrrev_b32 v{vT+1}, 5, v{vLane}\nv_lshl_add_u32 v{vXo}, v{vT+1}, 3, v{vT}\nv_lshl_add_u32 v{vOo}, v{vT+1}, 4, v{vT}')
    e('s_nop 7')
    XR = 160
    PL = 176 - 16
    for sp in range(5):
        if sp < 4: e(f's_cmp_lg_u32 s{sSp}, {sp}\ns_cbranch_scc1 LX_n{sp}')
        own = [u for u in range(12) if u % 5 == sp]
        for u, (j, i, m) in enumerate(units):
            if u in own: continue
            e(f's_add_u32 s4, s{sPb}, {(u*5 + sp)*4*2048}')
            e(f'buffer_store_dwordx4 {acc[j,i][8*m:8*m+4]}, v{vL16}, {srd(sO)}, s4 offen sc1')
            e(f'buffer_store_dwordx4 {acc[j,i][8*m+4:8*m+8]}, v{vL16}, {srd(sO)}, s4 offen offset:1024 sc1')
        for k, u in enumerate(own):
            j, i, m = units[u]
            off = i*32*1152 + (32*j + 16*m)*2
            e(f's_mov_b32 s4, {off}')
            e(f'buffer_load_dwordx2 v[{20+4*k}:{21+4*k}], v{vXo}, {srd(sX)}, s4 offen')
            e(f'buffer_load_dwordx2 v[{22+4*k}:{23+4*k}], v{vXo}, {srd(sX)}, s4 offen offset:16')
        e('s_waitcnt vmcnt(0)\ns_barrier')
        for xx in publish_ops([f's_lshl_b32 s4, s{sTile}, 3', f's_add_u32 s4, s4, {sp}', 's_lshl_b32 s4, s4, 2', f's_add_u32 s4, s4, {FL_EX}'], f'L_pubex{sp}'):
            e(xx[0] if isinstance(xx, tuple) else xx)
        e(f'v_min_u32 v{vPo}, 4, v{vLane}\nv_lshlrev_b32 v{vPo}, 2, v{vPo}')
        e(f's_lshl_b32 s{sPo}, s{sTile}, 5\ns_add_u32 s{sPo}, s{sPo}, {FL_EX}')
        e(f'buffer_load_dword v{vPoll}, v{vPo}, {srd(SF)}, s{sPo} offen sc1\ns_waitcnt vmcnt(0)')
        flag_check(e, vPoll, vPo, f's{sPo}', 5)
        srcs = [q for q in range(5) if q != sp]
        for k, u in enumerate(own):
            for z, q in enumerate(srcs):
                r0 = 32 if (k == 2 and z == 3) else 160 + 32*k + 8*z
                e(f's_add_u32 s4, s{sPb}, {(u*5 + q)*4*2048}')
                e(f'buffer_load_dwordx4 v[{r0}:{r0+3}], v{vL16}, {srd(sO)}, s4 offen sc1')
                e(f'buffer_load_dwordx4 v[{r0+4}:{r0+7}], v{vL16}, {srd(sO)}, s4 offen offset:1024 sc1')
        e('s_mov_b32 s5, 0xffff0000')
        for k, u in enumerate(own):
            j, i, m = units[u]
            e(f's_waitcnt vmcnt({8*(len(own) - 1 - k) + k})')
            a_ = acc[j, i][8*m:8*m+8]
            for r in range(8):
                terms = []
                z = 0
                for q in range(5):
                    if q == sp: terms.append(str(a_[r]))
                    else:
                        terms.append(f'v{(32 if (k == 2 and z == 3) else 160 + 32*k + 8*z) + r}'); z += 1
                e(f'v_add_f32 v{56+r}, {terms[0]}, {terms[1]}')
                for q in range(2, 5): e(f'v_add_f32 v{56+r}, v{56+r}, {terms[q]}')
            for r in range(8):
                src = 20 + 4*k + (r >> 1)
                e(f'v_and_b32 v{vT}, s5, v{src}' if r & 1 else f'v_lshlrev_b32 v{vT}, 16, v{src}')
                e(f'v_add_f32 v{56+r}, v{56+r}, v{vT}')
            o_ = 40 + 4*k
            for r in range(4): e(f'v_cvt_pk_bf16_f32 v{o_+r}, v{56+2*r}, v{56+2*r+1}')
            e(f's_nop 1\nv_permlane32_swap_b32 v{o_}, v{o_+2}\nv_permlane32_swap_b32 v{o_+1}, v{o_+3}')
            off = i*32*1152 + (32*j + 16*m)*2
            e(f's_mov_b32 s4, {off}')
            e(f'buffer_store_dwordx4 v[{o_}:{o_+3}], v{vOo}, {srd(sOut)}, s4 offen')
        e('s_branch L_end')
        if sp < 4: e.label(f'LX_n{sp}')

def gen_mega(a_unused=None, name='mega_kernel'):
    e = Em()
    st = St(e)
    kernel_header(e, name)
    kv = phase_start_kv(e, st)
    gu = phase_gu(e, st, kv)
    phase_attn(e, st, gu)
    phase_fin(e, st)
    e.label('L_end')
    if gen_common.STAMP:
        e('s_waitcnt vmcnt(0)')
        st('end')
        st.flush()
    e.label('L_done')
    e('s_endpgm')
    e.label('L_codeend')
    return e, kernel_desc(name, 512, 102, 256), st

if __name__ == '__main__':
    if 'stplain' in sys.argv: ST = ''
    gen_common.STAMP = 'stamp' in sys.argv
    HEADER = open('parallel_sum__compressed_kv_cla__glu_gated_geglu__prompt.s.ref').read().split('; Override launch')[0]
    KNAME = 'parallel_sum__compressed_kv_cla__glu_gated_geglu__prompt_kernel'
    e, desc, st = gen_mega(name=KNAME)
    out = HEADER
    out += '; @launch grid=(256,1,1) block=(256,1,1) lds=163840\n'
    out += '.amdgcn_target "amdgcn-amd-amdhsa--gfx950"\n.text\n' + e.text()
    out += '.section .rodata,"a"\n.p2align 6\n' + desc
    errs = check_hazards(e.lines, 'mega')
    print('hazards:', len(errs), 'lines', len(e.lines), 'stamps', st.names, file=sys.stderr)
    if 'nosc1ld' in sys.argv: out = out.replace(' sc1 lds', ' lds')
    open(sys.argv[1], 'w').write(out)
```

```python
import sys
import mega_common
from mega_common import *
mega_common.vStamp = 31
vStamp = 31

GK1 = -2.302208198
GK2 = GK1 * 0.044715
QSCALE = 1.4426950408889634 / (128 ** 0.5)
NEG_INF = 0xff800000
ST = 'sc1'
PFS = 33; PFV = 23
vT = 20
ARG = lambda k: k in sys.argv

def run_sub(e, mfs, fills):
    for k, m in enumerate(mfs):
        e.mf(*m)
        for f in fills.get(k, []):
            if isinstance(f, tuple): e.op(f[0], f[1])
            else: e.op(f)
def put(fills, gap, items): fills.setdefault(gap, []).extend(items)
def emit_groups(e, groups):
    for g in groups:
        for f in g:
            if isinstance(f, tuple): e.op(f[0], f[1])
            else: e.op(f)
def emit_list(e, l): emit_groups(e, [l])
def spread(fills, groups, g0, g1):
    n = len(groups)
    for k, g in enumerate(groups): put(fills, g0 + (k * (g1 - g0 + 1)) // max(n, 1), g)
def pf_ops(ptr, key, k, n):
    per = SZ[key] // 1024
    lines = (per + 127) // 128
    L = (lines + n - 1) // n
    lo = k * L; cnt = min(L, lines - lo)
    return [f's_mov_b32 s4, s{ptr}', f's_mov_b32 s5, s{ptr+1}', f's_mov_b32 s6, {SZ[key]:#x}', 's_mov_b32 s7, 0x20000',
            f's_lshl_b32 s{PFS}, s2, 2', f's_add_u32 s{PFS}, s{PFS}, s{sWave}', f's_mul_i32 s{PFS}, s{PFS}, {per}', f's_add_u32 s{PFS}, s{PFS}, {lo*128}',
            f'v_lshlrev_b32 v{PFV}, 7, v{vLane}', f's_mov_b32 exec_lo, {hex((1 << min(cnt, 32)) - 1)}', f's_mov_b32 exec_hi, {hex((1 << max(cnt - 32, 0)) - 1)}',
            (f'buffer_load_dword v{PFV+1}, v{PFV}, s[4:7], s{PFS} offen', 'pf'), 's_mov_b64 exec, -1']
def publish_ops(soff_instrs, lab, vt=14):
    return [f's_cmp_lg_u32 s{sWave}, 0', f's_cbranch_scc1 {lab}', f'v_mov_b32 v{vt}, s{sTag}', f'v_mov_b32 v{vt+1}, 0'] + soff_instrs + \
           ['s_mov_b64 exec, 1', (f'buffer_store_dword v{vt}, v{vt+1}, {srd(SF)}, s4 offen sc1', 'OPT'), 's_mov_b64 exec, -1', f'{lab}:']

sCt, sTt = 34, 35
kM0A, kM0W, kSoW, kSoA = 38, 39, 44, 48
gG, gU, gA, gM = S3, S4, 56, 60
sCj, sFb, sMb = 36, 37, 40
gSoffA, gSoffW, gM0A, gM0G, gM0U, gM0M = 41, 42, 43, 44, 48, 66
sKVo = [67, 70, 71, 82, 83, 86, 87, 94]
sACT = 96
qW, sKF, sVF = S0, S1, S2
qSoffA, qSoffW, qM0A, qM0W = 45, 46, 47, 49
sH, sP, sNS, sNL = 50, 51, 52, 53
sCnt, sKd, sVd, sKoff, sVoff, sKmax, sWoff, sM0K, sM0V, sJt = 54, 55, 38, 39, 41, 42, 43, 44, 48, 66
sT0, sT1, sT2, sK2 = 34, 95, 100, 101
MKP = [60, 62, 4, 6]
G_NST = 18; GOFF = 16384; UOFF = 24576; MOFF = 32768; MUO = 1152; G_SS = 35072; G_PITCH = 9216
gDA, gDW, gDM, vKVo = 25, 26, 27, 28
def g_slot(t): return ((t + 2) % 4) * G_SS
def gu_dma(t):
    slot = g_slot(t); tg = ('gu', t)
    g = []
    g.append([f's_add_u32 m0, s{gM0A}, {slot}', 's_nop 0', (f'buffer_load_dwordx4 v{gDA}, {srd(gA)}, 0 offen sc1 lds', tg)])
    g.append([(f'buffer_load_dwordx4 v{gDA}, {srd(gA)}, 0 offen offset:1024 sc1 lds', tg)])
    g.append([(f'buffer_load_dwordx4 v{gDA}, {srd(gA)}, s{gSoffA} offen offset:2048 sc1 lds', tg)])
    g.append([(f'buffer_load_dwordx4 v{gDA}, {srd(gA)}, s{gSoffA} offen offset:3072 sc1 lds', tg), f'v_add_u32 v{gDA}, 2048, v{gDA}'])
    g.append([f's_add_u32 m0, s{gM0G}, {slot}', 's_nop 0', (f'buffer_load_dwordx4 v{gDW}, {srd(gG)}, 0 offen lds', tg)])
    g.append([(f'buffer_load_dwordx4 v{gDW}, {srd(gG)}, s{gSoffW} offen offset:1024 lds', tg)])
    g.append([f's_add_u32 m0, s{gM0U}, {slot}', 's_nop 0', (f'buffer_load_dwordx4 v{gDW}, {srd(gU)}, 0 offen lds', tg)])
    g.append([(f'buffer_load_dwordx4 v{gDW}, {srd(gU)}, s{gSoffW} offen offset:1024 lds', tg), f'v_add_u32 v{gDW}, {32*G_PITCH}, v{gDW}'])
    g.append([f's_add_u32 m0, s{gM0M}, {slot}', 's_nop 0', (f'buffer_load_dwordx4 v{gDM}, {srd(gM)}, 0 offen lds', tg), f'v_add_u32 v{gDM}, {32*G_PITCH}, v{gDM}'])
    return g
Q_SS = 24576; Q_ACTB = 16384; KB = 98304
qDA, qDW = 11, 12
def q_dma(t):
    slot = (t % 4) * Q_SS; tg = ('q', t)
    g = []
    g.append([f's_add_u32 m0, s{qM0A}, {slot}', 's_nop 0', (f'buffer_load_dwordx4 v{qDA}, {srd(gA)}, 0 offen sc1 lds', tg)])
    g.append([(f'buffer_load_dwordx4 v{qDA}, {srd(gA)}, 0 offen offset:1024 sc1 lds', tg)])
    g.append([(f'buffer_load_dwordx4 v{qDA}, {srd(gA)}, s{qSoffA} offen offset:2048 sc1 lds', tg)])
    g.append([(f'buffer_load_dwordx4 v{qDA}, {srd(gA)}, s{qSoffA} offen offset:3072 sc1 lds', tg), f'v_add_u32 v{qDA}, 2048, v{qDA}'])
    g.append([f's_add_u32 m0, s{qM0W}, {slot}', 's_nop 0', (f'buffer_load_dwordx4 v{qDW}, {srd(qW)}, 0 offen lds', tg)])
    g.append([(f'buffer_load_dwordx4 v{qDW}, {srd(qW)}, s{qSoffW} offen offset:1024 lds', tg), f'v_add_u32 v{qDW}, {32*8192}, v{qDW}'])
    return g

def phase_start_kv(e, st):
    e('s_cmp_ge_u32 s2, 256\ns_cbranch_scc1 L_done')
    for key, p in (('ws', pWs), ('x', pX), ('ckv', pCkv), ('wuk', pWkv), ('wuv', pTmp), ('wg', pWg), ('wu', pWu), ('wq', pWq), ('wo', pWo),
                   ('wd', pWd), ('out', pOut), ('dbg', pDbg)):
        load_ptr(e, p, key)
    e(f'v_and_b32 v{vLane}, 63, v0\nv_lshrrev_b32 v3, 6, v0\nv_lshlrev_b32 v{vL16}, 4, v{vLane}')
    e(f's_and_b32 s{sXcd}, s2, 7\ns_lshr_b32 s{sIdx}, s2, 3')
    e(f'v_readfirstlane_b32 s{sWave}, v3')
    WB = 98304
    vAx = [3, 4, 5, 6]; vAc, vW0, vW1, vDAe, vDAo, vDW = 7, 8, 9, 10, 11, 12
    e(f's_and_b32 s4, s{sIdx}, 3\ns_lshl_b32 s5, s{sXcd}, 2\ns_add_u32 s{sCt}, s5, s4\ns_lshr_b32 s{sTt}, s{sIdx}, 2')
    e(f'v_lshrrev_b32 v{vT}, 3, v{vLane}\nv_lshlrev_b32 v{vDAe}, 10, v{vT}\nv_lshrrev_b32 v{vT}, 4, v{vLane}\nv_and_b32 v{vT+1}, 7, v{vLane}')
    e(f'v_xor_b32 v{vT}, v{vT}, v{vT+1}\nv_lshl_add_u32 v{vDAe}, v{vT}, 4, v{vDAe}')
    e(f's_lshl_b32 s4, s{sTt}, 18\ns_lshl_b32 s5, s{sWave}, 16\ns_add_u32 s4, s4, s5\nv_add_u32 v{vDAe}, s4, v{vDAe}')
    e(f'v_xor_b32 v{vDAo}, 64, v{vDAe}')
    for j_ in range(1, 8): e(f's_mov_b32 s{kSoA+j_}, {8192*j_ - 1024*(j_ & 3)}')
    for j_ in range(1, 4): e(f's_mov_b32 s{kSoW+j_}, {j_*(4*8192-1024)}')
    e('s_movk_i32 s33, 8192')
    lane_w_dma(e, vDW, vT, 33)
    e(f's_and_b32 s4, s{sCt}, 15\ns_lshl_b32 s4, s4, 9\ns_and_b32 s5, s{sWave}, 1\ns_lshl_b32 s5, s5, 8\ns_add_u32 s4, s4, s5')
    e(f's_lshr_b32 s5, s{sWave}, 1\ns_lshl_b32 s5, s5, 17\ns_add_u32 s4, s4, s5\nv_add_u32 v{vDW}, s4, v{vDW}')
    e(f's_lshl_b32 s{kM0A}, s{sWave}, 13')
    e(f's_and_b32 s4, s{sWave}, 1\ns_lshl_b32 s4, s4, 13\ns_lshr_b32 s5, s{sWave}, 1\ns_lshl_b32 s5, s5, 12')
    e(f's_add_u32 s{kM0W}, s4, s5\ns_add_u32 s{kM0W}, s{kM0W}, {WB}')
    e('s_waitcnt lgkmcnt(0)')
    st.real(62); st('start')
    sW, sA, sO = S0, S1, S2
    e(f's_cmp_lt_u32 s{sCt}, 16\ns_cselect_b32 s{pWkv}, s{pWkv}, s{pTmp}\ns_cselect_b32 s{pWkv+1}, s{pWkv+1}, s{pTmp+1}')
    srd_from(e, sW, pWkv, SZ['wuk']); srd_from(e, sA, pCkv, SZ['ckv'])
    def dmaA(p, h):
        tg = ('ka', p); g = []
        for jj in range(4):
            j_ = 4*h + jj
            ins = (f'buffer_load_dwordx4 v{vDAo if j_ & 1 else vDAe}, {srd(sA)}, {"s%d" % (kSoA + j_) if j_ else "0"} offen' + (f' offset:{1024*jj}' if jj else '') + ' lds', tg)
            g.append(([f's_add_u32 m0, s{kM0A}, {(p % 3)*32768 + 4096*h}', 's_nop 0'] if jj == 0 else []) + [ins])
        if h == 1: g[-1] += [f'v_add_u32 v{vDAe}, 128, v{vDAe}', f'v_add_u32 v{vDAo}, 128, v{vDAo}']
        return g
    def dmaW(t):
        tg = ('kw', t)
        g = [[f's_add_u32 m0, s{kM0W}, {(t % 4)*16384}', 's_nop 0', (f'buffer_load_dwordx4 v{vDW}, {srd(sW)}, 0 offen lds', tg)]]
        for j_ in range(1, 4):
            g.append([(f'buffer_load_dwordx4 v{vDW}, {srd(sW)}, s{kSoW+j_} offen offset:{1024*j_} lds', tg)])
        g[-1] += [f'v_add_u32 v{vDW}, {32*8192}, v{vDW}']
        return g
    sX, sXN = S3, S4
    srd_from(e, sX, pX, SZ['x'])
    e(f's_lshl_b32 s32, s2, 3\ns_lshl_b32 s33, s{sWave}, 1\ns_add_u32 s32, s32, s33')
    e(f'v_lshrrev_b32 v72, 5, v{vLane}\nv_add_u32 v72, s32, v72')
    e(f'v_and_b32 v73, 31, v{vLane}')
    e('s_movk_i32 s33, 1152\nv_mul_lo_u32 v74, v72, s33\nv_lshl_add_u32 v74, v73, 4, v74')
    D = 32
    e.vmem(f'buffer_load_dwordx4 v[{D}:{D+3}], v74, {srd(sX)}, 0 offen', 'ln')
    e.vmem(f'buffer_load_dwordx4 v[{D+4}:{D+7}], v74, {srd(sX)}, 0 offen offset:512', 'ln')
    e('s_mov_b32 exec_lo, 0xff\ns_mov_b32 exec_hi, 0xff')
    e.vmem(f'buffer_load_dwordx4 v[{D+8}:{D+11}], v74, {srd(sX)}, 0 offen offset:1024', 'ln')
    e('s_mov_b64 exec, -1')
    emit_groups(e, dmaW(0) + dmaA(0, 0) + dmaA(0, 1) + dmaW(1))
    e(f's_add_u32 s4, s{pWs}, {WS_FLAG + FL_E:#x}\ns_addc_u32 s5, s{pWs+1}, 0')
    e(f's_load_dword s{sTag}, s[4:5], 0')
    srd_from(e, SF, pWs, 0x10000, WS_FLAG)
    srd_from(e, sXN, pWs, SZ_XN, WS_XN)
    late = dmaA(1, 0) + dmaA(1, 1) + dmaW(2) + dmaW(3) + dmaA(2, 0)
    e('v_lshrrev_b32 v75, 5, v72\nv_mul_u32_u24 v75, 36, v75\nv_lshrrev_b32 v76, 1, v73\nv_add_u32 v75, v75, v76\nv_lshlrev_b32 v75, 10, v75')
    e('v_and_b32 v76, 1, v73\nv_lshlrev_b32 v76, 9, v76\nv_add_u32 v75, v75, v76\nv_and_b32 v76, 31, v72\nv_lshl_add_u32 v80, v76, 4, v75')
    e(f's_mov_b32 s5, {WS_VF:#x}\ns_cmp_lt_u32 s{sCt}, 16\ns_cselect_b32 s4, {WS_KF:#x}, s5')
    e(f's_add_u32 s{sO}, s{pWs}, s4\ns_addc_u32 s{sO+1}, s{pWs+1}, 0\ns_mov_b32 s{sO+2}, {SZ_KF:#x}\ns_mov_b32 s{sO+3}, 0x20000')
    e(f'v_and_b32 v{vT}, 31, v{vLane}\nv_lshlrev_b32 v{vAx[0]}, 7, v{vT}\nv_bfe_u32 v{vT}, v{vLane}, 1, 3\nv_lshrrev_b32 v{vT+1}, 5, v{vLane}')
    e(f'v_xor_b32 v{vT}, v{vT}, v{vT+1}\nv_lshl_add_u32 v{vAx[0]}, v{vT}, 4, v{vAx[0]}')
    e(f's_and_b32 s4, s{sWave}, 1\ns_lshl_b32 s4, s4, 14\nv_add_u32 v{vAx[0]}, s4, v{vAx[0]}')
    for q in range(1, 4): e(f'v_xor_b32 v{vAx[q]}, {32*q}, v{vAx[0]}')
    lane_w_base(e, vW0, vW1, vT, 2, 1024)
    e(f's_lshr_b32 s4, s{sWave}, 1\ns_lshl_b32 s4, s4, 13\ns_add_u32 s4, s4, {WB}')
    e(f'v_add_u32 v{vW0}, s4, v{vW0}\nv_add_u32 v{vW1}, s4, v{vW1}')
    st('kv_dma')
    e.wait_vm('ln')
    F = 48
    e('s_mov_b32 s36, 0xffff0000')
    def unpack(i):
        for k in range(4):
            e(f'v_lshlrev_b32 v{F+8*i+2*k}, 16, v{D+4*i+k}\nv_and_b32 v{F+8*i+2*k+1}, s36, v{D+4*i+k}')
    unpack(0); unpack(1)
    for k in range(8): e(f'v_mov_b32 v{F+16+k}, 0')
    e('s_mov_b32 exec_lo, 0xff\ns_mov_b32 exec_hi, 0xff'); unpack(2); e('s_mov_b64 exec, -1')
    def allred(r, t):
        for dpp in ('quad_perm:[1,0,3,2]', 'quad_perm:[2,3,0,1]', 'row_half_mirror', 'row_mirror'):
            e(f's_nop 1\nv_add_f32_dpp v{r}, v{r}, v{r} {dpp} row_mask:0xf bank_mask:0xf')
        e(f'v_mov_b32 v{t}, v{r}\ns_nop 1\nv_permlane16_swap_b32 v{r}, v{t}\ns_nop 1\nv_add_f32 v{r}, v{r}, v{t}')
    mu, va, t0, t1, t2, t3, t4 = 84, 85, 86, 87, 88, 89, 90
    e(f'v_add_f32 v{mu}, v{F}, v{F+1}')
    for k in range(2, 24): e(f'v_add_f32 v{mu}, v{mu}, v{F+k}')
    allred(mu, t0)
    e(f's_mov_b32 s37, 0x3ae38e39\nv_mul_f32 v{mu}, s37, v{mu}')
    e(f'v_mov_b32 v{va}, 0')
    for k in range(16): e(f'v_sub_f32 v{t1}, v{F+k}, v{mu}\nv_fmac_f32 v{va}, v{t1}, v{t1}')
    e('s_mov_b32 exec_lo, 0xff\ns_mov_b32 exec_hi, 0xff')
    for k in range(16, 24): e(f'v_sub_f32 v{t1}, v{F+k}, v{mu}\nv_fmac_f32 v{va}, v{t1}, v{t1}')
    e('s_mov_b64 exec, -1')
    allred(va, t0)
    e(f'v_mul_f32 v{va}, s37, v{va}')
    e(f'v_cvt_pk_bf16_f32 v{t1}, v{mu}, v{va}\nv_lshlrev_b32 v{mu}, 16, v{t1}\nv_and_b32 v{va}, s36, v{t1}')
    e(f'v_mov_b32 v{t2}, 0x3727c5ac\nv_add_f32 v{va}, v{t2}, v{va}')
    e(f'v_cvt_pk_bf16_f32 v{t1}, v{va}, v{va}\nv_lshlrev_b32 v{va}, 16, v{t1}\nv_sqrt_f32 v{va}, v{va}\ns_nop 0')
    e(f'v_cvt_pk_bf16_f32 v{t1}, v{va}, v{va}\nv_lshlrev_b32 v{va}, 16, v{t1}\nv_rcp_f32 v{t2}, v{va}\ns_nop 0')
    for i in range(3):
        if i == 2: e('s_mov_b32 exec_lo, 0xff\ns_mov_b32 exec_hi, 0xff')
        for k in range(4):
            r0, r1 = F+8*i+2*k, F+8*i+2*k+1
            e(f'v_sub_f32 v{r0}, v{r0}, v{mu}\nv_sub_f32 v{r1}, v{r1}, v{mu}')
            e(f'v_cvt_pk_bf16_f32 v{t3}, v{r0}, v{r1}')
            e(f'v_lshlrev_b32 v{r0}, 16, v{t3}\nv_and_b32 v{r1}, s36, v{t3}')
            for r in (r0, r1):
                e(f'v_mul_f32 v{t4}, v{r}, v{t2}\nv_fma_f32 v{t1}, -v{t4}, v{va}, v{r}\nv_fma_f32 v{r}, v{t1}, v{t2}, v{t4}')
            e(f'v_cvt_pk_bf16_f32 v{D+4*i+k}, v{r0}, v{r1}')
        e(f's_mov_b32 s37, {i*16*1024}')
        e.vmem(f'buffer_store_dwordx4 v[{D+4*i}:{D+4*i+3}], v80, {srd(sXN)}, s37 offen {ST}', 'xn')
    e('s_mov_b64 exec, -1')
    e('s_waitcnt lgkmcnt(0)')
    e(f's_mul_i32 s{sTag}, s{sTag}, 0x9E3779B1\ns_add_u32 s{sTag}, s{sTag}, 0x7F4A7C15')
    e(f's_mov_b32 s{sSlow}, 0')
    vAt = 22
    srd_from(e, S3, pDbg, 256)
    e(f's_cmp_lg_u32 s{sWave}, 0\ns_cbranch_scc1 L_noat')
    e(f'v_mov_b32 v{vAt}, 1\nv_mov_b32 v{vT}, 0\ns_mov_b64 exec, 1')
    e.vmem(f'buffer_atomic_add v{vAt}, v{vT}, {srd(S3)}, 0 offen sc0 sc1', None, optional=True)
    e('s_mov_b64 exec, -1')
    e.label('L_noat')
    e(f's_and_b32 s4, s{sIdx}, 3\ns_lshl_b32 s5, s{sXcd}, 2\ns_add_u32 s{sCj}, s5, s4')
    e(f's_mul_i32 s4, s{sCj}, 144\ns_and_b32 s5, s{sCj}, 1\ns_lshl_b32 s6, s5, 4\ns_add_u32 s{sFb}, s4, s6')
    e(f's_xor_b32 s5, s5, 1\ns_lshl_b32 s5, s5, 7\ns_add_u32 s{sMb}, s4, s5')
    e('s_nop 4')
    srd_from(e, gG, pWg, SZ['wg']); srd_from(e, gU, pWu, SZ['wu']); srd_from(e, gA, pWs, SZ_XN, WS_XN)
    e(f's_bitcmp1_b32 s{sWave}, 0\ns_cselect_b32 s4, s{pWu}, s{pWg}\ns_cselect_b32 s5, s{pWu+1}, s{pWg+1}')
    srd_from(e, gM, 4, SZ['wg'])
    e(f's_lshl_b32 s4, s{sTt}, 3\ns_lshl_b32 s5, s{sWave}, 1\ns_add_u32 s4, s4, s5\ns_mul_i32 s4, s4, {36*1024}\nv_add_u32 v{gDA}, s4, v{vL16}')
    e(f's_mov_b32 s{gSoffA}, {36*1024 - 2048}\ns_movk_i32 s6, {G_PITCH}')
    lane_w_dma(e, gDW, vT, 6)
    e(f's_lshl_b32 s4, s{sFb}, 1\ns_mul_i32 s5, s{sWave}, {8*G_PITCH}\ns_add_u32 s4, s4, s5\nv_add_u32 v{gDW}, s4, v{gDW}')
    e(f's_mov_b32 s{gSoffW}, {4*G_PITCH - 1024}')
    e(f'v_lshrrev_b32 v{vT}, 1, v{vLane}\nv_mul_lo_u32 v{gDM}, v{vT}, s6\nv_and_b32 v{vT}, 1, v{vLane}\nv_lshl_add_u32 v{gDM}, v{vT}, 4, v{gDM}')
    e(f's_lshl_b32 s4, s{sMb}, 1\nv_add_u32 v{gDM}, s4, v{gDM}')
    e(f's_lshl_b32 s{gM0A}, s{sWave}, 12')
    gM0U_early = 40 + 0
    e(f's_lshl_b32 s4, s{sWave}, 11\ns_add_u32 s{gM0G}, s4, {GOFF}\ns_add_u32 s{gM0U}, s4, {UOFF}')
    e(f's_and_b32 s4, s{sWave}, 1\ns_mul_i32 s4, s4, {MUO}\ns_add_u32 s{gM0M}, s4, {MOFF}')
    st('ln')
    XA = [R('a', 32 + 4*i, 4) for i in range(4)]; XW = [R('a', 48 + 4*i, 4) for i in range(4)]
    YA = [R('a', 64 + 4*i, 4) for i in range(4)]; YW = [R('a', 80 + 4*i, 4) for i in range(4)]
    acc = [[None]*4 for _ in range(4)]
    for j in range(4):
        for i in range(4):
            n = 4*j + i
            acc[i][j] = R('v', 32 + 16*n, 16) if n < 14 else R('a', 16*(n - 14), 16)
    def reads(t, ks, FA, FW):
        so = (t % 4) * 16384
        r = []
        def wrd(j):
            base = vW0 if (j & 1) == 0 else vW1
            for i2 in range(2):
                r.append(f'ds_read_b64_tr_b16 {FW[j][2*i2:2*i2+2]}, v{base} offset:{so + (4*ks + i2)*1024 + (j >> 1)*512}')
        r.append(f'v_add_u32 v{vAc}, {((t // 2) % 3)*32768}, v{vAx[2*(t & 1) + ks]}')
        wrd(0)
        for i in range(4): r.append(f'ds_read_b128 {FA[i]}, v{vAc} offset:{i*4096}')
        wrd(1); wrd(2); wrd(3)
        return r
    def mfs(FA, FW, isK, first):
        return [((acc[i][j], FW[j], FA[i], '0' if first else None) if isK else (acc[i][j], FA[i], FW[j], '0' if first else None))
                for j in range(4) for i in range(4)]
    NST = 16
    e.wait_vm(('ka', 0), barrier=True)
    assert e.vm_count(('kw', 0)) is None
    st('kv_first')
    saved = (list(e.vm), list(e.lg))
    def place(fills, rd):
        put(fills, 0, rd[:3])
        for k, x in enumerate(rd[3:]): put(fills, 1 + k // 2, [x])
    g0 = gu_dma(0); g1 = gu_dma(1)
    def loop(isK):
        for x in reads(0, 0, XA, XW): e.op(x)
        for t in range(NST):
            fills = {}
            place(fills, reads(t, 1, YA, YW))
            if t == 0: spread(fills, late[:12], 1, 15)
            run_sub(e, mfs(XA, XW, isK, t == 0), fills)
            fills = {}
            if t + 1 < NST:
                need = [('kw', t + 1)] + ([('ka', (t + 1) // 2)] if (t + 1) % 2 == 0 else [])
                cnts = [(e.vm_count(x), x) for x in need if e.vm_count(x) is not None]
                e.wait_vm(min(cnts)[1] if cnts else ('kw', t + 1), also_lgkm0=True, barrier=True)
                place(fills, reads(t + 1, 0, XA, XW))
            else:
                e.lgkm0(); e('s_barrier')
            if t == 12: flag_check(e, 16, vL16, 0, 64, ndw=4)
            dm = []
            q, h = ((t + 5) // 2, 0) if t % 2 == 1 else ((t + 4) // 2, 1)
            if t == 0: dm += late[12:]
            if q < 8: dm += dmaA(q, h)
            if t + 4 < NST: dm += dmaW(t + 4)
            if t == 12: dm += g0[:4]
            if t == 13: dm += g0[4:]
            if t == 14: dm += g1
            if t == 15: dm += gu_dma(2)
            spread(fills, dm, (6 if t < 12 else 5) if t > 0 else 1, 15)
            if not ARG('nopf2') and 1 <= t < 12:
                k = t - 1
                if k < 10: put(fills, 14, pf_ops(pWg if k % 2 == 0 else pWu, 'wg', k // 2, 5))
                if t in (3, 7, 11): put(fills, 15, pf_ops(pWq, 'wq', (t - 3) // 4, 3))
            if t == 3:
                assert 'xn' not in e.vm
                hook = f'L_ln{int(isK)}'
                put(fills, 2, [f's_cmp_lg_u32 s{sWave}, 0', f's_cbranch_scc1 {hook}',
                               f'v_mov_b32 v14, s{sTag}', f'v_mov_b32 v15, 0', f's_lshl_b32 s4, s2, 2', f'v_readfirstlane_b32 s5, v{vAt}', 's_mov_b64 exec, 1',
                               (f'buffer_store_dword v14, v15, {srd(SF)}, s4 offen sc1', 'OPT'),
                               f's_cmp_lg_u32 s5, 255', f's_cbranch_scc1 {hook}x', f's_mov_b32 s4, {FL_E}',
                               (f'buffer_store_dword v14, v15, {srd(SF)}, s4 offen sc1', 'OPT'), f'{hook}x:', 's_mov_b64 exec, -1', f'{hook}:'])
            if t == 9:
                put(fills, 0, [(f'buffer_load_dwordx4 v[16:19], v{vL16}, {srd(SF)}, 0 offen sc1', 'poll')])
            run_sub(e, mfs(YA, YW, isK, False), fills)
        e('s_nop 7')
        return
    e(f's_cmp_lt_u32 s{sCt}, 16\ns_cbranch_scc0 L_kvV')
    loop(True)
    e('s_branch L_kvE')
    e.label('L_kvV')
    e.vm, e.lg = list(saved[0]), list(saved[1])
    loop(False)
    e.label('L_kvE')
    st('kv_loop')
    return dict(acc=acc)
```

```python
from v4a import *

def phase_gu(e, st, kv):
    accKV = kv['acc']
    sOKV = S2
    vA, vW0, vW1, vM, vAb, vW0b, vW1b, vMb = 3, 4, 5, 6, 7, 8, 9, 10
    for n in range(14):
        i, j = n % 4, n // 4
        a_ = accKV[i][j]
        for r in range(8): e(f'v_cvt_pk_bf16_f32 v{32 + 8*n + r}, {a_[2*r]}, {a_[2*r+1]}')
    for n in (14, 15):
        i, j = n % 4, n // 4
        a_ = accKV[i][j]
        for r in range(16): e(f'v_accvgpr_read_b32 v{224+r}, {a_[r]}')
        for r in range(8): e(f'v_cvt_pk_bf16_f32 v{32 + 8*n + r}, v{224+2*r}, v{224+2*r+1}')
    e(f's_lshl_b32 s4, s{sWave}, 12\nv_add_u32 v{vAb}, s4, v{vL16}')
    lane_w_base(e, vW0b, vW1b, vT, 2, 1024)
    e(f'v_lshrrev_b32 v{vT}, 5, v{vLane}\nv_lshlrev_b32 v{vMb}, 8, v{vT}')
    e(f'v_bfe_u32 v{vT}, v{vLane}, 2, 2\nv_lshl_add_u32 v{vMb}, v{vT}, 5, v{vMb}')
    e(f'v_bfe_u32 v{vT}, v{vLane}, 4, 1\nv_mul_u32_u24 v{vT}, {MUO}, v{vT}\nv_add_u32 v{vMb}, v{vMb}, v{vT}')
    e(f'v_and_b32 v{vT}, 3, v{vLane}\nv_lshl_add_u32 v{vMb}, v{vT}, 3, v{vMb}')
    def setaddr(t):
        so = g_slot(t)
        return [f'v_add_u32 v{c}, {so}, v{b}' for c, b in ((vA, vAb), (vW0, vW0b), (vW1, vW1b), (vM, vMb))]
    for x in setaddr(0): e(x)
    FA = [[R('v', 192 + 4*i, 4) for i in range(2)], [R('v', 200 + 4*i, 4) for i in range(2)]]
    FW = [R('v', 208 + 4*j, 4) for j in range(9)]
    def wreads(j, ks):
        if j < 8:
            base = vW0 if (j & 1) == 0 else vW1
            off = (GOFF if j < 4 else UOFF) + ((j & 3) >> 1) * 512
            return [f'ds_read_b64_tr_b16 {FW[j][2*i2:2*i2+2]}, v{base} offset:{off + (4*ks + i2)*1024}' for i2 in range(2)]
        return [f'ds_read_b64_tr_b16 {FW[j][2*i2:2*i2+2]}, v{vM} offset:{MOFF + (4*ks + i2)*128}' for i2 in range(2)]
    def areads(ks, buf): return [f'ds_read_b128 {FA[buf][i]}, v{vA} offset:{i*2048 + ks*1024}' for i in range(2)]
    e.wait_vm(('gu', 0), barrier=True)
    for x in wreads(0, 0) + areads(0, 0): e.op(x)
    for j in range(1, 9):
        for x in wreads(j, 0): e.op(x)
    e(f's_and_b32 s4, s{sCt}, 15\ns_lshl_b32 s4, s4, 1\ns_lshr_b32 s5, s{sWave}, 1\ns_add_u32 s4, s4, s5\ns_lshl_b32 s4, s4, 6')
    e(f's_lshl_b32 s5, s{sTt}, 3\ns_and_b32 s6, s{sWave}, 1\ns_lshl_b32 s6, s6, 2\ns_add_u32 s5, s5, s6\ns_add_u32 s4, s4, s5\ns_lshl_b32 s4, s4, 13')
    e(f'v_add_u32 v{vKVo}, s4, v{vL16}')
    e(f's_cmp_lt_u32 s{sCt}, 16')
    for j in range(4):
        for half in range(2):
            e(f's_mov_b32 s4, {half*4096 + j*1024}\ns_cselect_b32 s{sKVo[2*j + half]}, {(2*j+half)*1024}, s4')
    kvst = []
    for n in range(16):
        i, j = n % 4, n // 4
        for half in range(2):
            r0 = 32 + 8*n + 4*half
            kvst.append([f's_add_u32 s4, s{sKVo[2*j + half]}, {i*8192}',
                         (f'buffer_store_dwordx4 v[{r0}:{r0+3}], v{vKVo}, {srd(sOKV)}, s4 offen {ST}', 'kvst')])
    kvst = Spread(kvst)
    qsetup = []
    A = qsetup.append
    A(f's_and_b32 s4, s{sIdx}, 3'); A(f's_lshl_b32 s5, s{sXcd}, 2'); A(f's_add_u32 s{sH}, s5, s4'); A(f's_lshr_b32 s{sP}, s{sIdx}, 2')
    A(f's_lshl_b32 s{sNS}, s{sP}, 1'); A(f's_add_u32 s{sNS}, s{sNS}, 2'); A(f's_lshl_b32 s4, s{sP}, 1'); A(f's_sub_u32 s{sNL}, 32, s4')
    A(f's_mov_b32 s{qW}, s{pWq}'); A(f's_mov_b32 s{qW+1}, s{pWq+1}'); A(f's_mov_b32 s{qW+2}, {SZ["wq"]:#x}'); A(f's_mov_b32 s{qW+3}, 0x20000')
    A(f's_lshl_b32 s4, s{sP}, 2'); A(f's_add_u32 s4, s4, s{sWave}'); A(f's_mul_i32 s4, s4, {36*1024}'); A(f'v_add_u32 v{qDA}, s4, v{vL16}')
    A(f's_lshl_b32 s4, s{sP}, 3'); A('s_sub_u32 s4, 60, s4'); A(f's_mul_i32 s4, s4, {36*1024}'); A(f's_sub_u32 s{qSoffA}, s4, 2048')
    q2 = Asm(); q2('s_movk_i32 s6, 8192'); lane_w_dma(q2, qDW, vT, 6)
    q2(f's_lshl_b32 s4, s{sH}, 8\ns_lshl_b32 s5, s{sWave}, 16\ns_add_u32 s4, s4, s5\nv_add_u32 v{qDW}, s4, v{qDW}')
    q2(f's_mov_b32 s{qSoffW}, {4*8192 - 1024}\ns_lshl_b32 s{qM0A}, s{sWave}, 12\ns_lshl_b32 s4, s{sWave}, 11\ns_add_u32 s{qM0W}, s4, {Q_ACTB}')
    acc = {}
    n = 0
    for j in range(9):
        for i in range(2):
            acc[j, i] = R('a', 16 * n, 16) if n < 16 else R('v', 160 + 16 * (n - 16), 16)
            n += 1
    st('gu_first')
    NST = G_NST
    for t in range(NST):
        for ks in range(2):
            fills = {}
            nxt_t, nxt_ks = (t, 1) if ks == 0 else (t + 1, 0)
            has_next = nxt_t < NST
            if ks == 1:
                if has_next:
                    e.wait_vm(('gu', t + 1), barrier=True)
                    for x in setaddr(t + 1): e(x)
                else:
                    e('s_barrier')
            if has_next:
                put(fills, 0, areads(nxt_ks, 1 - ks))
                for j in range(9): put(fills, 2*j + 1, wreads(j, nxt_ks))
            if ks == 1:
                dm = []
                if t + 3 < NST: dm = gu_dma(t + 3)
                if t == 15: dm = q_dma(0)
                if t == 16: dm = q_dma(1)
                if t == 17: dm = q_dma(2)
                for k, g in enumerate(dm): put(fills, 2*k, g)
            if ks == 0:
                for k, g in enumerate(kvst.take(2)): put(fills, 4 + 6*k, g)
                if ARG('wqgu') and t in (3, 7, 11): put(fills, 17, pf_ops(pWq, 'wq', (t - 3) // 4, 3))
                if t == 2: put(fills, 16, qsetup)
                if t == 4: put(fills, 16, q2.lines)
            mf = [(acc[j, i], FW[j], FA[ks][i], '0' if (t == 0 and ks == 0) else None) for j in range(9) for i in range(2)]
            run_sub(e, mf, fills)
    st('gu_loop')
    return dict(acc=acc)
```

```python
from v4b import *
import v4fin as FIN

def phase_attn(e, st, gu):
    accGU = gu['acc']
    vA, vW0, vW1, vAb, vW0b, vW1b = 3, 4, 5, 7, 8, 9
    vDKV, vK, vV = 13, 16, 6
    vK1 = 29
    e(f's_lshl_b32 s{sWoff}, s{sWave}, 12\nv_add_u32 v{vAb}, s{sWoff}, v{vL16}')
    e(f'v_add_u32 v{vW0b}, {Q_ACTB}, v{vW0b}\nv_add_u32 v{vW1b}, {Q_ACTB}, v{vW1b}')
    def qaddr(t):
        so = (t % 4) * Q_SS
        return [f'v_add_u32 v{c}, {so}, v{b}' for c, b in ((vA, vAb), (vW0, vW0b), (vW1, vW1b))]
    for x in qaddr(0): e(x)
    QA = [[R('v', 32 + 64*x + 16*j, 16) for j in range(4)] for x in range(2)]
    XA = [R('v', 192 + 4*i, 4) for i in range(2)]; XW = [R('v', 200 + 4*i, 4) for i in range(4)]
    YA = [R('v', 216 + 4*i, 4) for i in range(2)]; YW = [R('v', 224 + 4*i, 4) for i in range(4)]
    def q_reads(ks, FA, FW):
        r = []
        def wrd(j):
            base = vW0 if (j & 1) == 0 else vW1
            for i2 in range(2):
                r.append(f'ds_read_b64_tr_b16 {FW[j][2*i2:2*i2+2]}, v{base} offset:{(4*ks + i2)*1024 + (j >> 1)*512}')
        wrd(0)
        for i in range(2): r.append(f'ds_read_b128 {FA[i]}, v{vA} offset:{i*2048 + ks*1024}')
        for j in range(1, 4): wrd(j)
        return r
    e.wait_vm(('q', 0), also_lgkm0=True, barrier=True)
    for x in q_reads(0, XA, XW): e.op(x)
    srd_from(e, sACT, pWs, SZ_ACT2, WS_ACT2)
    srd_from(e, sKF, pWs, SZ_KF, WS_KF); srd_from(e, sVF, pWs, SZ_VF, WS_VF)
    e(f's_mov_b32 s{sK2}, {f2u(GK2):#x}\nv_mov_b32 v{vK1}, {f2u(GK1):#x}')
    e(f's_lshl_b32 s4, s{sTt}, 3\ns_lshl_b32 s5, s{sWave}, 1\ns_add_u32 s4, s4, s5\ns_mul_i32 s4, s4, {544*1024}\ns_add_u32 s4, s4, {256*1024}')
    e(f's_lshl_b32 s{sFb}, s{sFb}, 6\ns_add_u32 s{sFb}, s{sFb}, s4\ns_lshl_b32 s{sMb}, s{sMb}, 6\ns_add_u32 s{sMb}, s{sMb}, s4')
    e(f'v_add_u32 v{vDKV}, s{sWoff}, v{vL16}')
    e(f's_lshl_b32 s{sKoff}, s{sH}, 19')
    e(f's_sub_u32 s4, s{sNL}, 1\ns_lshl_b32 s4, s4, 14\ns_add_u32 s{sKmax}, s{sKoff}, s4\ns_mov_b32 s{sVoff}, s{sKoff}')
    frs = []
    for i in range(2):
        m = accGU[8, i]
        frs.append(([m[r] for r in range(8)], [m[8 + r] for r in range(8)], sMb, i*544*1024))
    for i in range(2):
        for j in range(4):
            for half in range(2):
                frs.append(([accGU[j, i][8*half + r] for r in range(8)], [accGU[4 + j, i][8*half + r] for r in range(8)], sFb, i*544*1024 + j*2048 + half*1024))
    def gelu_frag(k):
        gs, us, sb, off = frs[k]
        o = []
        if k < 2:
            G = [str(x) for x in gs]; U = [str(x) for x in us]; E = [f'v{240+r}' for r in range(8)]; P = 248
        else:
            G = [f'v{160+r}' for r in range(8)]; U = [f'v{168+r}' for r in range(8)]; E = [f'v{176+r}' for r in range(8)]; P = 184 + 4 * (k % 2)
            for r in range(8): o.append(f'v_accvgpr_read_b32 {G[r]}, {gs[r]}')
        for r in range(8): o.append(f'v_mul_f32 {E[r]}, {G[r]}, {G[r]}')
        if k >= 2:
            for r in range(8): o.append(f'v_accvgpr_read_b32 {U[r]}, {us[r]}')
        for r in range(8): o.append(f'v_fma_f32 {E[r]}, {E[r]}, s{sK2}, v{vK1}')
        for r in range(8): o.append(f'v_mul_f32 {E[r]}, {G[r]}, {E[r]}')
        for r in range(8): o += [f'v_exp_f32 {E[r]}, {E[r]}', f'v_mul_f32 {G[r]}, {G[r]}, {U[r]}']
        for r in range(8): o.append(f'v_add_f32 {E[r]}, 1.0, {E[r]}')
        for r in range(8): o.append(f'v_rcp_f32 {E[r]}, {E[r]}')
        for r in range(8): o.append(f'v_mul_f32 {G[r]}, {G[r]}, {E[r]}')
        for r in range(4): o.append(f'v_cvt_pk_bf16_f32 v{P+r}, {G[2*r]}, {G[2*r+1]}')
        o.append(f's_add_u32 s4, s{sb}, {off}')
        o.append((f'buffer_store_dwordx4 v[{P}:{P+3}], v{vL16}, {srd(sACT)}, s4 offen {ST}', 'hst'))
        return o
    def q_mf(FA, FW, first): return [(QA[x][j], FW[j], FA[1 - x], '0' if first else None) for j in range(4) for x in range(2)]
    def dma_tile(srd_, soff, tag):
        return [(f'buffer_load_dwordx4 v{vDKV}, {srd(srd_)}, s{soff} offen offset:{1024*i} sc1 lds', tag) for i in range(4)]
    def adv(soff): return [f's_add_u32 s{soff}, s{soff}, 16384', f's_min_u32 s{soff}, s{soff}, s{sKmax}']
    def tile_groups(srd_, soff, ldsoff, tag):
        d = dma_tile(srd_, soff, tag)
        return [[f's_add_u32 m0, s{sWoff}, {ldsoff}', 's_nop 0', d[0]], [d[1]], [d[2]], [d[3]] + adv(soff)]
    st('q_first')
    NST = 18
    vPoll, vPo = 30, 17
    for t in range(NST):
        gl = gelu_frag(t)
        if t == 0: gl = ['s_nop 7'] + gl
        cut = [k * len(gl) // 16 for k in range(17)]
        cut[15] = min(cut[15], len(gl) - 2)
        gsp = [gl[cut[k]:cut[k + 1]] for k in range(16)]
        fills = {}
        for k, x in enumerate(q_reads(1, YA, YW)): put(fills, k // 2, [x])
        for k in range(8): put(fills, k, gsp[k])
        if t == 10:
            put(fills, 7, [f'v_and_b32 v{vPo}, 7, v{vLane}', f'v_lshlrev_b32 v{vPo}, 2, v{vPo}', f'v_lshrrev_b32 v{vPoll}, 3, v{vLane}',
                           f'v_and_b32 v{vPoll}, 1, v{vPoll}', f'v_lshlrev_b32 v{vPoll}, 9, v{vPoll}', f'v_add_u32 v{vPo}, v{vPo}, v{vPoll}',
                           f's_lshr_b32 s5, s{sH}, 1', 's_lshl_b32 s5, s5, 5', f's_add_u32 s{sT2}, s5, {FL_KV}',
                           (f'buffer_load_dword v{vPoll}, v{vPo}, {srd(SF)}, s{sT2} offen sc1', 'poll')])
        run_sub(e, q_mf(XA, XW, t == 0), fills)
        fills = {}
        if t + 1 < NST:
            e.wait_vm(('q', t + 1), also_lgkm0=True, barrier=True)
            for x in qaddr(t + 1): e(x)
            for k, x in enumerate(q_reads(0, XA, XW)): put(fills, k // 2, [x])
        if t == 13: flag_check(e, vPoll, vPo, f's{sT2}', 16)
        dm = []
        if t + 3 < NST: dm += q_dma(t + 3)
        if t == 14: dm += tile_groups(sKF, sKoff, KB, ('K', 0))
        if t == 15: dm += tile_groups(sKF, sKoff, KB + 16384, ('K', 1)) + tile_groups(sKF, sKoff, KB + 32768, ('K', 2))
        if t == 16: dm += tile_groups(sKF, sKoff, KB + 49152, ('K', 3)) + tile_groups(sVF, sVoff, 0, ('V', 0))
        spread(fills, dm, 1, 7)
        if t == 4:
            assert 'kvst' not in e.vm
            put(fills, 0, publish_ops([f's_lshl_b32 s4, s{sCt}, 3', f's_add_u32 s4, s4, s{sTt}', 's_lshl_b32 s4, s4, 2', f's_add_u32 s4, s4, {FL_KV}'], 'L_pubkv'))
        for k in range(8): put(fills, k, gsp[8 + k])
        run_sub(e, q_mf(YA, YW, False), fills)
    st('q_loop')
    return attn_main(e, st, dict(QA=QA, tile_groups=tile_groups, dma_tile=dma_tile, adv=adv, vDKV=vDKV, vK=vK, vV=vV))

def attn_main(e, st, L):
    QA, tile_groups, dma_tile, adv = L['QA'], L['tile_groups'], L['dma_tile'], L['adv']
    vDKV, vK, vV = L['vDKV'], L['vK'], L['vV']
    vDelta = [17, 18]; vl = [19, 22]; vDl = 21; vNI = 29; vTm = 14
    Q = [[R('v', 32 + 32*x + 4*s, 4) for s in range(8)] for x in range(2)]
    S = [[R('v', 96 + 32*x + 16*kb, 16) for kb in range(2)] for x in range(2)]
    P = [[R('v', 160 + 16*x + 4*u, 4) for u in range(4)] for x in range(2)]
    NM = [R('v', 192 + 16*x, 16) for x in range(2)]
    O = [[R('a', 64*x + 16*t, 16) for t in range(4)] for x in range(2)]
    F = [R('a', 128 + 4*i, 4) for i in range(16)]
    TMP = 224
    L_, S_ = 0, 1
    e.wait_vm(('K', 0), also_lgkm0=True, barrier=True)
    emit_groups(e, tile_groups(sVF, sVoff, 16384, ('V', 1)))
    e(f'v_add_u32 v{vK}, {KB}, v{vL16}')
    for f in range(16): e.ds(f'ds_read_b128 {F[f]}, v{vK} offset:{f*1024}')
    e(f's_mov_b32 s{sT0}, {f2u(QSCALE):#x}')
    e('s_nop 7')
    def qconv(x):
        o = []
        for j in range(4):
            q = QA[x][j]
            for r in range(16): o.append(f'v_mul_f32 {q[r]}, s{sT0}, {q[r]}')
            for half in range(2):
                for r in range(4): o.append(f'v_cvt_pk_bf16_f32 {Q[x][2*j+half][r]}, {q[8*half+2*r]}, {q[8*half+2*r+1]}')
        return o
    qc1all = qconv(1)
    for i in qconv(0) + qc1all[:48]: e(i)
    e(f'v_and_b32 v{vTm}, 31, v{vLane}\nv_lshrrev_b32 v{vTm+1}, 5, v{vLane}\nv_lshlrev_b32 v{vTm+1}, 2, v{vTm+1}\nv_sub_u32 v{vTm}, v{vTm}, v{vTm+1}')
    e(f's_lshl_b32 s{sT0}, s{sWave}, 5')
    e(f's_sub_u32 s{sT1}, 15, s{sP}\ns_lshl_b32 s{sT1}, s{sT1}, 7\ns_add_u32 s{sT1}, s{sT1}, s{sT0}')
    e(f'v_add_u32 v{vDelta[L_]}, s{sT1}, v{vTm}')
    e(f's_lshl_b32 s{sT1}, s{sP}, 7\ns_add_u32 s{sT1}, s{sT1}, s{sT0}')
    e(f'v_add_u32 v{vDelta[S_]}, s{sT1}, v{vTm}')
    e(f'v_mov_b32 v{vNI}, {NEG_INF:#x}')
    MK = MKP
    def mask_burst(x, kb, Sx=None):
        Sx = Sx if Sx is not None else S[x][kb]
        o = [f's_add_u32 s{sT2}, s{sJt}, {32*kb}', f'v_subrev_u32 v{vDl}, s{sT2}, v{vDelta[x]}']
        def cmp(r):
            cr = (r & 3) + 8 * (r >> 2)
            return f'v_cmp_ge_i32 s[{MK[r%4]}:{MK[r%4]+1}], v{vDl}, {cr}'
        o += [cmp(0), cmp(1), cmp(2)]
        for r in range(16):
            o.append(f'v_cndmask_b32 {Sx[r]}, v{vNI}, {Sx[r]}, s[{MK[r%4]}:{MK[r%4]+1}]')
            if r + 3 < 16: o.append(cmp(r + 3))
        return o
    def tile0_soft(x):
        o = []
        for kb in range(2): o += mask_burst(x, kb)
        m = TMP + 2*x
        allr = [S[x][kb][r] for kb in range(2) for r in range(16)]
        o.append(f'v_max3_f32 v{m}, {allr[0]}, {allr[1]}, {allr[2]}')
        for k in range(3, 31, 2): o.append(f'v_max3_f32 v{m}, v{m}, {allr[k]}, {allr[k+1]}')
        o.append(f'v_max_f32 v{m}, v{m}, {allr[31]}')
        o += [f'v_mov_b32 v{m+1}, v{m}', 's_nop 1', f'v_permlane32_swap_b32 v{m}, v{m+1}', 's_nop 1', f'v_max_f32 v{m}, v{m}, v{m+1}', f'v_sub_f32 {NM[x][0]}, 0, v{m}']
        for r in range(1, 16): o.append(f'v_mov_b32 {NM[x][r]}, {NM[x][0]}')
        for rr in allr: o.append(f'v_add_f32 {rr}, {rr}, {NM[x][0]}')
        for r in range(16): o.append(f'v_exp_f32 {S[x][0][r]}, {S[x][0][r]}')
        for r in range(6): o.append(f'v_exp_f32 {S[x][1][r]}, {S[x][1][r]}')
        o.append(f'v_mov_b32 v{vl[x]}, {S[x][0][0]}')
        for r in range(1, 16): o.append(f'v_add_f32 v{vl[x]}, v{vl[x]}, {S[x][0][r]}')
        for r in range(5): o.append(f'v_add_f32 v{vl[x]}, v{vl[x]}, {S[x][1][r]}')
        for q in range(8): o.append(f'v_cvt_pk_bf16_f32 {P[x][q >> 2][q & 3]}, {S[x][0][2*q]}, {S[x][0][2*q+1]}')
        return o
    zer = [f'v_accvgpr_write_b32 a{i}, 0' for i in range(128)]
    e(f's_mov_b32 s{sJt}, 0\ns_mov_b32 s33, {f2u(QSCALE):#x}')
    qc1 = [x.replace(f's{sT0},', 's33,') for x in qc1all[48:]]
    k = 0
    for kb in range(2):
        for s_ in range(8):
            e.mf(S[L_][kb], F[kb*8+s_], Q[L_][s_], '0' if s_ == 0 else None)
            for z in qc1[3*k:3*k+3]: e(z)
            for z in zer[16+4*k:16+4*k+4]: e(z)
            k += 1
    tl = tile0_soft(L_)
    k = 0; pos = 0
    for kb in range(2):
        for s_ in range(8):
            e.mf(S[S_][kb], F[kb*8+s_], Q[S_][s_], '0' if s_ == 0 else None)
            if k < 2:
                for z in zer[8*k:8*k+8]: e(z)
            else:
                for i in tl[pos:pos+7]: e(i)
                pos += 7
            k += 1
    for i in tl[pos:]: e(i)
    ts = tile0_soft(S_)
    zr = zer[80:]
    for k in range(len(ts)):
        e(ts[k])
    for z in zr: e(z)
    st('tile0')
    e.wait_vm(('V', 1), also_lgkm0=True, barrier=True)
    assert 'hst' not in e.vm
    emit_list(e, publish_ops([f's_lshl_b32 s4, s{sTt}, 5', f's_add_u32 s4, s4, s{sCj}', 's_lshl_b32 s4, s4, 2', f's_add_u32 s4, s4, {FL_GU}'], 'L_pubgu'))
    emit_groups(e, tile_groups(sKF, sKoff, KB, ('K', 4)) + tile_groups(sVF, sVoff, 32768, ('V', 2)))
    e(f's_mov_b32 s{sKd}, 16384\ns_mov_b32 s{sVd}, 49152\ns_mov_b32 s{sJt}, 64')
    e(f'v_add_u32 v{vK}, {KB + 16384}, v{vL16}\nv_mov_b32 v{vV}, v{vL16}')
    def frag_read(f):
        ff = f % 32
        if ff < 8: return f'ds_read_b128 {F[ff % 16]}, v{vK} offset:{ff*1024}'
        if ff < 16: return f'ds_read_b128 {F[ff % 16]}, v{vV} offset:{(ff-8)*1024}'
        if ff < 24: return f'ds_read_b128 {F[ff % 16]}, v{vK} offset:{(8 + ff-16)*1024}'
        return f'ds_read_b128 {F[ff % 16]}, v{vV} offset:{(8 + ff-24)*1024}'
    def mfma(D, A, B, C=None): return f'v_mfma_f32_32x32x16_bf16 {D}, {A}, {B}, {C if C is not None else D}'
    for f in range(8): e(frag_read(f))
    def E(x, g_):
        g_ %= 32
        if 10 <= g_ <= 25: return S[x][0][g_-10]
        if g_ >= 26: return S[x][1][g_-26]
        return S[x][1][g_+6]
    def valu(x, g_, old, new):
        o = []
        if (old if g_ <= 9 else new): o.append(f'v_exp_f32 {E(x, g_)}, {E(x, g_)}')
        gp = (g_ - 1) % 32
        prev_old = (gp <= 9) or (g_ == 0)
        if (old if prev_old else new): o.append(f'v_add_f32 v{vl[x]}, v{vl[x]}, {E(x, gp)}')
        if g_ % 2 == 0:
            if g_ <= 14 and old:
                q = g_ // 2
                o.append(f'v_cvt_pk_bf16_f32 {P[x][2 + (q >> 2)][q & 3]}, {S[x][1][2*q]}, {S[x][1][2*q+1]}')
            if g_ >= 16 and new:
                q = (g_ - 16) // 2
                o.append(f'v_cvt_pk_bf16_f32 {P[x][q >> 2][q & 3]}, {S[x][0][2*q]}, {S[x][0][2*q+1]}')
        return o
    def strip(l): return [x[0] if isinstance(x, tuple) else x for x in l]
    def book(g_, dma=True):
        o = []
        if g_ == 17: o += [f's_add_u32 s{sM0K}, s{sKd}, s{sWoff}', f's_add_u32 s{sKd}, s{sKd}, 16384', f's_and_b32 s{sKd}, s{sKd}, 0xffff', f's_add_u32 s{sM0K}, s{sM0K}, {KB}']
        if g_ == 19: o += [f's_add_u32 s{sM0V}, s{sVd}, s{sWoff}', f's_add_u32 s{sVd}, s{sVd}, 16384', f's_and_b32 s{sVd}, s{sVd}, 0xffff']
        if g_ == 21: o += [f's_add_u32 s{sT1}, s{sVd}, 16384', f's_and_b32 s{sT1}, s{sT1}, 0xffff', f's_add_u32 s{sT2}, s{sKd}, {KB}']
        if g_ == 23: o += [f'v_add_u32 v{vK}, s{sT2}, v{vL16}']
        if not dma:
            if g_ == 24: o += [f'v_add_u32 v{vV}, s{sT1}, v{vL16}']
            if g_ == 31: o += [f's_add_u32 s{sJt}, s{sJt}, 64']
            return o
        dk = strip(dma_tile(sKF, sKoff, None)); dv = strip(dma_tile(sVF, sVoff, None))
        if g_ == 24: o += [f'v_add_u32 v{vV}, s{sT1}, v{vL16}', f's_mov_b32 m0, s{sM0K}', 's_nop 0', dk[0]]
        if g_ in (25, 26): o += [dk[g_-24]]
        if g_ == 27: o += [dk[3], f's_mov_b32 m0, s{sM0V}'] + adv(sKoff)
        if g_ in (28, 29, 30): o += [dv[g_-28]]
        if g_ == 31: o += [dv[3]] + adv(sVoff) + [f's_add_u32 s{sJt}, s{sJt}, 64']
        return o
    def step(qk, pv, masked, dma=True):
        for f in range(32):
            isK = f < 8 or 16 <= f < 24
            act = qk if isK else pv
            if f == 24: e(f's_waitcnt vmcnt({8 if dma else 0}) lgkmcnt(4)\ns_barrier')
            elif f % 4 == 0: e('s_waitcnt lgkmcnt(4)')
            todo = {x: valu(x, f, x in pv, x in qk) for x in range(2) if (x in pv or x in qk)}
            pre = []
            if f in (10, 26):
                for x in masked: pre += mask_burst(x, 0 if f == 10 else 1)
            first = True
            for x in act:
                if isK:
                    kb = 0 if f < 8 else 1; s_ = f % 8
                    e(mfma(S[x][kb], F[f % 16], Q[x][s_], NM[x] if s_ == 0 else None))
                else:
                    u = ((f - 8) // 4) if f < 16 else 2 + (f - 24) // 4; t = f % 4
                    e(mfma(O[x][t], F[f % 16], P[x][u]))
                if first:
                    e(frag_read(f + 8))
                    for i in book(f, dma): e(i)
                    for i in pre: e(i)
                    for y in list(todo):
                        if y not in act:
                            for i in todo.pop(y): e(i)
                    first = False
                for i in todo.pop(x): e(i)
    def loop(lab, cnt_sreg, body):
        e(f's_cmp_eq_u32 s{cnt_sreg}, 0\ns_cbranch_scc1 {lab}_end')
        e('.p2align 6')
        e.label(lab)
        body()
        e(f's_sub_u32 s{cnt_sreg}, s{cnt_sreg}, 1\ns_cmp_lg_u32 s{cnt_sreg}, 0\ns_cbranch_scc1 {lab}')
        e.label(lab + '_end')
    def ctx_base(x):
        if x == L_: e(f's_sub_u32 s{sT0}, 15, s{sP}\ns_lshl_b32 s{sT0}, s{sT0}, 2')
        else: e(f's_lshl_b32 s{sT0}, s{sP}, 2')
        e(f's_add_u32 s{sT0}, s{sT0}, s{sWave}\ns_mul_i32 s{sT0}, s{sT0}, 544\ns_lshl_b32 s{sT1}, s{sH}, 3\ns_add_u32 s{sT0}, s{sT0}, s{sT1}\ns_lshl_b32 s{sT0}, s{sT0}, 10')
    def epi(x, check, Ox=None, inter=None):
        Ox = Ox if Ox is not None else O[x]
        T0 = TMP; EB = 128
        inter = list(inter or [])
        e(f'v_mov_b32 v{T0}, v{vl[x]}\ns_nop 1\nv_permlane32_swap_b32 v{vl[x]}, v{T0}\ns_nop 1')
        e(f'v_add_f32 v{vl[x]}, v{vl[x]}, v{T0}')
        if check:
            e(f'v_mov_b32 v{T0+1}, 0x5d800000')
            e(f'v_cmp_nlt_f32 vcc, v{vl[x]}, v{T0+1}')
        e(f'v_rcp_f32 v{T0}, v{vl[x]}')
        e('s_nop 1')
        if check: e(f's_or_b32 s{sSlow}, s{sSlow}, vcc_lo\ns_or_b32 s{sSlow}, s{sSlow}, vcc_hi')
        ctx_base(x)
        per = (len(inter) + 3) // 4
        for t in range(4):
            emit_groups(e, inter[t*per:(t+1)*per])
            ee = EB + 16 * (t % 2)
            for r in range(16): e(f'v_accvgpr_read_b32 v{ee+r}, {Ox[t][r]}')
            for r in range(16): e(f'v_mul_f32 v{ee+r}, v{ee+r}, v{T0}')
            for r in range(8): e(f'v_cvt_pk_bf16_f32 v{ee+r}, v{ee+2*r}, v{ee+2*r+1}')
            e(f's_add_u32 s{sT1}, s{sT0}, {t*2048}')
            e.vmem(f'buffer_store_dwordx4 v[{ee}:{ee+3}], v{vL16}, {srd(sACT)}, s{sT1} offen {ST}', 'cst')
            e.vmem(f'buffer_store_dwordx4 v[{ee+4}:{ee+7}], v{vL16}, {srd(sACT)}, s{sT1} offen offset:1024 {ST}', 'cst')
    def pfx(ptr, key, k, n):
        if ARG('nopf2'): return
        for x in pf_ops(ptr, key, k, n): e(x[0] if isinstance(x, tuple) else x)
    e(f's_sub_u32 s{sCnt}, s{sNS}, 3\ns_max_i32 s{sCnt}, s{sCnt}, 0')
    loop('LAT_A', sCnt, lambda: step([L_, S_], [L_, S_], []))
    st('A')
    e(f's_sub_u32 s{sCnt}, s{sNS}, 1\ns_min_u32 s{sCnt}, s{sCnt}, 2')
    loop('LAT_B', sCnt, lambda: step([L_, S_], [L_, S_], [S_]))
    pfx(pWd, 'wd', 0, 2)
    step([L_], [L_, S_], [L_])
    e('s_nop 7\ns_nop 7')
    st('BC')
    pfx(pWd, 'wd', 1, 2)
    epi(S_, True)
    pfx(pWo, 'wo', 0, 1)
    FIN.setup(e)
    st('epiS')
    e(f's_sub_u32 s{sCnt}, s{sNL}, s{sNS}\ns_sub_u32 s{sCnt}, s{sCnt}, 3\ns_max_i32 s{sCnt}, s{sCnt}, 0')
    loop('LAT_D', sCnt, lambda: step([L_], [L_], []))
    st('D')
    e(f's_cmp_eq_u32 s{sP}, 7\ns_cselect_b32 s{sCnt}, 1, 2')
    loop('LAT_E', sCnt, lambda: step([L_], [L_], [L_], dma=False))
    for f in range(8, 16): e(frag_read(f))
    for g_ in range(0, 16):
        for i in valu(L_, g_, True, False): e(i)
    e('s_waitcnt lgkmcnt(0)')
    for k, f in enumerate(range(8, 16)):
        e(mfma(O[L_][f % 4], F[f % 16], P[L_][(f - 8) // 4]))
        e(frag_read(24 + k))
    e('s_waitcnt lgkmcnt(0)')
    for f in range(24, 32): e(mfma(O[L_][f % 4], F[f % 16], P[L_][2 + (f - 24) // 4]))
    e('s_nop 7\ns_nop 7')
    FIN.check_gu(e)
    e('s_barrier')
    e.vm = []
    epi(L_, True, inter=FIN.pre())
    st('epiL')
    if ARG('forceslow'): e(f's_mov_b32 s{sSlow}, 1')
    e(f'v_mov_b32 v{TMP}, s{sSlow}\nv_lshlrev_b32 v{TMP+1}, 2, v0\nv_and_b32 v{TMP+1}, 0x300, v{TMP+1}\nv_lshrrev_b32 v{TMP+1}, 6, v{TMP+1}\nv_add_u32 v{TMP+1}, 122880, v{TMP+1}')
    e(f'ds_write_b32 v{TMP+1}, v{TMP}\ns_waitcnt lgkmcnt(0)\ns_barrier')
    e(f'v_mov_b32 v{TMP+1}, 122880\nds_read_b128 v[{TMP+4}:{TMP+7}], v{TMP+1}\ns_waitcnt lgkmcnt(0)')
    e(f'v_or_b32 v{TMP+4}, v{TMP+4}, v{TMP+5}\nv_or_b32 v{TMP+6}, v{TMP+6}, v{TMP+7}\nv_or_b32 v{TMP+4}, v{TMP+4}, v{TMP+6}\ns_nop 0')
    e(f'v_readfirstlane_b32 s{sSlow}, v{TMP+4}')
    e('s_nop 1')
    e(f's_cmp_eq_u32 s{sSlow}, 0\ns_cbranch_scc1 L_noslow')
    vm_saved = list(e.vm)
    e('s_waitcnt vmcnt(0)\ns_barrier')
    for x in (L_, S_):
        lab = f'L_sl{x}'
        vm = TMP + 12
        Ox = O[0]
        for i in range(64): e(f'v_accvgpr_write_b32 a{i}, 0')
        e(f'v_mov_b32 v{vm}, v{vNI}\nv_mov_b32 v{vl[x]}, 0')
        e(f's_lshl_b32 s{sKoff}, s{sH}, 19\ns_mov_b32 s{sJt}, 0')
        e(f's_mov_b32 s{sCnt}, s{sNL if x == L_ else sNS}')
        e.label(lab)
        e('s_barrier')
        e(f's_mov_b32 m0, s{sWoff}\ns_nop 0')
        for i in strip(dma_tile(sKF, sKoff, None)): e(i)
        e(f's_add_u32 m0, s{sWoff}, 16384\ns_nop 0')
        for i in strip(dma_tile(sVF, sKoff, None)): e(i)
        e(f's_add_u32 s{sKoff}, s{sKoff}, 16384')
        e('s_waitcnt vmcnt(0)\ns_barrier')
        for f in range(16): e(f'ds_read_b128 {F[f]}, v{vL16} offset:{f*1024}')
        e('s_waitcnt lgkmcnt(0)')
        for kb in range(2):
            for s_ in range(8): e(mfma(S[0][kb], F[kb*8+s_], Q[x][s_], '0' if s_ == 0 else None))
        for f in range(16): e(f'ds_read_b128 {F[f]}, v{vL16} offset:{16384 + f*1024}')
        e('s_nop 7\ns_nop 7')
        for kb in range(2):
            for i in mask_burst(x, kb, S[0][kb]): e(i)
        allr = [S[0][kb][r] for kb in range(2) for r in range(16)]
        m = TMP
        e(f'v_max3_f32 v{m}, {allr[0]}, {allr[1]}, {allr[2]}')
        for k in range(3, 31, 2): e(f'v_max3_f32 v{m}, v{m}, {allr[k]}, {allr[k+1]}')
        e(f'v_max3_f32 v{m}, v{m}, {allr[31]}, v{vm}')
        e(f'v_mov_b32 v{m+1}, v{m}\ns_nop 1\nv_permlane32_swap_b32 v{m}, v{m+1}\ns_nop 1')
        e(f'v_max_f32 v{m}, v{m}, v{m+1}')
        e(f'v_sub_f32 v{m+1}, v{vm}, v{m}\nv_exp_f32 v{m+1}, v{m+1}\nv_mov_b32 v{vm}, v{m}')
        for rr in allr: e(f'v_sub_f32 {rr}, {rr}, v{m}')
        for rr in allr: e(f'v_exp_f32 {rr}, {rr}')
        e(f'v_mul_f32 v{vl[x]}, v{vl[x]}, v{m+1}')
        for rr in allr: e(f'v_add_f32 v{vl[x]}, v{vl[x]}, {rr}')
        for kb in range(2):
            for q in range(8): e(f'v_cvt_pk_bf16_f32 {P[0][2*kb + (q >> 2)][q & 3]}, {S[0][kb][2*q]}, {S[0][kb][2*q+1]}')
        for i in range(64):
            e(f'v_accvgpr_read_b32 v{m+2}, a{i}\nv_mul_f32 v{m+2}, v{m+2}, v{m+1}\nv_accvgpr_write_b32 a{i}, v{m+2}')
        e('s_waitcnt lgkmcnt(0)\ns_nop 1')
        for u in range(4):
            for t in range(4): e(mfma(Ox[t], F[u*4+t], P[0][u]))
        e(f's_add_u32 s{sJt}, s{sJt}, 64')
        e(f's_sub_u32 s{sCnt}, s{sCnt}, 1\ns_cmp_lg_u32 s{sCnt}, 0\ns_cbranch_scc1 {lab}')
        e('s_nop 7\ns_nop 7')
        epi(x, False, Ox)
    e('s_waitcnt vmcnt(0)\ns_barrier')
    FIN.ptrs(e)
    for g in FIN.pre():
        for x in g: e(x[0] if isinstance(x, tuple) else x)
    e('s_waitcnt vmcnt(0)')
    e.label('L_noslow')
    e.vm = vm_saved
    st('slowchk')
```

```python
from v4b import *
HS = [14, 14, 14, 15, 15] if ARG('uneven') else [15, 14, 14, 14, 15]
CS = [12, 13, 13, 13, 13] if not ARG('uneven') else [12, 13, 13, 13, 13]
NS = 4; SS = 40960; ACTB = 16384; PITCH = 1152; ND = 10
sW, sA, sO = S0, sACT, S3
fTt, fNt, fSp, fHst, fHn, fCst, fCn = 36, 37, 40, 45, 46, 47, 49
fSo = {(0, 0): '0', (0, 1): 's56', (1, 0): 's57', (1, 1): 's58', (2, 0): 's59', (2, 1): 's67'}
fM0A, fM0W, fDst, fDeltaA, fDeltaW, fT0, fCnt = 70, 71, 82, 83, 86, 87, 94
fStage, fPo, fTile, fPb = 28, 29, 30, 31
vDA, vDW, vPoll, vPo = 11, 12, 25, 26

def ptrs(e):
    e(f's_lshl_b32 s4, s{fTt}, 2\ns_add_u32 s4, s4, s{sWave}\ns_mul_i32 s4, s4, 544\ns_lshl_b32 s5, s{fHst}, 2\ns_add_u32 s4, s4, s5\ns_add_u32 s4, s4, 256\ns_lshl_b32 s4, s4, 10')
    e(f'v_add_u32 v{vDA}, s4, v{vL16}')
    e(f'v_lshrrev_b32 v{vT}, 3, v{vLane}\nv_mul_u32_u24 v{vDW}, {PITCH}, v{vT}')
    e(f'v_bfe_u32 v{vT}, v{vLane}, 4, 1\nv_bfe_u32 v{PFV}, v{vLane}, 2, 1\nv_xor_b32 v{vT}, v{vT}, v{PFV}')
    e(f'v_lshl_add_u32 v{vDW}, v{vT}, 6, v{vDW}\nv_and_b32 v{vT}, 3, v{vLane}\nv_lshl_add_u32 v{vDW}, v{vT}, 4, v{vDW}')
    e(f's_mul_i32 s4, s{fNt}, 384\ns_lshl_b32 s5, s{fHst}, 6\ns_lshl_b32 s6, s{sWave}, 4\ns_add_u32 s5, s5, s6\ns_mul_i32 s5, s5, {PITCH}\ns_add_u32 s4, s4, s5')
    e(f'v_add_u32 v{vDW}, s4, v{vDW}')
    e(f's_mov_b32 s{fDst}, 0')
    make_srd(e, sW, pWd, SZ['wd'])

def setup(e):
    e(f's_cmp_ge_u32 s{sIdx}, 15\ns_cselect_b32 s4, 1, 0\ns_mul_i32 s5, s4, 15\ns_sub_u32 s5, s{sIdx}, s5')
    e(f's_lshl_b32 s6, s{sXcd}, 1\ns_add_u32 s{fTt}, s6, s4')
    e(f's_mul_i32 s6, s5, 86\ns_lshr_b32 s{fSp}, s6, 8\ns_mul_i32 s6, s{fSp}, 3\ns_sub_u32 s{fNt}, s5, s6')
    hst = [sum(HS[:i]) for i in range(5)]; cst = [sum(CS[:i]) for i in range(5)]
    e(f's_mov_b32 s{fHst}, {hst[0]}\ns_mov_b32 s{fHn}, {HS[0]}\ns_mov_b32 s{fCst}, {cst[0]}\ns_mov_b32 s{fCn}, {CS[0]}')
    for i in range(1, 5):
        e(f's_cmp_eq_u32 s{fSp}, {i}\ns_cselect_b32 s{fHst}, {hst[i]}, s{fHst}\ns_cselect_b32 s{fHn}, {HS[i]}, s{fHn}\ns_cselect_b32 s{fCst}, {cst[i]}, s{fCst}\ns_cselect_b32 s{fCn}, {CS[i]}, s{fCn}')
    e(f's_add_u32 s4, s{fHst}, s{fHn}\ns_lshl_b32 s5, s4, 2\ns_add_u32 s5, s5, 256\ns_lshl_b32 s6, s{fCst}, 2\ns_sub_u32 s5, s6, s5\ns_lshl_b32 s{fDeltaA}, s5, 10')
    e(f's_sub_u32 s4, s{fCst}, s4\ns_mul_i32 s{fDeltaW}, s4, {64*PITCH}')
    for (nb2, j), r in fSo.items():
        if r != '0': e(f's_mov_b32 {r}, {nb2 * 128 + j * (8 * PITCH - 1024)}')
    e(f's_lshl_b32 s{fM0A}, s{sWave}, 12')
    e(f's_lshl_b32 s4, s{sWave}, 11\ns_add_u32 s{fM0W}, s4, {ACTB}')
    ptrs(e)
    e(f'v_and_b32 v{vPo}, 31, v{vLane}\nv_lshlrev_b32 v{vPo}, 2, v{vPo}')
    e(f's_lshr_b32 s4, s{fTt}, 1\ns_lshl_b32 s4, s4, 7\ns_add_u32 s{fPo}, s4, {FL_GU}')
    e(f'buffer_load_dword v{vPoll}, v{vPo}, {srd(SF)}, s{fPo} offen sc1')

def check_gu(e):
    flag_check(e, vPoll, vPo, f's{fPo}', 32)

_cnt = [0]
def dma_ops(tag=None):
    g = []
    g.append([f's_add_u32 m0, s{fDst}, s{fM0A}', f's_add_u32 s{fT0}, s{fDst}, s{fM0W}', (f'buffer_load_dwordx4 v{vDA}, {srd(sA)}, 0 offen sc1 lds', tag)])
    for i in range(1, 4):
        g.append([(f'buffer_load_dwordx4 v{vDA}, {srd(sA)}, 0 offen offset:{1024*i} sc1 lds', tag)])
    for nb2 in range(3):
        g.append([f's_add_u32 m0, s{fT0}, {nb2*8192}', 's_nop 0', (f'buffer_load_dwordx4 v{vDW}, {srd(sW)}, {fSo[nb2,0]} offen lds', tag)])
        g.append([(f'buffer_load_dwordx4 v{vDW}, {srd(sW)}, {fSo[nb2,1]} offen offset:1024 lds', tag)])
    g[-1] += [f'v_add_u32 v{vDA}, 4096, v{vDA}', f'v_add_u32 v{vDW}, {64*PITCH}, v{vDW}',
              f's_add_u32 s{fDst}, s{fDst}, {SS}', f's_cmp_ge_u32 s{fDst}, {NS*SS}', f's_cselect_b32 s{fDst}, 0, s{fDst}']
    return g
def pre():
    return dma_ops(('f', 0)) + dma_ops(('f', 1)) + dma_ops(('f', 2))

def phase_fin(e, st):
    def mfma(D, A, B, C=None): return f'v_mfma_f32_32x32x16_bf16 {D}, {A}, {B}, {C if C is not None else D}'
    def strip(l): return [x[0] if isinstance(x, tuple) else x for x in l]
    def pub_ctx(suffix):
        o = []
        for x, lab in ((0, 'L_pubcl' + suffix), (1, 'L_pubcs' + suffix)):
            ops = ([f's_sub_u32 s4, 15, s{sP}'] if x == 0 else [f's_mov_b32 s4, s{sP}']) + \
                  ['s_lshl_b32 s4, s4, 5', f's_add_u32 s4, s4, s{sH}', 's_lshl_b32 s4, s4, 2', f's_add_u32 s4, s4, {FL_CTX}']
            o += strip(publish_ops(ops, lab, vt=22))
        return o
    e(f's_cmp_lt_u32 s{sIdx}, 30\ns_cbranch_scc1 LF_go')
    e('s_waitcnt vmcnt(0)\ns_barrier')
    for x in pub_ctx('x'): e(x)
    e('s_branch L_end')
    e.label('LF_go')
    vA, vAb = 3, 4
    vW0b, vW1b = 8, 9
    vB = [13, 14, 15]; vBb = [16, 17, 18]
    FS = [([R('v', 160 + 20*b + 4*i, 4) for i in range(2)], [R('v', 168 + 20*b + 4*i, 4) for i in range(3)]) for b in range(4)]
    acc = {(j, i): R('v', 64 + 16 * (2*j + i), 16) for j in range(3) for i in range(2)}
    e(f's_and_b32 s4, s{sWave}, 1\ns_lshl_b32 s4, s4, 13\nv_add_u32 v{vAb}, s4, v{vL16}')
    lane_w_base(e, vW0b, vW1b, vT, 1, 512)
    e(f'v_add_u32 v{vW0b}, {ACTB}, v{vW0b}\nv_add_u32 v{vW1b}, {ACTB}, v{vW1b}')
    e(f's_lshr_b32 s4, s{sWave}, 1\ns_cmp_eq_u32 s4, 0\ns_cbranch_scc0 LF_wn1')
    e(f'v_mov_b32 v{vBb[0]}, v{vW0b}\nv_mov_b32 v{vBb[1]}, v{vW1b}\nv_add_u32 v{vBb[2]}, 8192, v{vW0b}\ns_branch LF_wn2')
    e.label('LF_wn1')
    e(f'v_add_u32 v{vBb[0]}, 8192, v{vW1b}\nv_add_u32 v{vBb[1]}, 16384, v{vW0b}\nv_add_u32 v{vBb[2]}, 16384, v{vW1b}')
    e.label('LF_wn2')
    for i in range(96): e(f'v_mov_b32 v{64+i}, 0')
    e(f's_mov_b32 s{fStage}, 0')
    e(f'v_mov_b32 v{vA}, v{vAb}')
    for j in range(3): e(f'v_mov_b32 v{vB[j]}, v{vBb[j]}')
    def reads(ks, FA, FW):
        r = []
        def wrd(j):
            for i2 in range(2):
                r.append(f'ds_read_b64_tr_b16 {FW[j][2*i2:2*i2+2]}, v{vB[j]} offset:{(4*ks + 2*i2)*512}')
        wrd(0)
        for i in range(2): r.append(f'ds_read_b128 {FA[i]}, v{vA} offset:{i*4096 + ks*1024}')
        wrd(1); wrd(2)
        return r
    def mfmas(FA, FW): return [mfma(acc[j, i], FW[j], FA[i]) for j in range(3) for i in range(2)]
    def inter(mf, fills):
        for k, m in enumerate(mf):
            e(m)
            for f in fills.get(k, []): e(f)
    e.wait_vm(('f', 0), barrier=True)
    st('fin_first')
    for x in reads(0, *FS[0]) + reads(1, *FS[1]): e(x)
    def body(dma, vm, hook=None):
        dg = [strip(g) for g in dma_ops()] if dma else []
        for ks in range(4):
            fills = {}
            rd = []
            if ks == 2 and vm is not None:
                e(f's_waitcnt vmcnt({vm}) lgkmcnt(8)\ns_barrier')
                for x in [f's_add_u32 s{fStage}, s{fStage}, {SS}', f's_cmp_ge_u32 s{fStage}, {NS*SS}', f's_cselect_b32 s{fStage}, 0, s{fStage}',
                          f'v_add_u32 v{vA}, s{fStage}, v{vAb}'] + [f'v_add_u32 v{vB[j]}, s{fStage}, v{vBb[j]}' for j in range(3)]: e(x)
            else:
                e('s_waitcnt lgkmcnt(8)' if (ks < 2 or vm is not None) else 's_waitcnt lgkmcnt(0)')
            if ks < 2: rd = reads(ks + 2, *FS[ks + 2])
            elif vm is not None: rd = reads(ks - 2, *FS[ks - 2])
            for k_, x in enumerate(rd): fills.setdefault(k_ // 2, []).append(x)
            if ks >= 2:
                h = len(dg) // 2
                part = dg[:h] if ks == 2 else dg[h:]
                for k_, g in enumerate(part): fills.setdefault(min(k_ + 1, 5), []).extend(g)
            if ks == 3 and hook: fills.setdefault(0, []).extend(hook)
            inter(mfmas(*FS[ks]), fills)
    def loop(lab, hook=None):
        e('.p2align 6'); e.label(lab)
        body(True, ND, hook)
        e(f's_sub_u32 s{fCnt}, s{fCnt}, 1\ns_cmp_lg_u32 s{fCnt}, 0\ns_cbranch_scc1 {lab}')
    e(f's_sub_u32 s{fCnt}, s{fHn}, 4\ns_sub_u32 s{fT0+0 if False else 33}, s{fCnt}, 2')
    hook = [f's_cmp_lg_u32 s{fCnt}, s33', 's_cbranch_scc1 LF_nohook'] + pub_ctx('') + ['LF_nohook:']
    loop('LF_loop1', hook)
    e(f's_lshl_b32 s4, s{fTt}, 7\ns_add_u32 s{fPo}, s4, {FL_CTX}')
    e(f'buffer_load_dword v{vPoll}, v{vPo}, {srd(SF)}, s{fPo} offen sc1')
    body(True, ND)
    e(f's_waitcnt vmcnt({ND})')
    e.vm = []
    flag_check(e, vPoll, vPo, f's{fPo}', 32)
    e(f'v_add_u32 v{vDA}, s{fDeltaA}, v{vDA}\nv_add_u32 v{vDW}, s{fDeltaW}, v{vDW}')
    e(f's_mov_b32 s{sW}, s{pWo}\ns_mov_b32 s{sW+1}, s{pWo+1}\ns_mov_b32 s{sW+2}, {SZ["wo"]:#x}')
    e(f's_mov_b32 s{fCnt}, s{fCn}')
    loop('LF_loop2')
    body(False, ND); body(False, 0); body(False, None)
    st('fin_loop')
    units = [(j, i, m) for j in range(3) for i in range(2) for m in range(2)]
    sX, sOut = S1, S2
    srd_from(e, sO, pWs, SZ_PART, WS_PART)
    srd_from(e, sX, pX, SZ['x']); srd_from(e, sOut, pOut, SZ['out'])
    e(f's_mul_i32 s{fTile}, s{fTt}, 3\ns_add_u32 s{fTile}, s{fTile}, s{fNt}')
    e(f's_mul_i32 s{fPb}, s{fTile}, {12*5*4*1024}\ns_lshl_b32 s4, s{sWave}, 10\ns_add_u32 s{fPb}, s{fPb}, s4')
    vXo, vOo, vTt = 10, 11, 7
    e(f's_lshl_b32 s4, s{fTt}, 7\ns_and_b32 s5, s{sWave}, 1\ns_lshl_b32 s5, s5, 6\ns_add_u32 s4, s4, s5')
    e(f'v_and_b32 v{vTt}, 31, v{vLane}\nv_add_u32 v{vTt}, s4, v{vTt}\ns_movk_i32 s5, 1152\nv_mul_lo_u32 v{vTt}, v{vTt}, s5')
    e(f's_mul_i32 s4, s{fNt}, 384\ns_lshr_b32 s5, s{sWave}, 1\ns_mul_i32 s5, s5, 192\ns_add_u32 s4, s4, s5\nv_add_u32 v{vTt}, s4, v{vTt}')
    e(f'v_lshrrev_b32 v{vTt+1}, 5, v{vLane}\nv_lshl_add_u32 v{vXo}, v{vTt+1}, 3, v{vTt}\nv_lshl_add_u32 v{vOo}, v{vTt+1}, 4, v{vTt}')
    e('s_nop 7')
    n0 = st.n; names0 = list(st.names)
    for sp in range(5):
        st.n = n0; st.names = list(names0)
        if sp < 4: e(f's_cmp_lg_u32 s{fSp}, {sp}\ns_cbranch_scc1 LX_n{sp}')
        own = [u for u in range(12) if u % 5 == sp]
        nn = 0
        for u, (j, i, m) in enumerate(units):
            if u in own: continue
            p_ = 160 + 4 * (nn % 8); nn += 1
            for r in range(4): e(f'v_cvt_pk_bf16_f32 v{p_+r}, {acc[j,i][8*m+2*r]}, {acc[j,i][8*m+2*r+1]}')
            e(f's_add_u32 s4, s{fPb}, {(u*5 + sp)*4*1024}')
            e(f'buffer_store_dwordx4 v[{p_}:{p_+3}], v{vL16}, {srd(sO)}, s4 offen sc1')
        for k, u in enumerate(own):
            j, i, m = units[u]
            off = i*32*1152 + (32*j + 16*m)*2
            xr = (20, 24, 52)[k]
            e(f's_mov_b32 s4, {off}')
            e(f'buffer_load_dwordx2 v[{xr}:{xr+1}], v{vXo}, {srd(sX)}, s4 offen')
            e(f'buffer_load_dwordx2 v[{xr+2}:{xr+3}], v{vXo}, {srd(sX)}, s4 offen offset:16')
        st('x_issued')
        e('s_waitcnt vmcnt(0)\ns_barrier')
        st('x_drained')
        for xx in strip(publish_ops([f's_lshl_b32 s4, s{fTile}, 3', f's_add_u32 s4, s4, {sp}', 's_lshl_b32 s4, s4, 2', f's_add_u32 s4, s4, {FL_EX}'], f'L_pubex{sp}')): e(xx)
        e(f'v_min_u32 v{vPo-7}, 4, v{vLane}\nv_lshlrev_b32 v{vPo-7}, 2, v{vPo-7}')
        e(f's_lshl_b32 s{fPo}, s{fTile}, 5\ns_add_u32 s{fPo}, s{fPo}, {FL_EX}')
        e(f'buffer_load_dword v{vPo-8}, v{vPo-7}, {srd(SF)}, s{fPo} offen sc1\ns_waitcnt vmcnt(0)')
        flag_check(e, vPo - 8, vPo - 7, f's{fPo}', 5)
        st('x_flags')
        srcs = [q for q in range(5) if q != sp]
        def preg(k, z): return 160 + 16*k + 4*z
        for k, u in enumerate(own):
            for z, q in enumerate(srcs):
                r0 = preg(k, z)
                e(f's_add_u32 s4, s{fPb}, {(u*5 + q)*4*1024}')
                e(f'buffer_load_dwordx4 v[{r0}:{r0+3}], v{vL16}, {srd(sO)}, s4 offen sc1')
        e('s_mov_b32 s5, 0xffff0000')
        for k, u in enumerate(own):
            j, i, m = units[u]
            e(f's_waitcnt vmcnt({4*(len(own) - 1 - k) + k})')
            a_ = acc[j, i][8*m:8*m+8]
            for r in range(8):
                src = (20, 24, 52)[k] + (r >> 1)
                e(f'v_and_b32 v{56+r}, s5, v{src}' if r & 1 else f'v_lshlrev_b32 v{56+r}, 16, v{src}')
            for r in range(8): e(f'v_add_f32 v{56+r}, v{56+r}, {a_[r]}')
            for z in range(4):
                for r in range(8):
                    src = preg(k, z) + (r >> 1)
                    e(f'v_and_b32 v{vTt}, s5, v{src}' if r & 1 else f'v_lshlrev_b32 v{vTt}, 16, v{src}')
                    e(f'v_add_f32 v{56+r}, v{56+r}, v{vTt}')
            o_ = 40 + 4*k
            for r in range(4): e(f'v_cvt_pk_bf16_f32 v{o_+r}, v{56+2*r}, v{56+2*r+1}')
            e(f's_nop 1\nv_permlane32_swap_b32 v{o_}, v{o_+2}\nv_permlane32_swap_b32 v{o_+1}, v{o_+3}')
            off = i*32*1152 + (32*j + 16*m)*2
            e(f's_mov_b32 s4, {off}')
            e(f'buffer_store_dwordx4 v[{o_}:{o_+3}], v{vOo}, {srd(sOut)}, s4 offen {"sc1" if ARG("outsc1") else ""}')
        e('s_branch L_end')
        if sp < 4: e.label(f'LX_n{sp}')
```

```python
from v4c import *
import v4fin

def gen_mega(name):
    e = Em()
    st = St(e)
    kernel_header(e, name)
    kv = phase_start_kv(e, st)
    gu = phase_gu(e, st, kv)
    phase_attn(e, st, gu)
    v4fin.phase_fin(e, st)
    e.label('L_end')
    if gen_common.STAMP:
        e('s_waitcnt vmcnt(0)')
        st('end')
        st.flush()
    e.label('L_done')
    e('s_endpgm')
    e.label('L_codeend')
    return e, kernel_desc(name, 512, 102, 256), st

if __name__ == '__main__':
    gen_common.STAMP = 'stamp' in sys.argv
    HEADER = open('parallel_sum__compressed_kv_cla__glu_gated_geglu__prompt.s.ref').read().split('; Override launch')[0]
    KNAME = 'parallel_sum__compressed_kv_cla__glu_gated_geglu__prompt_kernel'
    e, desc, st = gen_mega(KNAME)
    out = HEADER
    out += '; @launch grid=(256,1,1) block=(256,1,1) lds=163840\n'
    out += '.amdgcn_target "amdgcn-amd-amdhsa--gfx950"\n.text\n' + e.text()
    out += '.section .rodata,"a"\n.p2align 6\n' + desc
    errs = check_hazards(e.lines, 'mega')
    print('hazards:', len(errs), 'lines', len(e.lines), 'stamps', st.names, file=sys.stderr)
    open(sys.argv[1], 'w').write(out)
```

```python
import sys
import mega_common
from mega_common import *
mega_common.vStamp = 31
vStamp = 31

GK1 = -2.302208198
GK2 = GK1 * 0.044715
QSCALE = 1.4426950408889634 / (128 ** 0.5)
NEG_INF = 0xff800000
ST = 'sc1'
PFS = 33; PFV = 23
vT = 20
ARG = lambda k: k in sys.argv

def run_sub(e, mfs, fills):
    for k, m in enumerate(mfs):
        e.mf(*m)
        for f in fills.get(k, []):
            if isinstance(f, tuple): e.op(f[0], f[1])
            else: e.op(f)
def put(fills, gap, items): fills.setdefault(gap, []).extend(items)
def emit_groups(e, groups):
    for g in groups:
        for f in g:
            if isinstance(f, tuple): e.op(f[0], f[1])
            else: e.op(f)
def emit_list(e, l): emit_groups(e, [l])
def spread(fills, groups, g0, g1):
    n = len(groups)
    for k, g in enumerate(groups): put(fills, g0 + (k * (g1 - g0 + 1)) // max(n, 1), g)
def pf_ops(ptr, key, k, n):
    per = SZ[key] // 1024
    lines = (per + 127) // 128
    L = (lines + n - 1) // n
    lo = k * L; cnt = min(L, lines - lo)
    return [f's_mov_b32 s4, s{ptr}', f's_mov_b32 s5, s{ptr+1}', f's_mov_b32 s6, {SZ[key]:#x}', 's_mov_b32 s7, 0x20000',
            f's_lshl_b32 s{PFS}, s2, 2', f's_add_u32 s{PFS}, s{PFS}, s{sWave}', f's_mul_i32 s{PFS}, s{PFS}, {per}', f's_add_u32 s{PFS}, s{PFS}, {lo*128}',
            f'v_lshlrev_b32 v{PFV}, 7, v{vLane}', f's_mov_b32 exec_lo, {hex((1 << min(cnt, 32)) - 1)}', f's_mov_b32 exec_hi, {hex((1 << max(cnt - 32, 0)) - 1)}',
            (f'buffer_load_dword v{PFV+1}, v{PFV}, s[4:7], s{PFS} offen', 'pf'), 's_mov_b64 exec, -1']
def publish_ops(soff_instrs, lab, vt=14):
    return [f's_cmp_lg_u32 s{sWave}, 0', f's_cbranch_scc1 {lab}', f'v_mov_b32 v{vt}, s{sTag}', f'v_mov_b32 v{vt+1}, 0'] + soff_instrs + \
           ['s_mov_b64 exec, 1', (f'buffer_store_dword v{vt}, v{vt+1}, {srd(SF)}, s4 offen sc1', 'OPT'), 's_mov_b64 exec, -1', f'{lab}:']

sCt, sTt = 34, 35
kM0A, kM0W, kSoW, kSoA = 38, 39, 44, 48
gG, gU, gA, gM = S3, S4, 56, 60
sCj, sFb, sMb = 36, 37, 40
gSoffA, gSoffW, gM0A, gM0G, gM0U, gM0M = 41, 42, 43, 44, 48, 66
sKVo = [67, 70, 71, 82, 83, 86, 87, 94]
sACT = 96
qW, sKF, sVF = S0, S1, S2
qSoffA, qSoffW, qM0A, qM0W = 45, 46, 47, 49
sH, sP, sNS, sNL = 50, 51, 52, 53
sCnt, sKd, sVd, sKoff, sVoff, sKmax, sWoff, sM0K, sM0V, sJt = 54, 55, 38, 39, 41, 42, 43, 44, 48, 66
sT0, sT1, sT2, sK2 = 34, 95, 100, 101
MKP = [60, 62, 4, 6]
G_NST = 18; GOFF = 16384; UOFF = 24576; MOFF = 32768; MUO = 1152; G_SS = 35072; G_PITCH = 9216
gDA, gDW, gDM, vKVo = 25, 26, 27, 28
def g_slot(t): return ((t + 2) % 4) * G_SS
def gu_dma(t):
    slot = g_slot(t); tg = ('gu', t)
    g = []
    g.append([f's_add_u32 m0, s{gM0A}, {slot}', 's_nop 0', (f'buffer_load_dwordx4 v{gDA}, {srd(gA)}, 0 offen sc1 lds', tg)])
    g.append([(f'buffer_load_dwordx4 v{gDA}, {srd(gA)}, 0 offen offset:1024 sc1 lds', tg)])
    g.append([(f'buffer_load_dwordx4 v{gDA}, {srd(gA)}, s{gSoffA} offen offset:2048 sc1 lds', tg)])
    g.append([(f'buffer_load_dwordx4 v{gDA}, {srd(gA)}, s{gSoffA} offen offset:3072 sc1 lds', tg), f'v_add_u32 v{gDA}, 2048, v{gDA}'])
    g.append([f's_add_u32 m0, s{gM0G}, {slot}', 's_nop 0', (f'buffer_load_dwordx4 v{gDW}, {srd(gG)}, 0 offen lds', tg)])
    g.append([(f'buffer_load_dwordx4 v{gDW}, {srd(gG)}, s{gSoffW} offen offset:1024 lds', tg)])
    g.append([f's_add_u32 m0, s{gM0U}, {slot}', 's_nop 0', (f'buffer_load_dwordx4 v{gDW}, {srd(gU)}, 0 offen lds', tg)])
    g.append([(f'buffer_load_dwordx4 v{gDW}, {srd(gU)}, s{gSoffW} offen offset:1024 lds', tg), f'v_add_u32 v{gDW}, {32*G_PITCH}, v{gDW}'])
    g.append([f's_add_u32 m0, s{gM0M}, {slot}', 's_nop 0', (f'buffer_load_dwordx4 v{gDM}, {srd(gM)}, 0 offen lds', tg), f'v_add_u32 v{gDM}, {32*G_PITCH}, v{gDM}'])
    return g
Q_SS = 24576; Q_ACTB = 16384; KB = 98304
qDA, qDW = 11, 12
def q_dma(t):
    slot = (t % 4) * Q_SS; tg = ('q', t)
    g = []
    g.append([f's_add_u32 m0, s{qM0A}, {slot}', 's_nop 0', (f'buffer_load_dwordx4 v{qDA}, {srd(gA)}, 0 offen sc1 lds', tg)])
    g.append([(f'buffer_load_dwordx4 v{qDA}, {srd(gA)}, 0 offen offset:1024 sc1 lds', tg)])
    g.append([(f'buffer_load_dwordx4 v{qDA}, {srd(gA)}, s{qSoffA} offen offset:2048 sc1 lds', tg)])
    g.append([(f'buffer_load_dwordx4 v{qDA}, {srd(gA)}, s{qSoffA} offen offset:3072 sc1 lds', tg), f'v_add_u32 v{qDA}, 2048, v{qDA}'])
    g.append([f's_add_u32 m0, s{qM0W}, {slot}', 's_nop 0', (f'buffer_load_dwordx4 v{qDW}, {srd(qW)}, 0 offen lds', tg)])
    g.append([(f'buffer_load_dwordx4 v{qDW}, {srd(qW)}, s{qSoffW} offen offset:1024 lds', tg), f'v_add_u32 v{qDW}, {32*8192}, v{qDW}'])
    return g

def phase_start_kv(e, st):
    e('s_cmp_ge_u32 s2, 256\ns_cbranch_scc1 L_done')
    for key, p in (('ws', pWs), ('x', pX), ('ckv', pCkv), ('wuk', pWkv), ('wuv', pTmp), ('wg', pWg), ('wu', pWu), ('wq', pWq), ('wo', pWo),
                   ('wd', pWd), ('out', pOut), ('dbg', pDbg)):
        load_ptr(e, p, key)
    e(f'v_and_b32 v{vLane}, 63, v0\nv_lshrrev_b32 v3, 6, v0\nv_lshlrev_b32 v{vL16}, 4, v{vLane}')
    e(f's_and_b32 s{sXcd}, s2, 7\ns_lshr_b32 s{sIdx}, s2, 3')
    e(f'v_readfirstlane_b32 s{sWave}, v3')
    WB = 98304
    vAx = [3, 4, 5, 6]; vAc, vW0, vW1, vDAe, vDAo, vDW = 7, 8, 9, 10, 11, 12
    e(f's_and_b32 s4, s{sIdx}, 3\ns_lshl_b32 s5, s{sXcd}, 2\ns_add_u32 s{sCt}, s5, s4\ns_lshr_b32 s{sTt}, s{sIdx}, 2')
    e(f'v_lshrrev_b32 v{vT}, 3, v{vLane}\nv_lshlrev_b32 v{vDAe}, 10, v{vT}\nv_lshrrev_b32 v{vT}, 4, v{vLane}\nv_and_b32 v{vT+1}, 7, v{vLane}')
    e(f'v_xor_b32 v{vT}, v{vT}, v{vT+1}\nv_lshl_add_u32 v{vDAe}, v{vT}, 4, v{vDAe}')
    e(f's_lshl_b32 s4, s{sTt}, 18\ns_lshl_b32 s5, s{sWave}, 16\ns_add_u32 s4, s4, s5\nv_add_u32 v{vDAe}, s4, v{vDAe}')
    e(f'v_xor_b32 v{vDAo}, 64, v{vDAe}')
    for j_ in range(1, 8): e(f's_mov_b32 s{kSoA+j_}, {8192*j_ - 1024*(j_ & 3)}')
    for j_ in range(1, 4): e(f's_mov_b32 s{kSoW+j_}, {j_*(4*8192-1024)}')
    e('s_movk_i32 s33, 8192')
    lane_w_dma(e, vDW, vT, 33)
    e(f's_and_b32 s4, s{sCt}, 15\ns_lshl_b32 s4, s4, 9\ns_and_b32 s5, s{sWave}, 1\ns_lshl_b32 s5, s5, 8\ns_add_u32 s4, s4, s5')
    e(f's_lshr_b32 s5, s{sWave}, 1\ns_lshl_b32 s5, s5, 17\ns_add_u32 s4, s4, s5\nv_add_u32 v{vDW}, s4, v{vDW}')
    e(f's_lshl_b32 s{kM0A}, s{sWave}, 13')
    e(f's_and_b32 s4, s{sWave}, 1\ns_lshl_b32 s4, s4, 13\ns_lshr_b32 s5, s{sWave}, 1\ns_lshl_b32 s5, s5, 12')
    e(f's_add_u32 s{kM0W}, s4, s5\ns_add_u32 s{kM0W}, s{kM0W}, {WB}')
    e('s_waitcnt lgkmcnt(0)')
    st.real(62); st('start')
    sW, sA, sO = S0, S1, S2
    e(f's_cmp_lt_u32 s{sCt}, 16\ns_cselect_b32 s{pWkv}, s{pWkv}, s{pTmp}\ns_cselect_b32 s{pWkv+1}, s{pWkv+1}, s{pTmp+1}')
    srd_from(e, sW, pWkv, SZ['wuk']); srd_from(e, sA, pCkv, SZ['ckv'])
    def dmaA(p, h):
        tg = ('ka', p); g = []
        for jj in range(4):
            j_ = 4*h + jj
            ins = (f'buffer_load_dwordx4 v{vDAo if j_ & 1 else vDAe}, {srd(sA)}, {"s%d" % (kSoA + j_) if j_ else "0"} offen' + (f' offset:{1024*jj}' if jj else '') + ' lds', tg)
            g.append(([f's_add_u32 m0, s{kM0A}, {(p % 3)*32768 + 4096*h}', 's_nop 0'] if jj == 0 else []) + [ins])
        if h == 1: g[-1] += [f'v_add_u32 v{vDAe}, 128, v{vDAe}', f'v_add_u32 v{vDAo}, 128, v{vDAo}']
        return g
    def dmaW(t):
        tg = ('kw', t)
        g = [[f's_add_u32 m0, s{kM0W}, {(t % 4)*16384}', 's_nop 0', (f'buffer_load_dwordx4 v{vDW}, {srd(sW)}, 0 offen lds', tg)]]
        for j_ in range(1, 4):
            g.append([(f'buffer_load_dwordx4 v{vDW}, {srd(sW)}, s{kSoW+j_} offen offset:{1024*j_} lds', tg)])
        g[-1] += [f'v_add_u32 v{vDW}, {32*8192}, v{vDW}']
        return g
    sX, sXN = S3, S4
    srd_from(e, sX, pX, SZ['x'])
    e(f's_lshl_b32 s32, s2, 3\ns_lshl_b32 s33, s{sWave}, 1\ns_add_u32 s32, s32, s33')
    e(f'v_lshrrev_b32 v72, 5, v{vLane}\nv_add_u32 v72, s32, v72')
    e(f'v_and_b32 v73, 31, v{vLane}')
    e('s_movk_i32 s33, 1152\nv_mul_lo_u32 v74, v72, s33\nv_lshl_add_u32 v74, v73, 4, v74')
    D = 32
    e.vmem(f'buffer_load_dwordx4 v[{D}:{D+3}], v74, {srd(sX)}, 0 offen', 'ln')
    e.vmem(f'buffer_load_dwordx4 v[{D+4}:{D+7}], v74, {srd(sX)}, 0 offen offset:512', 'ln')
    e('s_mov_b32 exec_lo, 0xff\ns_mov_b32 exec_hi, 0xff')
    e.vmem(f'buffer_load_dwordx4 v[{D+8}:{D+11}], v74, {srd(sX)}, 0 offen offset:1024', 'ln')
    e('s_mov_b64 exec, -1')
    emit_groups(e, dmaW(0) + dmaA(0, 0) + dmaA(0, 1) + dmaW(1))
    if not ARG('nopf'):
        e('s_getpc_b64 s[4:5]')
        e('L_pcbase:')
        e(f's_lshl_b32 s6, s{sIdx}, 2\ns_add_u32 s6, s6, s{sWave}\ns_and_b32 s6, s6, 15\ns_lshl_b32 s6, s6, 13')
        e(f'v_lshlrev_b32 v{PFV}, 7, v{vLane}\nv_add_u32 v{PFV}, s6, v{PFV}')
        e(f'v_cmp_gt_u32 vcc, L_codeend - L_pcbase, v{PFV}\ns_nop 0\ns_and_saveexec_b64 s[6:7], vcc\ns_cbranch_execz L_nopf')
        e.vmem(f'global_load_dword v{PFV+1}, v{PFV}, s[4:5]', None, optional=True)
        e('L_nopf:')
        e('s_mov_b64 exec, -1')
    e(f's_add_u32 s4, s{pWs}, {WS_FLAG + FL_E:#x}\ns_addc_u32 s5, s{pWs+1}, 0')
    e(f's_load_dword s{sTag}, s[4:5], 0')
    srd_from(e, SF, pWs, 0x10000, WS_FLAG)
    srd_from(e, sXN, pWs, SZ_XN, WS_XN)
    late = dmaA(1, 0) + dmaA(1, 1) + dmaW(2) + dmaW(3) + dmaA(2, 0)
    e('v_lshrrev_b32 v75, 5, v72\nv_mul_u32_u24 v75, 36, v75\nv_lshrrev_b32 v76, 1, v73\nv_add_u32 v75, v75, v76\nv_lshlrev_b32 v75, 10, v75')
    e('v_and_b32 v76, 1, v73\nv_lshlrev_b32 v76, 9, v76\nv_add_u32 v75, v75, v76\nv_and_b32 v76, 31, v72\nv_lshl_add_u32 v80, v76, 4, v75')
    e(f's_mov_b32 s5, {WS_VF:#x}\ns_cmp_lt_u32 s{sCt}, 16\ns_cselect_b32 s4, {WS_KF:#x}, s5')
    e(f's_add_u32 s{sO}, s{pWs}, s4\ns_addc_u32 s{sO+1}, s{pWs+1}, 0\ns_mov_b32 s{sO+2}, {SZ_KF:#x}\ns_mov_b32 s{sO+3}, 0x20000')
    e(f'v_and_b32 v{vT}, 31, v{vLane}\nv_lshlrev_b32 v{vAx[0]}, 7, v{vT}\nv_bfe_u32 v{vT}, v{vLane}, 1, 3\nv_lshrrev_b32 v{vT+1}, 5, v{vLane}')
    e(f'v_xor_b32 v{vT}, v{vT}, v{vT+1}\nv_lshl_add_u32 v{vAx[0]}, v{vT}, 4, v{vAx[0]}')
    e(f's_and_b32 s4, s{sWave}, 1\ns_lshl_b32 s4, s4, 14\nv_add_u32 v{vAx[0]}, s4, v{vAx[0]}')
    for q in range(1, 4): e(f'v_xor_b32 v{vAx[q]}, {32*q}, v{vAx[0]}')
    lane_w_base(e, vW0, vW1, vT, 2, 1024)
    e(f's_lshr_b32 s4, s{sWave}, 1\ns_lshl_b32 s4, s4, 13\ns_add_u32 s4, s4, {WB}')
    e(f'v_add_u32 v{vW0}, s4, v{vW0}\nv_add_u32 v{vW1}, s4, v{vW1}')
    st('kv_dma')
    e.wait_vm('ln')
    F = 48
    e('s_mov_b32 s36, 0xffff0000')
    def unpack(i):
        for k in range(4):
            e(f'v_lshlrev_b32 v{F+8*i+2*k}, 16, v{D+4*i+k}\nv_and_b32 v{F+8*i+2*k+1}, s36, v{D+4*i+k}')
    unpack(0); unpack(1)
    for k in range(8): e(f'v_mov_b32 v{F+16+k}, 0')
    e('s_mov_b32 exec_lo, 0xff\ns_mov_b32 exec_hi, 0xff'); unpack(2); e('s_mov_b64 exec, -1')
    def allred(r, t):
        for dpp in ('quad_perm:[1,0,3,2]', 'quad_perm:[2,3,0,1]', 'row_half_mirror', 'row_mirror'):
            e(f's_nop 1\nv_add_f32_dpp v{r}, v{r}, v{r} {dpp} row_mask:0xf bank_mask:0xf')
        e(f'v_mov_b32 v{t}, v{r}\ns_nop 1\nv_permlane16_swap_b32 v{r}, v{t}\ns_nop 1\nv_add_f32 v{r}, v{r}, v{t}')
    mu, va, t0, t1, t2, t3, t4 = 84, 85, 86, 87, 88, 89, 90
    e(f'v_add_f32 v{mu}, v{F}, v{F+1}')
    for k in range(2, 24): e(f'v_add_f32 v{mu}, v{mu}, v{F+k}')
    allred(mu, t0)
    e(f's_mov_b32 s37, 0x3ae38e39\nv_mul_f32 v{mu}, s37, v{mu}')
    e(f'v_mov_b32 v{va}, 0')
    for k in range(16): e(f'v_sub_f32 v{t1}, v{F+k}, v{mu}\nv_fmac_f32 v{va}, v{t1}, v{t1}')
    e('s_mov_b32 exec_lo, 0xff\ns_mov_b32 exec_hi, 0xff')
    for k in range(16, 24): e(f'v_sub_f32 v{t1}, v{F+k}, v{mu}\nv_fmac_f32 v{va}, v{t1}, v{t1}')
    e('s_mov_b64 exec, -1')
    allred(va, t0)
    e(f'v_mul_f32 v{va}, s37, v{va}')
    e(f'v_cvt_pk_bf16_f32 v{t1}, v{mu}, v{va}\nv_lshlrev_b32 v{mu}, 16, v{t1}\nv_and_b32 v{va}, s36, v{t1}')
    e(f'v_mov_b32 v{t2}, 0x3727c5ac\nv_add_f32 v{va}, v{t2}, v{va}')
    e(f'v_cvt_pk_bf16_f32 v{t1}, v{va}, v{va}\nv_lshlrev_b32 v{va}, 16, v{t1}\nv_sqrt_f32 v{va}, v{va}\ns_nop 0')
    e(f'v_cvt_pk_bf16_f32 v{t1}, v{va}, v{va}\nv_lshlrev_b32 v{va}, 16, v{t1}\nv_rcp_f32 v{t2}, v{va}\ns_nop 0')
    for i in range(3):
        if i == 2: e('s_mov_b32 exec_lo, 0xff\ns_mov_b32 exec_hi, 0xff')
        for k in range(4):
            r0, r1 = F+8*i+2*k, F+8*i+2*k+1
            e(f'v_sub_f32 v{r0}, v{r0}, v{mu}\nv_sub_f32 v{r1}, v{r1}, v{mu}')
            e(f'v_cvt_pk_bf16_f32 v{t3}, v{r0}, v{r1}')
            e(f'v_lshlrev_b32 v{r0}, 16, v{t3}\nv_and_b32 v{r1}, s36, v{t3}')
            for r in (r0, r1):
                e(f'v_mul_f32 v{t4}, v{r}, v{t2}\nv_fma_f32 v{t1}, -v{t4}, v{va}, v{r}\nv_fma_f32 v{r}, v{t1}, v{t2}, v{t4}')
            e(f'v_cvt_pk_bf16_f32 v{D+4*i+k}, v{r0}, v{r1}')
        e(f's_mov_b32 s37, {i*16*1024}')
        e.vmem(f'buffer_store_dwordx4 v[{D+4*i}:{D+4*i+3}], v80, {srd(sXN)}, s37 offen {ST}', 'xn')
    e('s_mov_b64 exec, -1')
    e('s_waitcnt lgkmcnt(0)')
    e(f's_mul_i32 s{sTag}, s{sTag}, 0x9E3779B1\ns_add_u32 s{sTag}, s{sTag}, 0x7F4A7C15')
    e(f's_mov_b32 s{sSlow}, 0')
    vAt = 22
    srd_from(e, S3, pDbg, 256)
    e(f's_cmp_lg_u32 s{sWave}, 0\ns_cbranch_scc1 L_noat')
    e(f'v_mov_b32 v{vAt}, 1\nv_mov_b32 v{vT}, 0\ns_mov_b64 exec, 1')
    e.vmem(f'buffer_atomic_add v{vAt}, v{vT}, {srd(S3)}, 0 offen sc0 sc1', None, optional=True)
    e('s_mov_b64 exec, -1')
    e.label('L_noat')
    e(f's_and_b32 s4, s{sIdx}, 3\ns_lshl_b32 s5, s{sXcd}, 2\ns_add_u32 s{sCj}, s5, s4')
    e(f's_mul_i32 s4, s{sCj}, 144\ns_and_b32 s5, s{sCj}, 1\ns_lshl_b32 s6, s5, 4\ns_add_u32 s{sFb}, s4, s6')
    e(f's_xor_b32 s5, s5, 1\ns_lshl_b32 s5, s5, 7\ns_add_u32 s{sMb}, s4, s5')
    e('s_nop 4')
    srd_from(e, gG, pWg, SZ['wg']); srd_from(e, gU, pWu, SZ['wu']); srd_from(e, gA, pWs, SZ_XN, WS_XN)
    e(f's_bitcmp1_b32 s{sWave}, 0\ns_cselect_b32 s4, s{pWu}, s{pWg}\ns_cselect_b32 s5, s{pWu+1}, s{pWg+1}')
    srd_from(e, gM, 4, SZ['wg'])
    e(f's_lshl_b32 s4, s{sTt}, 3\ns_lshl_b32 s5, s{sWave}, 1\ns_add_u32 s4, s4, s5\ns_mul_i32 s4, s4, {36*1024}\nv_add_u32 v{gDA}, s4, v{vL16}')
    e(f's_mov_b32 s{gSoffA}, {36*1024 - 2048}\ns_movk_i32 s6, {G_PITCH}')
    lane_w_dma(e, gDW, vT, 6)
    e(f's_lshl_b32 s4, s{sFb}, 1\ns_mul_i32 s5, s{sWave}, {8*G_PITCH}\ns_add_u32 s4, s4, s5\nv_add_u32 v{gDW}, s4, v{gDW}')
    e(f's_mov_b32 s{gSoffW}, {4*G_PITCH - 1024}')
    e(f'v_lshrrev_b32 v{vT}, 1, v{vLane}\nv_mul_lo_u32 v{gDM}, v{vT}, s6\nv_and_b32 v{vT}, 1, v{vLane}\nv_lshl_add_u32 v{gDM}, v{vT}, 4, v{gDM}')
    e(f's_lshl_b32 s4, s{sMb}, 1\nv_add_u32 v{gDM}, s4, v{gDM}')
    e(f's_lshl_b32 s{gM0A}, s{sWave}, 12')
    gM0U_early = 40 + 0
    e(f's_lshl_b32 s4, s{sWave}, 11\ns_add_u32 s{gM0G}, s4, {GOFF}\ns_add_u32 s{gM0U}, s4, {UOFF}')
    e(f's_and_b32 s4, s{sWave}, 1\ns_mul_i32 s4, s4, {MUO}\ns_add_u32 s{gM0M}, s4, {MOFF}')
    st('ln')
    XA = [R('a', 32 + 4*i, 4) for i in range(4)]; XW = [R('a', 48 + 4*i, 4) for i in range(4)]
    YA = [R('a', 64 + 4*i, 4) for i in range(4)]; YW = [R('a', 80 + 4*i, 4) for i in range(4)]
    acc = [[None]*4 for _ in range(4)]
    for j in range(4):
        for i in range(4):
            n = 4*j + i
            acc[i][j] = R('v', 32 + 16*n, 16) if n < 14 else R('a', 16*(n - 14), 16)
    def reads(t, ks, FA, FW):
        so = (t % 4) * 16384
        r = []
        def wrd(j):
            base = vW0 if (j & 1) == 0 else vW1
            for i2 in range(2):
                r.append(f'ds_read_b64_tr_b16 {FW[j][2*i2:2*i2+2]}, v{base} offset:{so + (4*ks + i2)*1024 + (j >> 1)*512}')
        r.append(f'v_add_u32 v{vAc}, {((t // 2) % 3)*32768}, v{vAx[2*(t & 1) + ks]}')
        wrd(0)
        for i in range(4): r.append(f'ds_read_b128 {FA[i]}, v{vAc} offset:{i*4096}')
        wrd(1); wrd(2); wrd(3)
        return r
    def mfs(FA, FW, isK, first):
        return [((acc[i][j], FW[j], FA[i], '0' if first else None) if isK else (acc[i][j], FA[i], FW[j], '0' if first else None))
                for j in range(4) for i in range(4)]
    NST = 16
    e.wait_vm(('ka', 0), barrier=True)
    assert e.vm_count(('kw', 0)) is None
    st('kv_first')
    saved = (list(e.vm), list(e.lg))
    def place(fills, rd):
        put(fills, 0, rd[:3])
        for k, x in enumerate(rd[3:]): put(fills, 1 + k // 2, [x])
    g0 = gu_dma(0); g1 = gu_dma(1)
    def loop(isK):
        for x in reads(0, 0, XA, XW): e.op(x)
        for t in range(NST):
            fills = {}
            place(fills, reads(t, 1, YA, YW))
            if t == 0: spread(fills, late[:12], 1, 15)
            run_sub(e, mfs(XA, XW, isK, t == 0), fills)
            fills = {}
            if t + 1 < NST:
                need = [('kw', t + 1)] + ([('ka', (t + 1) // 2)] if (t + 1) % 2 == 0 else [])
                cnts = [(e.vm_count(x), x) for x in need if e.vm_count(x) is not None]
                e.wait_vm(min(cnts)[1] if cnts else ('kw', t + 1), also_lgkm0=True, barrier=True)
                place(fills, reads(t + 1, 0, XA, XW))
            else:
                e.lgkm0(); e('s_barrier')
            if t == 12: flag_check(e, 16, vL16, 0, 64, ndw=4)
            dm = []
            q, h = ((t + 5) // 2, 0) if t % 2 == 1 else ((t + 4) // 2, 1)
            if t == 0: dm += late[12:]
            if q < 8: dm += dmaA(q, h)
            if t + 4 < NST: dm += dmaW(t + 4)
            if t == 12: dm += g0[:4]
            if t == 13: dm += g0[4:]
            if t == 14: dm += g1
            if t == 15: dm += gu_dma(2)
            spread(fills, dm, (6 if t < 12 else 5) if t > 0 else 1, 15)
            if not ARG('nopf2') and 1 <= t < 12:
                k = t - 1
                if k < 10 and not ARG('nopfg'): put(fills, 14, pf_ops(pWg if k % 2 == 0 else pWu, 'wg', k // 2, 5))
                if t in (3, 7, 11) and not ARG('wqgu') and not ARG('nopfq'): put(fills, 15, pf_ops(pWq, 'wq', (t - 3) // 4, 3))
            if t == 3:
                assert 'xn' not in e.vm
                hook = f'L_ln{int(isK)}'
                put(fills, 2, [f's_cmp_lg_u32 s{sWave}, 0', f's_cbranch_scc1 {hook}',
                               f'v_mov_b32 v14, s{sTag}', f'v_mov_b32 v15, 0', f's_lshl_b32 s4, s2, 2', f'v_readfirstlane_b32 s5, v{vAt}', 's_mov_b64 exec, 1',
                               (f'buffer_store_dword v14, v15, {srd(SF)}, s4 offen sc1', 'OPT'),
                               f's_cmp_lg_u32 s5, 255', f's_cbranch_scc1 {hook}x', f's_mov_b32 s4, {FL_E}',
                               (f'buffer_store_dword v14, v15, {srd(SF)}, s4 offen sc1', 'OPT'), f'{hook}x:', 's_mov_b64 exec, -1', f'{hook}:'])
            if t == 9:
                put(fills, 0, [(f'buffer_load_dwordx4 v[16:19], v{vL16}, {srd(SF)}, 0 offen sc1', 'poll')])
            run_sub(e, mfs(YA, YW, isK, False), fills)
        e('s_nop 7')
        return
    e(f's_cmp_lt_u32 s{sCt}, 16\ns_cbranch_scc0 L_kvV')
    loop(True)
    e('s_branch L_kvE')
    e.label('L_kvV')
    e.vm, e.lg = list(saved[0]), list(saved[1])
    loop(False)
    e.label('L_kvE')
    st('kv_loop')
    return dict(acc=acc)
```

```python
from asmlib import *

class Em(Asm):
    def __init__(self):
        super().__init__()
        self.lg = []
        self.vm = []
        self.slot = 0
        self.age = 3
    def ds(self, text):
        ins = Ins(text)
        self(text)
        self.lg.append((ins.vregs(ins.wr), self.slot))
    def need(self, regs):
        idx = -1
        for i, (r, t) in enumerate(self.lg):
            if r & regs: idx = i
        if idx < 0: return
        j = idx
        while j + 1 < len(self.lg) and self.slot - self.lg[j + 1][1] >= self.age: j += 1
        n = len(self.lg) - 1 - j
        if n > 15:
            n = 15; j = len(self.lg) - 1 - n
        self(f's_waitcnt lgkmcnt({n})')
        self.lg = self.lg[j + 1:]
    def lgkm0(self):
        self('s_waitcnt lgkmcnt(0)')
        self.lg = []
    def mf(self, D, A, B, C=None):
        regs = A.regs() | B.regs()
        self.need(regs)
        self(f'v_mfma_f32_32x32x16_bf16 {D}, {A}, {B}, {C if C is not None else D}')
        self.slot += 1
    def mf16(self, D, A, B, C=None):
        regs = A.regs() | B.regs()
        self.need(regs)
        self(f'v_mfma_f32_16x16x32_bf16 {D}, {A}, {B}, {C if C is not None else D}')
        self.slot += 0.5
    def vmem(self, text, tag=None, optional=False):
        self(text)
        if not optional: self.vm.append(tag)
    def vm_count(self, tag):
        idx = -1
        for i, t in enumerate(self.vm):
            if t == tag: idx = i
        if idx < 0: return None
        return len(self.vm) - 1 - idx
    def wait_vm(self, tag, also_lgkm0=False, barrier=False):
        n = self.vm_count(tag)
        parts = []
        if n is not None:
            assert n <= 63, n
            parts.append(f'vmcnt({n})')
            self.vm = self.vm[len(self.vm) - n:] if n > 0 else []
        if also_lgkm0:
            parts.append('lgkmcnt(0)'); self.lg = []
        if parts: self('s_waitcnt ' + ' '.join(parts))
        if barrier: self('s_barrier')
    def vm0(self):
        self('s_waitcnt vmcnt(0)')
        self.vm = []
    def op(self, text, tag=None):
        t = text.strip()
        if t.startswith('ds_read'): self.ds(t)
        elif t.startswith('buffer_') or t.startswith('global_'): self.vmem(t, tag, optional=(tag == 'OPT'))
        else: self(t)
```

```python
from gen_common import *
import gen_common
from emit import *
import struct
def f2u(x): return struct.unpack('<I', struct.pack('<f', x))[0]

WS_FLAG = 0x9000000
FL_LN, FL_KV, FL_GU, FL_CTX, FL_EX, FL_E = 0x0, 0x400, 0x800, 0xC00, 0x1400, 0x8000
SPIN_MAX = 100000

sWave = 3
SF = 8
S0, S1, S2, S3, S4 = 12, 16, 20, 24, 28
pX, pCkv, pWq, pWkv, pWo, pWg, pWu, pWd, pOut, pDbg, pWs, pTmp = 64, 66, 68, 70, 72, 74, 76, 78, 80, 82, 84, 86
sTag, sXcd, sIdx, sSlow = 88, 89, 90, 91
sStamp = 92
MK = [94, 96, 98, 100]
vLane, vL16 = 1, 2
vStamp = 255

class St:
    def __init__(self, e): self.e, self.n, self.names = e, 0, []
    def __call__(self, name):
        if not gen_common.STAMP: return
        e = self.e
        e(f's_memtime s[{sStamp}:{sStamp+1}]\ns_waitcnt lgkmcnt(0)\nv_writelane_b32 v{vStamp}, s{sStamp}, {self.n}')
        e(f's_memrealtime s[{sStamp}:{sStamp+1}]\ns_waitcnt lgkmcnt(0)\nv_writelane_b32 v{vStamp}, s{sStamp}, {self.n + 32}')
        e.lg = []
        self.names.append(name); self.n += 1
    def real(self, lane):
        if not gen_common.STAMP: return
        e = self.e
        e(f's_memrealtime s[{sStamp}:{sStamp+1}]\ns_waitcnt lgkmcnt(0)\nv_writelane_b32 v{vStamp}, s{sStamp}, {lane}')
        e.lg = []
    def flush(self):
        if not gen_common.STAMP: return
        e = self.e
        self.real(63)
        e(f's_add_u32 s4, s{pWs}, {gen_common.WS_STAMP:#x}\ns_addc_u32 s5, s{pWs+1}, 0\ns_mov_b32 s6, 0x100000\ns_mov_b32 s7, 0x20000')
        e(f's_lshl_b32 s32, s2, 2\ns_add_u32 s32, s32, s{sWave}\ns_lshl_b32 s32, s32, 8')
        e(f'v_lshlrev_b32 v3, 2, v{vLane}\nv_add_u32 v3, s32, v3')
        e(f'buffer_store_dword v{vStamp}, v3, s[4:7], 0 offen')

def srd_from(e, srd, ptr, size, off=0):
    make_srd(e, srd, ptr, size, off)

def flag_poll_issue(e, vdst, voff, soff_const_or_sreg):
    so = soff_const_or_sreg
    if isinstance(so, int):
        e(f's_mov_b32 s4, {so}'); so = 's4'
    e.vmem(f'buffer_load_dword v{vdst}, v{voff}, {srd(SF)}, {so} offen sc1', 'poll')

_uid = [0]
def flag_check(e, vdst, voff, soff, nlanes, ndw=1, lanemask=None):
    _uid[0] += 1
    lab = f'LFL{_uid[0]}'
    so = soff
    e.wait_vm('poll')
    if lanemask is not None:
        e(f's_mov_b32 s6, {hex(lanemask)}\ns_mov_b32 s7, 0')
    elif nlanes < 64:
        e(f's_mov_b32 s6, {hex((1 << min(nlanes, 32)) - 1)}\ns_mov_b32 s7, {hex((1 << max(nlanes - 32, 0)) - 1)}')
    else:
        e('s_mov_b32 s6, -1\ns_mov_b32 s7, -1')
    e(f's_mov_b32 s5, {SPIN_MAX}')
    e.label(lab)
    if ndw == 1:
        e(f'v_cmp_ne_u32 vcc, s{sTag}, v{vdst}')
    else:
        e(f'v_xor_b32 v{vdst}, s{sTag}, v{vdst}')
        for k in range(1, ndw):
            e(f'v_xor_b32 v{vdst+k}, s{sTag}, v{vdst+k}\nv_or_b32 v{vdst}, v{vdst}, v{vdst+k}')
        e(f'v_cmp_ne_u32 vcc, 0, v{vdst}')
    e('s_nop 1')
    e('s_and_b64 vcc, vcc, s[6:7]')
    e(f's_cbranch_vccz {lab}_ok')
    e(f's_sub_u32 s5, s5, 1\ns_cmp_eq_u32 s5, 0\ns_cbranch_scc1 {lab}_ok')
    e('s_sleep 1')
    if isinstance(so, int):
        e(f's_mov_b32 s4, {so}'); so = 's4'
    suf = {1: 'dword', 4: 'dwordx4'}[ndw]
    dst = f'v{vdst}' if ndw == 1 else f'v[{vdst}:{vdst+ndw-1}]'
    e(f'buffer_load_{suf} {dst}, v{voff}, {srd(SF)}, {so} offen sc1')
    e('s_waitcnt vmcnt(0)')
    e(f's_branch {lab}')
    e.label(lab + '_ok')

def flag_publish(e, soff_sreg, vtmp):
    _uid[0] += 1
    lab = f'LPB{_uid[0]}'
    e(f's_cmp_lg_u32 s{sWave}, 0\ns_cbranch_scc1 {lab}')
    e(f'v_mov_b32 v{vtmp}, s{sTag}\nv_mov_b32 v{vtmp+1}, 0')
    e(f's_mov_b64 exec, 1')
    e.vmem(f'buffer_store_dword v{vtmp}, v{vtmp+1}, {srd(SF)}, s{soff_sreg} offen sc1', None, optional=True)
    e(f's_mov_b64 exec, -1')
    e.label(lab)

def lane_w_base(a, dst0, dst1, tmp, HQ, kqstride):
    t0, t1, lane = tmp, tmp + 1, vLane
    a(f'v_lshrrev_b32 v{t0}, 5, v{lane}')
    a(f'v_mul_u32_u24 v{dst0}, {HQ*kqstride}, v{t0}')
    a(f'v_bfe_u32 v{t0}, v{lane}, 2, 2')
    a(f'v_lshl_add_u32 v{dst0}, v{t0}, 7, v{dst0}')
    a(f'v_bfe_u32 v{t1}, v{lane}, 4, 1')
    a(f'v_lshl_add_u32 v{dst0}, v{t1}, 5, v{dst0}')
    a(f'v_and_b32 v{t1}, 3, v{lane}')
    a(f'v_lshl_add_u32 v{dst0}, v{t1}, 3, v{dst0}')
    a(f'v_lshrrev_b32 v{t0}, 1, v{t0}')
    a(f'v_lshlrev_b32 v{t0}, 6, v{t0}')
    a(f'v_xor_b32 v{t1}, 64, v{t0}')
    a(f'v_add_u32 v{dst1}, v{dst0}, v{t1}')
    a(f'v_add_u32 v{dst0}, v{dst0}, v{t0}')

def lane_w_dma(a, dst, tmp, pitch_sreg):
    t0, t1, lane = tmp, tmp + 1, vLane
    a(f'v_bfe_u32 v{t0}, v{lane}, 3, 2')
    a(f'v_mul_lo_u32 v{dst}, v{t0}, s{pitch_sreg}')
    a(f'v_lshrrev_b32 v{t0}, 1, v{t0}')
    a(f'v_bfe_u32 v{t1}, v{lane}, 2, 1')
    a(f'v_xor_b32 v{t0}, v{t0}, v{t1}')
    a(f'v_lshl_add_u32 v{dst}, v{t0}, 6, v{dst}')
    a(f'v_lshrrev_b32 v{t0}, 5, v{lane}')
    a(f'v_lshl_add_u32 v{dst}, v{t0}, 7, v{dst}')
    a(f'v_and_b32 v{t0}, 3, v{lane}')
    a(f'v_lshl_add_u32 v{dst}, v{t0}, 4, v{dst}')

class Spread:
    def __init__(self, groups): self.g = list(groups)
    def take(self, n=1):
        out = []
        for _ in range(n):
            if self.g: out.append(self.g.pop(0))
        return out
    def left(self): return len(self.g)
```

```python
import sys
import mega_common
from mega_common import *
mega_common.vStamp = 31
vStamp = 31

GK1 = -2.302208198
GK2 = GK1 * 0.044715
QSCALE = 1.4426950408889634 / (128 ** 0.5)
NEG_INF = 0xff800000
ST = 'sc1'
PFS = 33; PFV = 23
vT = 20
ARG = lambda k: k in sys.argv

def run_sub(e, mfs, fills):
    for k, m in enumerate(mfs):
        e.mf(*m)
        for f in fills.get(k, []):
            if isinstance(f, tuple): e.op(f[0], f[1])
            else: e.op(f)
def put(fills, gap, items): fills.setdefault(gap, []).extend(items)
def emit_groups(e, groups):
    for g in groups:
        for f in g:
            if isinstance(f, tuple): e.op(f[0], f[1])
            else: e.op(f)
def emit_list(e, l): emit_groups(e, [l])
def spread(fills, groups, g0, g1):
    n = len(groups)
    for k, g in enumerate(groups): put(fills, g0 + (k * (g1 - g0 + 1)) // max(n, 1), g)
def pf_ops(ptr, key, k, n):
    per = SZ[key] // 1024
    lines = (per + 127) // 128
    L = (lines + n - 1) // n
    lo = k * L; cnt = min(L, lines - lo)
    return [f's_mov_b32 s4, s{ptr}', f's_mov_b32 s5, s{ptr+1}', f's_mov_b32 s6, {SZ[key]:#x}', 's_mov_b32 s7, 0x20000',
            f's_lshl_b32 s{PFS}, s2, 2', f's_add_u32 s{PFS}, s{PFS}, s{sWave}', f's_mul_i32 s{PFS}, s{PFS}, {per}', f's_add_u32 s{PFS}, s{PFS}, {lo*128}',
            f'v_lshlrev_b32 v{PFV}, 7, v{vLane}', f's_mov_b32 exec_lo, {hex((1 << min(cnt, 32)) - 1)}', f's_mov_b32 exec_hi, {hex((1 << max(cnt - 32, 0)) - 1)}',
            (f'buffer_load_dword v{PFV+1}, v{PFV}, s[4:7], s{PFS} offen', 'pf'), 's_mov_b64 exec, -1']
def publish_ops(soff_instrs, lab, vt=14):
    return [f's_cmp_lg_u32 s{sWave}, 0', f's_cbranch_scc1 {lab}', f'v_mov_b32 v{vt}, s{sTag}', f'v_mov_b32 v{vt+1}, 0'] + soff_instrs + \
           ['s_mov_b64 exec, 1', (f'buffer_store_dword v{vt}, v{vt+1}, {srd(SF)}, s4 offen sc1', 'OPT'), 's_mov_b64 exec, -1', f'{lab}:']

sCt, sTt = 34, 35
kM0A, kM0W, kSoW, kSoA = 38, 39, 44, 48
gG, gU, gA, gM = S3, S4, 56, 60
sCj, sFb, sMb = 36, 37, 40
gSoffA, gSoffW, gM0A, gM0G, gM0U, gM0M = 41, 42, 43, 44, 48, 66
sKVo = [67, 70, 71, 82, 83, 86, 87, 94]
sACT = 96
qW, sKF, sVF = S0, S1, S2
qSoffA, qSoffW, qM0A, qM0W = 45, 46, 47, 49
sH, sP, sNS, sNL = 50, 51, 52, 53
sCnt, sKd, sVd, sKoff, sVoff, sKmax, sWoff, sM0K, sM0V, sJt = 54, 55, 38, 39, 41, 42, 43, 44, 48, 66
sT0, sT1, sT2, sK2 = 34, 95, 100, 101
MKP = [60, 62, 4, 6]
G_NST = 18; GOFF = 16384; UOFF = 24576; MOFF = 32768; MUO = 1152; G_SS = 35072; G_PITCH = 9216
gDA, gDW, gDM, vKVo = 25, 26, 27, 28
def g_slot(t): return ((t + 2) % 4) * G_SS
def gu_dma(t):
    slot = g_slot(t); tg = ('gu', t)
    g = []
    g.append([f's_add_u32 m0, s{gM0A}, {slot}', 's_nop 0', (f'buffer_load_dwordx4 v{gDA}, {srd(gA)}, 0 offen sc1 lds', tg)])
    g.append([(f'buffer_load_dwordx4 v{gDA}, {srd(gA)}, 0 offen offset:1024 sc1 lds', tg)])
    g.append([(f'buffer_load_dwordx4 v{gDA}, {srd(gA)}, s{gSoffA} offen offset:2048 sc1 lds', tg)])
    g.append([(f'buffer_load_dwordx4 v{gDA}, {srd(gA)}, s{gSoffA} offen offset:3072 sc1 lds', tg), f'v_add_u32 v{gDA}, 2048, v{gDA}'])
    g.append([f's_add_u32 m0, s{gM0G}, {slot}', 's_nop 0', (f'buffer_load_dwordx4 v{gDW}, {srd(gG)}, 0 offen lds', tg)])
    g.append([(f'buffer_load_dwordx4 v{gDW}, {srd(gG)}, s{gSoffW} offen offset:1024 lds', tg)])
    g.append([f's_add_u32 m0, s{gM0U}, {slot}', 's_nop 0', (f'buffer_load_dwordx4 v{gDW}, {srd(gU)}, 0 offen lds', tg)])
    g.append([(f'buffer_load_dwordx4 v{gDW}, {srd(gU)}, s{gSoffW} offen offset:1024 lds', tg), f'v_add_u32 v{gDW}, {32*G_PITCH}, v{gDW}'])
    g.append([f's_add_u32 m0, s{gM0M}, {slot}', 's_nop 0', (f'buffer_load_dwordx4 v{gDM}, {srd(gM)}, 0 offen lds', tg), f'v_add_u32 v{gDM}, {32*G_PITCH}, v{gDM}'])
    return g
Q_SS = 24576; Q_ACTB = 16384; KB = 98304
qDA, qDW = 11, 12
def q_dma(t):
    slot = (t % 4) * Q_SS; tg = ('q', t)
    g = []
    g.append([f's_add_u32 m0, s{qM0A}, {slot}', 's_nop 0', (f'buffer_load_dwordx4 v{qDA}, {srd(gA)}, 0 offen sc1 lds', tg)])
    g.append([(f'buffer_load_dwordx4 v{qDA}, {srd(gA)}, 0 offen offset:1024 sc1 lds', tg)])
    g.append([(f'buffer_load_dwordx4 v{qDA}, {srd(gA)}, s{qSoffA} offen offset:2048 sc1 lds', tg)])
    g.append([(f'buffer_load_dwordx4 v{qDA}, {srd(gA)}, s{qSoffA} offen offset:3072 sc1 lds', tg), f'v_add_u32 v{qDA}, 2048, v{qDA}'])
    g.append([f's_add_u32 m0, s{qM0W}, {slot}', 's_nop 0', (f'buffer_load_dwordx4 v{qDW}, {srd(qW)}, 0 offen lds', tg)])
    g.append([(f'buffer_load_dwordx4 v{qDW}, {srd(qW)}, s{qSoffW} offen offset:1024 lds', tg), f'v_add_u32 v{qDW}, {32*8192}, v{qDW}'])
    return g

def phase_start_kv(e, st):
    e('s_cmp_ge_u32 s2, 256\ns_cbranch_scc1 L_done')
    if gen_common.STAMP: e('s_memrealtime s[94:95]')
    if ARG('span'): e('s_memrealtime s[92:93]')
    for key, p in (('ws', pWs), ('x', pX), ('ckv', pCkv), ('wuk', pWkv), ('wuv', pTmp), ('wg', pWg), ('wu', pWu), ('wq', pWq), ('wo', pWo),
                   ('wd', pWd), ('out', pOut), ('dbg', pDbg)):
        load_ptr(e, p, key)
    e(f'v_and_b32 v{vLane}, 63, v0\nv_lshrrev_b32 v3, 6, v0\nv_lshlrev_b32 v{vL16}, 4, v{vLane}')
    e(f's_and_b32 s{sXcd}, s2, 7\ns_lshr_b32 s{sIdx}, s2, 3')
    e(f'v_readfirstlane_b32 s{sWave}, v3')
    WB = 98304
    vAx = [3, 4, 5, 6]; vAc, vW0, vW1, vDAe, vDAo, vDW = 7, 8, 9, 10, 11, 12
    e(f's_and_b32 s4, s{sIdx}, 3\ns_lshl_b32 s5, s{sXcd}, 2\ns_add_u32 s{sCt}, s5, s4\ns_lshr_b32 s{sTt}, s{sIdx}, 2')
    e(f'v_lshrrev_b32 v{vT}, 3, v{vLane}\nv_lshlrev_b32 v{vDAe}, 10, v{vT}\nv_lshrrev_b32 v{vT}, 4, v{vLane}\nv_and_b32 v{vT+1}, 7, v{vLane}')
    e(f'v_xor_b32 v{vT}, v{vT}, v{vT+1}\nv_lshl_add_u32 v{vDAe}, v{vT}, 4, v{vDAe}')
    e(f's_lshl_b32 s4, s{sTt}, 18\ns_lshl_b32 s5, s{sWave}, 16\ns_add_u32 s4, s4, s5\nv_add_u32 v{vDAe}, s4, v{vDAe}')
    e(f'v_xor_b32 v{vDAo}, 64, v{vDAe}')
    for j_ in range(1, 8): e(f's_mov_b32 s{kSoA+j_}, {8192*j_ - 1024*(j_ & 3)}')
    for j_ in range(1, 4): e(f's_mov_b32 s{kSoW+j_}, {j_*(4*8192-1024)}')
    e('s_movk_i32 s33, 8192')
    lane_w_dma(e, vDW, vT, 33)
    e(f's_and_b32 s4, s{sCt}, 15\ns_lshl_b32 s4, s4, 9\ns_and_b32 s5, s{sWave}, 1\ns_lshl_b32 s5, s5, 8\ns_add_u32 s4, s4, s5')
    e(f's_lshr_b32 s5, s{sWave}, 1\ns_lshl_b32 s5, s5, 17\ns_add_u32 s4, s4, s5\nv_add_u32 v{vDW}, s4, v{vDW}')
    e(f's_lshl_b32 s{kM0A}, s{sWave}, 13')
    e(f's_and_b32 s4, s{sWave}, 1\ns_lshl_b32 s4, s4, 13\ns_lshr_b32 s5, s{sWave}, 1\ns_lshl_b32 s5, s5, 12')
    e(f's_add_u32 s{kM0W}, s4, s5\ns_add_u32 s{kM0W}, s{kM0W}, {WB}')
    e('s_waitcnt lgkmcnt(0)')
    if gen_common.STAMP: e(f'v_writelane_b32 v{vStamp}, s94, 61')
    st.real(62); st('start')
    sW, sA, sO = S0, S1, S2
    e(f's_cmp_lt_u32 s{sCt}, 16\ns_cselect_b32 s{pWkv}, s{pWkv}, s{pTmp}\ns_cselect_b32 s{pWkv+1}, s{pWkv+1}, s{pTmp+1}')
    srd_from(e, sW, pWkv, SZ['wuk']); srd_from(e, sA, pCkv, SZ['ckv'])
    def dmaA(p, h):
        tg = ('ka', p); g = []
        for jj in range(4):
            j_ = 4*h + jj
            ins = (f'buffer_load_dwordx4 v{vDAo if j_ & 1 else vDAe}, {srd(sA)}, {"s%d" % (kSoA + j_) if j_ else "0"} offen' + (f' offset:{1024*jj}' if jj else '') + ' lds', tg)
            g.append(([f's_add_u32 m0, s{kM0A}, {(p % 3)*32768 + 4096*h}', 's_nop 0'] if jj == 0 else []) + [ins])
        if h == 1: g[-1] += [f'v_add_u32 v{vDAe}, 128, v{vDAe}', f'v_add_u32 v{vDAo}, 128, v{vDAo}']
        return g
    def dmaW(t):
        tg = ('kw', t)
        g = [[f's_add_u32 m0, s{kM0W}, {(t % 4)*16384}', 's_nop 0', (f'buffer_load_dwordx4 v{vDW}, {srd(sW)}, 0 offen lds', tg)]]
        for j_ in range(1, 4):
            g.append([(f'buffer_load_dwordx4 v{vDW}, {srd(sW)}, s{kSoW+j_} offen offset:{1024*j_} lds', tg)])
        g[-1] += [f'v_add_u32 v{vDW}, {32*8192}, v{vDW}']
        return g
    sX, sXN = S3, S4
    srd_from(e, sX, pX, SZ['x'])
    e(f's_lshl_b32 s32, s2, 3\ns_lshl_b32 s33, s{sWave}, 1\ns_add_u32 s32, s32, s33')
    e(f'v_lshrrev_b32 v72, 5, v{vLane}\nv_add_u32 v72, s32, v72')
    e(f'v_and_b32 v73, 31, v{vLane}')
    e('s_movk_i32 s33, 1152\nv_mul_lo_u32 v74, v72, s33\nv_lshl_add_u32 v74, v73, 4, v74')
    D = 32
    e.vmem(f'buffer_load_dwordx4 v[{D}:{D+3}], v74, {srd(sX)}, 0 offen', 'ln')
    e.vmem(f'buffer_load_dwordx4 v[{D+4}:{D+7}], v74, {srd(sX)}, 0 offen offset:512', 'ln')
    e('s_mov_b32 exec_lo, 0xff\ns_mov_b32 exec_hi, 0xff')
    e.vmem(f'buffer_load_dwordx4 v[{D+8}:{D+11}], v74, {srd(sX)}, 0 offen offset:1024', 'ln')
    e('s_mov_b64 exec, -1')
    emit_groups(e, dmaW(0) + dmaA(0, 0) + dmaA(0, 1) + dmaW(1))
    if not ARG('nopf'):
        e('s_getpc_b64 s[4:5]')
        e('L_pcbase:')
        e(f's_lshl_b32 s6, s{sIdx}, 2\ns_add_u32 s6, s6, s{sWave}\ns_and_b32 s6, s6, 15\ns_lshl_b32 s6, s6, 13')
        e(f'v_lshlrev_b32 v{PFV}, 7, v{vLane}\nv_add_u32 v{PFV}, s6, v{PFV}')
        e(f'v_cmp_gt_u32 vcc, L_codeend - L_pcbase, v{PFV}\ns_nop 0\ns_and_saveexec_b64 s[6:7], vcc\ns_cbranch_execz L_nopf')
        e.vmem(f'global_load_dword v{PFV+1}, v{PFV}, s[4:5]', None, optional=True)
        e('L_nopf:')
        e('s_mov_b64 exec, -1')
    e(f's_add_u32 s4, s{pWs}, {WS_FLAG + FL_E:#x}\ns_addc_u32 s5, s{pWs+1}, 0')
    e(f's_load_dword s{sTag}, s[4:5], 0')
    srd_from(e, SF, pWs, 0x10000, WS_FLAG)
    srd_from(e, sXN, pWs, SZ_XN, WS_XN)
    late = dmaA(1, 0) + dmaA(1, 1) + dmaW(2) + dmaW(3) + dmaA(2, 0)
    e('v_lshrrev_b32 v75, 5, v72\nv_mul_u32_u24 v75, 36, v75\nv_lshrrev_b32 v76, 1, v73\nv_add_u32 v75, v75, v76\nv_lshlrev_b32 v75, 10, v75')
    e('v_and_b32 v76, 1, v73\nv_lshlrev_b32 v76, 9, v76\nv_add_u32 v75, v75, v76\nv_and_b32 v76, 31, v72\nv_lshl_add_u32 v80, v76, 4, v75')
    e(f's_mov_b32 s5, {WS_VF:#x}\ns_cmp_lt_u32 s{sCt}, 16\ns_cselect_b32 s4, {WS_KF:#x}, s5')
    e(f's_add_u32 s{sO}, s{pWs}, s4\ns_addc_u32 s{sO+1}, s{pWs+1}, 0\ns_mov_b32 s{sO+2}, {SZ_KF:#x}\ns_mov_b32 s{sO+3}, 0x20000')
    e(f'v_and_b32 v{vT}, 31, v{vLane}\nv_lshlrev_b32 v{vAx[0]}, 7, v{vT}\nv_bfe_u32 v{vT}, v{vLane}, 1, 3\nv_lshrrev_b32 v{vT+1}, 5, v{vLane}')
    e(f'v_xor_b32 v{vT}, v{vT}, v{vT+1}\nv_lshl_add_u32 v{vAx[0]}, v{vT}, 4, v{vAx[0]}')
    e(f's_and_b32 s4, s{sWave}, 1\ns_lshl_b32 s4, s4, 14\nv_add_u32 v{vAx[0]}, s4, v{vAx[0]}')
    for q in range(1, 4): e(f'v_xor_b32 v{vAx[q]}, {32*q}, v{vAx[0]}')
    lane_w_base(e, vW0, vW1, vT, 2, 1024)
    e(f's_lshr_b32 s4, s{sWave}, 1\ns_lshl_b32 s4, s4, 13\ns_add_u32 s4, s4, {WB}')
    e(f'v_add_u32 v{vW0}, s4, v{vW0}\nv_add_u32 v{vW1}, s4, v{vW1}')
    st('kv_dma')
    e.wait_vm('ln')
    F = 48
    e('s_mov_b32 s36, 0xffff0000')
    def unpack(i):
        for k in range(4):
            e(f'v_lshlrev_b32 v{F+8*i+2*k}, 16, v{D+4*i+k}\nv_and_b32 v{F+8*i+2*k+1}, s36, v{D+4*i+k}')
    unpack(0); unpack(1)
    for k in range(8): e(f'v_mov_b32 v{F+16+k}, 0')
    e('s_mov_b32 exec_lo, 0xff\ns_mov_b32 exec_hi, 0xff'); unpack(2); e('s_mov_b64 exec, -1')
    def allred(r, t):
        for dpp in ('quad_perm:[1,0,3,2]', 'quad_perm:[2,3,0,1]', 'row_half_mirror', 'row_mirror'):
            e(f's_nop 1\nv_add_f32_dpp v{r}, v{r}, v{r} {dpp} row_mask:0xf bank_mask:0xf')
        e(f'v_mov_b32 v{t}, v{r}\ns_nop 1\nv_permlane16_swap_b32 v{r}, v{t}\ns_nop 1\nv_add_f32 v{r}, v{r}, v{t}')
    mu, va, t0, t1, t2, t3, t4 = 84, 85, 86, 87, 88, 89, 90
    e(f'v_add_f32 v{mu}, v{F}, v{F+1}')
    for k in range(2, 24): e(f'v_add_f32 v{mu}, v{mu}, v{F+k}')
    allred(mu, t0)
    e(f's_mov_b32 s37, 0x3ae38e39\nv_mul_f32 v{mu}, s37, v{mu}')
    e(f'v_mov_b32 v{va}, 0')
    for k in range(16): e(f'v_sub_f32 v{t1}, v{F+k}, v{mu}\nv_fmac_f32 v{va}, v{t1}, v{t1}')
    e('s_mov_b32 exec_lo, 0xff\ns_mov_b32 exec_hi, 0xff')
    for k in range(16, 24): e(f'v_sub_f32 v{t1}, v{F+k}, v{mu}\nv_fmac_f32 v{va}, v{t1}, v{t1}')
    e('s_mov_b64 exec, -1')
    allred(va, t0)
    e(f'v_mul_f32 v{va}, s37, v{va}')
    e(f'v_cvt_pk_bf16_f32 v{t1}, v{mu}, v{va}\nv_lshlrev_b32 v{mu}, 16, v{t1}\nv_and_b32 v{va}, s36, v{t1}')
    e(f'v_mov_b32 v{t2}, 0x3727c5ac\nv_add_f32 v{va}, v{t2}, v{va}')
    e(f'v_cvt_pk_bf16_f32 v{t1}, v{va}, v{va}\nv_lshlrev_b32 v{va}, 16, v{t1}\nv_sqrt_f32 v{va}, v{va}\ns_nop 0')
    e(f'v_cvt_pk_bf16_f32 v{t1}, v{va}, v{va}\nv_lshlrev_b32 v{va}, 16, v{t1}\nv_rcp_f32 v{t2}, v{va}\ns_nop 0')
    for i in range(3):
        if i == 2: e('s_mov_b32 exec_lo, 0xff\ns_mov_b32 exec_hi, 0xff')
        for k in range(4):
            r0, r1 = F+8*i+2*k, F+8*i+2*k+1
            e(f'v_sub_f32 v{r0}, v{r0}, v{mu}\nv_sub_f32 v{r1}, v{r1}, v{mu}')
            e(f'v_cvt_pk_bf16_f32 v{t3}, v{r0}, v{r1}')
            e(f'v_lshlrev_b32 v{r0}, 16, v{t3}\nv_and_b32 v{r1}, s36, v{t3}')
            for r in (r0, r1):
                e(f'v_mul_f32 v{t4}, v{r}, v{t2}\nv_fma_f32 v{t1}, -v{t4}, v{va}, v{r}\nv_fma_f32 v{r}, v{t1}, v{t2}, v{t4}')
            e(f'v_cvt_pk_bf16_f32 v{D+4*i+k}, v{r0}, v{r1}')
        e(f's_mov_b32 s37, {i*16*1024}')
        e.vmem(f'buffer_store_dwordx4 v[{D+4*i}:{D+4*i+3}], v80, {srd(sXN)}, s37 offen {ST}', 'xn')
    e('s_mov_b64 exec, -1')
    e('s_waitcnt lgkmcnt(0)')
    e(f's_mul_i32 s{sTag}, s{sTag}, 0x9E3779B1\ns_add_u32 s{sTag}, s{sTag}, 0x7F4A7C15')
    e(f's_mov_b32 s{sSlow}, 0')
    vAt = 22
    srd_from(e, S3, pDbg, 256)
    e(f's_cmp_lg_u32 s{sWave}, 0\ns_cbranch_scc1 L_noat')
    e(f'v_mov_b32 v{vAt}, 1\nv_mov_b32 v{vT}, 0\ns_mov_b64 exec, 1')
    e.vmem(f'buffer_atomic_add v{vAt}, v{vT}, {srd(S3)}, 0 offen sc0 sc1', None, optional=True)
    e('s_mov_b64 exec, -1')
    e.label('L_noat')
    e(f's_and_b32 s4, s{sIdx}, 3\ns_lshl_b32 s5, s{sXcd}, 2\ns_add_u32 s{sCj}, s5, s4')
    e(f's_mul_i32 s4, s{sCj}, 144\ns_and_b32 s5, s{sCj}, 1\ns_lshl_b32 s6, s5, 4\ns_add_u32 s{sFb}, s4, s6')
    e(f's_xor_b32 s5, s5, 1\ns_lshl_b32 s5, s5, 7\ns_add_u32 s{sMb}, s4, s5')
    e('s_nop 4')
    srd_from(e, gG, pWg, SZ['wg']); srd_from(e, gU, pWu, SZ['wu']); srd_from(e, gA, pWs, SZ_XN, WS_XN)
    e(f's_bitcmp1_b32 s{sWave}, 0\ns_cselect_b32 s4, s{pWu}, s{pWg}\ns_cselect_b32 s5, s{pWu+1}, s{pWg+1}')
    srd_from(e, gM, 4, SZ['wg'])
    e(f's_lshl_b32 s4, s{sTt}, 3\ns_lshl_b32 s5, s{sWave}, 1\ns_add_u32 s4, s4, s5\ns_mul_i32 s4, s4, {36*1024}\nv_add_u32 v{gDA}, s4, v{vL16}')
    e(f's_mov_b32 s{gSoffA}, {36*1024 - 2048}\ns_movk_i32 s6, {G_PITCH}')
    lane_w_dma(e, gDW, vT, 6)
    e(f's_and_b32 s4, s{sWave}, 1\ns_lshl_b32 s4, s4, 5\nv_xor_b32 v{gDW}, s4, v{gDW}')
    e(f's_lshl_b32 s4, s{sFb}, 1\ns_mul_i32 s5, s{sWave}, {8*G_PITCH}\ns_add_u32 s4, s4, s5\nv_add_u32 v{gDW}, s4, v{gDW}')
    e(f's_mov_b32 s{gSoffW}, {4*G_PITCH - 1024}')
    e(f'v_bfe_u32 v{vT}, v{vLane}, 1, 2\nv_bfe_u32 v{vT+1}, v{vLane}, 3, 1\nv_lshl_add_u32 v{vT}, v{vT+1}, 3, v{vT}')
    e(f'v_bfe_u32 v{vT+1}, v{vLane}, 4, 1\nv_lshl_add_u32 v{vT}, v{vT+1}, 2, v{vT}')
    e(f'v_bfe_u32 v{vT+1}, v{vLane}, 5, 1\nv_lshl_add_u32 v{vT}, v{vT+1}, 4, v{vT}')
    e(f'v_mul_lo_u32 v{gDM}, v{vT}, s6\nv_and_b32 v{vT}, 1, v{vLane}\nv_lshl_add_u32 v{gDM}, v{vT}, 4, v{gDM}')
    e(f's_lshl_b32 s4, s{sMb}, 1\nv_add_u32 v{gDM}, s4, v{gDM}')
    e(f's_lshl_b32 s{gM0A}, s{sWave}, 12')
    gM0U_early = 40 + 0
    e(f's_lshl_b32 s4, s{sWave}, 11\ns_add_u32 s{gM0G}, s4, {GOFF}\ns_add_u32 s{gM0U}, s4, {UOFF}')
    e(f's_and_b32 s4, s{sWave}, 1\ns_mul_i32 s4, s4, {MUO}\ns_add_u32 s{gM0M}, s4, {MOFF}')
    st('ln')
    XA = [R('a', 32 + 4*i, 4) for i in range(4)]; XW = [R('a', 48 + 4*i, 4) for i in range(4)]
    YA = [R('a', 64 + 4*i, 4) for i in range(4)]; YW = [R('a', 80 + 4*i, 4) for i in range(4)]
    acc = [[None]*4 for _ in range(4)]
    for j in range(4):
        for i in range(4):
            n = 4*j + i
            acc[i][j] = R('v', 32 + 16*n, 16) if n < 14 else R('a', 16*(n - 14), 16)
    def reads(t, ks, FA, FW):
        so = (t % 4) * 16384
        r = []
        def wrd(j):
            base = vW0 if (j & 1) == 0 else vW1
            for i2 in range(2):
                r.append(f'ds_read_b64_tr_b16 {FW[j][2*i2:2*i2+2]}, v{base} offset:{so + (4*ks + i2)*1024 + (j >> 1)*512}')
        r.append(f'v_add_u32 v{vAc}, {((t // 2) % 3)*32768}, v{vAx[2*(t & 1) + ks]}')
        wrd(0)
        for i in range(4): r.append(f'ds_read_b128 {FA[i]}, v{vAc} offset:{i*4096}')
        wrd(1); wrd(2); wrd(3)
        return r
    def mfs(FA, FW, isK, first):
        return [((acc[i][j], FW[j], FA[i], '0' if first else None) if isK else (acc[i][j], FA[i], FW[j], '0' if first else None))
                for j in range(4) for i in range(4)]
    NST = 16
    e.wait_vm(('ka', 0), barrier=True)
    assert e.vm_count(('kw', 0)) is None
    st('kv_first')
    saved = (list(e.vm), list(e.lg))
    def place(fills, rd):
        put(fills, 0, rd[:3])
        for k, x in enumerate(rd[3:]): put(fills, 1 + k // 2, [x])
    g0 = gu_dma(0); g1 = gu_dma(1)
    def loop(isK):
        for x in reads(0, 0, XA, XW): e.op(x)
        for t in range(NST):
            fills = {}
            place(fills, reads(t, 1, YA, YW))
            if t == 0: spread(fills, late[:12], 1, 15)
            run_sub(e, mfs(XA, XW, isK, t == 0), fills)
            fills = {}
            if t + 1 < NST:
                need = [('kw', t + 1)] + ([('ka', (t + 1) // 2)] if (t + 1) % 2 == 0 else [])
                cnts = [(e.vm_count(x), x) for x in need if e.vm_count(x) is not None]
                e.wait_vm(min(cnts)[1] if cnts else ('kw', t + 1), also_lgkm0=True, barrier=True)
                place(fills, reads(t + 1, 0, XA, XW))
            else:
                e.lgkm0(); e('s_barrier')
            if t == 12: flag_check(e, 16, vL16, 0, 64, ndw=4)
            dm = []
            q, h = ((t + 5) // 2, 0) if t % 2 == 1 else ((t + 4) // 2, 1)
            if t == 0: dm += late[12:]
            if q < 8: dm += dmaA(q, h)
            if t + 4 < NST: dm += dmaW(t + 4)
            if t == 12: dm += g0[:4]
            if t == 13: dm += g0[4:]
            if t == 14: dm += g1
            if t == 15: dm += gu_dma(2)
            spread(fills, dm, (6 if t < 12 else 5) if t > 0 else 1, 15)
            if not ARG('nopf2') and 1 <= t < 12:
                k = t - 1
                if k < 10 and not ARG('nopfg'): put(fills, 14, pf_ops(pWg if k % 2 == 0 else pWu, 'wg', k // 2, 5))
                if t in (3, 7, 11) and not ARG('wqgu') and not ARG('nopfq'): put(fills, 15, pf_ops(pWq, 'wq', (t - 3) // 4, 3))
            if t == 3:
                assert 'xn' not in e.vm
                hook = f'L_ln{int(isK)}'
                put(fills, 2, [f's_cmp_lg_u32 s{sWave}, 0', f's_cbranch_scc1 {hook}',
                               f'v_mov_b32 v14, s{sTag}', f'v_mov_b32 v15, 0', f's_lshl_b32 s4, s2, 2', f'v_readfirstlane_b32 s5, v{vAt}', 's_mov_b64 exec, 1',
                               (f'buffer_store_dword v14, v15, {srd(SF)}, s4 offen sc1', 'OPT'),
                               f's_cmp_lg_u32 s5, 255', f's_cbranch_scc1 {hook}x', f's_mov_b32 s4, {FL_E}',
                               (f'buffer_store_dword v14, v15, {srd(SF)}, s4 offen sc1', 'OPT'), f'{hook}x:', 's_mov_b64 exec, -1', f'{hook}:'])
            if t == 9:
                put(fills, 0, [(f'buffer_load_dwordx4 v[16:19], v{vL16}, {srd(SF)}, 0 offen sc1', 'poll')])
            run_sub(e, mfs(YA, YW, isK, False), fills)
        e('s_nop 7')
        return
    e(f's_cmp_lt_u32 s{sCt}, 16\ns_cbranch_scc0 L_kvV')
    loop(True)
    e('s_branch L_kvE')
    e.label('L_kvV')
    e.vm, e.lg = list(saved[0]), list(saved[1])
    loop(False)
    e.label('L_kvE')
    st('kv_loop')
    return dict(acc=acc)
```

```python
from v5a import *

def phase_gu(e, st, kv):
    accKV = kv['acc']
    sOKV = S2
    vA, vW0, vW1, vM, vAb, vW0b, vW1b, vMb = 3, 4, 5, 6, 7, 8, 9, 10
    for n in range(14):
        i, j = n % 4, n // 4
        a_ = accKV[i][j]
        for r in range(8): e(f'v_cvt_pk_bf16_f32 v{32 + 8*n + r}, {a_[2*r]}, {a_[2*r+1]}')
    for n in (14, 15):
        i, j = n % 4, n // 4
        a_ = accKV[i][j]
        for r in range(16): e(f'v_accvgpr_read_b32 v{224+r}, {a_[r]}')
        for r in range(8): e(f'v_cvt_pk_bf16_f32 v{32 + 8*n + r}, v{224+2*r}, v{224+2*r+1}')
    vA, vAb = 3, 7
    vWb = [8, 9, 10, 29]; vW = [4, 5, 6, 30]; vMb, vM = 13, 16
    e(f'v_lshrrev_b32 v{vT}, 5, v{vLane}\nv_lshlrev_b32 v{vAb}, 10, v{vT}\nv_bfe_u32 v{vT}, v{vLane}, 4, 1\nv_lshl_add_u32 v{vAb}, v{vT}, 9, v{vAb}')
    e(f'v_and_b32 v{vT}, 15, v{vLane}\nv_lshl_add_u32 v{vAb}, v{vT}, 4, v{vAb}\ns_lshl_b32 s4, s{sWave}, 12\nv_add_u32 v{vAb}, s4, v{vAb}')
    e(f'v_lshrrev_b32 v{vT}, 4, v{vLane}\nv_lshlrev_b32 v{vWb[0]}, 11, v{vT}\nv_and_b32 v{vT}, 1, v{vT}\nv_lshl_add_u32 v{vWb[0]}, v{vT}, 5, v{vWb[0]}')
    e(f'v_bfe_u32 v{vT}, v{vLane}, 2, 2\nv_lshl_add_u32 v{vWb[0]}, v{vT}, 7, v{vWb[0]}\nv_lshrrev_b32 v{vT}, 1, v{vT}\nv_lshl_add_u32 v{vWb[0]}, v{vT}, 6, v{vWb[0]}')
    e(f'v_and_b32 v{vT}, 3, v{vLane}\nv_lshl_add_u32 v{vWb[0]}, v{vT}, 3, v{vWb[0]}')
    e(f'v_xor_b32 v{vWb[1]}, 32, v{vWb[0]}\nv_xor_b32 v{vWb[2]}, 64, v{vWb[0]}\nv_xor_b32 v{vWb[3]}, 96, v{vWb[0]}')
    e(f'v_lshrrev_b32 v{vT}, 5, v{vLane}\nv_lshlrev_b32 v{vMb}, 9, v{vT}\nv_bfe_u32 v{vT}, v{vLane}, 4, 1\nv_lshl_add_u32 v{vMb}, v{vT}, 7, v{vMb}')
    e(f'v_bfe_u32 v{vT}, v{vLane}, 2, 2\nv_lshl_add_u32 v{vMb}, v{vT}, 5, v{vMb}\nv_and_b32 v{vT}, 3, v{vLane}\nv_lshl_add_u32 v{vMb}, v{vT}, 3, v{vMb}')
    CUR = [dict(A=3, M=16, W=[4, 5, 6, 30]), dict(A=14, M=15, W=[17, 18, 19, 22])]
    def setaddr(t):
        so = g_slot(t); cu = CUR[t % 2]
        return [f'v_add_u32 v{c}, {so}, v{b}' for c, b in [(cu['A'], vAb), (cu['M'], vMb)] + list(zip(cu['W'], vWb))]
    for x in setaddr(0): e(x)
    FA = [[R('v', 224 + 16*b + 4*i, 4) for i in range(4)] for b in range(2)]
    NW = 8
    FW = [R('v', 192 + 4*k, 4) for k in range(NW)]
    def wreads(c, n, t):
        F_ = FW[n % NW]; cu = CUR[t % 2]
        if c % 9 == 8:
            off = MOFF + (MUO if c == 17 else 0)
            return [f'ds_read_b64_tr_b16 {F_[2*i2:2*i2+2]}, v{cu["M"]} offset:{off + i2*256}' for i2 in range(2)]
        b = c % 9
        off = (GOFF if c < 9 else UOFF) + (b >> 2) * 512
        return [f'ds_read_b64_tr_b16 {F_[2*i2:2*i2+2]}, v{cu["W"][b & 3]} offset:{off + i2*1024}' for i2 in range(2)]
    def areads(t): return [f'ds_read_b128 {FA[t % 2][i]}, v{CUR[t % 2]["A"]} offset:{(i >> 1)*2048 + (i & 1)*256}' for i in range(4)]
    e.wait_vm(('gu', 0), barrier=True)
    LA = 7 if ARG('la7') else (5 if ARG('la5') else 6)
    for x in wreads(0, 0, 0) + areads(0): e.op(x)
    for c in range(1, LA):
        for x in wreads(c, c, 0): e.op(x)
    e(f's_and_b32 s4, s{sCt}, 15\ns_lshl_b32 s4, s4, 1\ns_lshr_b32 s5, s{sWave}, 1\ns_add_u32 s4, s4, s5\ns_lshl_b32 s4, s4, 6')
    e(f's_lshl_b32 s5, s{sTt}, 3\ns_and_b32 s6, s{sWave}, 1\ns_lshl_b32 s6, s6, 2\ns_add_u32 s5, s5, s6\ns_add_u32 s4, s4, s5\ns_lshl_b32 s4, s4, 13')
    e(f'v_add_u32 v{vKVo}, s4, v{vL16}')
    e(f's_cmp_lt_u32 s{sCt}, 16')
    for j in range(4):
        for half in range(2):
            e(f's_mov_b32 s4, {half*4096 + j*1024}\ns_cselect_b32 s{sKVo[2*j + half]}, {(2*j+half)*1024}, s4')
    kvst = []
    for n in range(16):
        i, j = n % 4, n // 4
        for half in range(2):
            r0 = 32 + 8*n + 4*half
            kvst.append([f's_add_u32 s4, s{sKVo[2*j + half]}, {i*8192}',
                         (f'buffer_store_dwordx4 v[{r0}:{r0+3}], v{vKVo}, {srd(sOKV)}, s4 offen {ST}', 'kvst')])
    kvst = Spread(kvst)
    qsetup = []
    A = qsetup.append
    A(f's_and_b32 s4, s{sIdx}, 3'); A(f's_lshl_b32 s5, s{sXcd}, 2'); A(f's_add_u32 s{sH}, s5, s4'); A(f's_lshr_b32 s{sP}, s{sIdx}, 2')
    A(f's_lshl_b32 s{sNS}, s{sP}, 1'); A(f's_add_u32 s{sNS}, s{sNS}, 2'); A(f's_lshl_b32 s4, s{sP}, 1'); A(f's_sub_u32 s{sNL}, 32, s4')
    A(f's_mov_b32 s{qW}, s{pWq}'); A(f's_mov_b32 s{qW+1}, s{pWq+1}'); A(f's_mov_b32 s{qW+2}, {SZ["wq"]:#x}'); A(f's_mov_b32 s{qW+3}, 0x20000')
    A(f's_lshl_b32 s4, s{sP}, 2'); A(f's_add_u32 s4, s4, s{sWave}'); A(f's_mul_i32 s4, s4, {36*1024}'); A(f'v_add_u32 v{qDA}, s4, v{vL16}')
    A(f's_lshl_b32 s4, s{sP}, 3'); A('s_sub_u32 s4, 60, s4'); A(f's_mul_i32 s4, s4, {36*1024}'); A(f's_sub_u32 s{qSoffA}, s4, 2048')
    q2 = Asm(); q2('s_movk_i32 s6, 8192'); lane_w_dma(q2, qDW, vT, 6)
    q2(f's_lshl_b32 s4, s{sH}, 8\ns_lshl_b32 s5, s{sWave}, 16\ns_add_u32 s4, s4, s5\nv_add_u32 v{qDW}, s4, v{qDW}')
    q2(f's_mov_b32 s{qSoffW}, {4*8192 - 1024}\ns_lshl_b32 s{qM0A}, s{sWave}, 12\ns_lshl_b32 s4, s{sWave}, 11\ns_add_u32 s{qM0W}, s4, {Q_ACTB}')
    import re as _re
    def retemp(l): return [_re.sub(r'\bs6\b', 's101', _re.sub(r'\bs5\b', 's100', _re.sub(r'\bs4\b', 's95', x))) for x in l]
    qsetup = retemp(qsetup); q2.lines = retemp(q2.lines)
    acc = {}
    n = 0
    for c in range(18):
        for i in range(4):
            if c == 8: acc[c, i] = R('v', 160 + 4*i, 4)
            elif c == 17: acc[c, i] = R('v', 176 + 4*i, 4)
            else:
                acc[c, i] = R('a', 4*n, 4); n += 1
    st('gu_first')
    NST = G_NST
    def split(g):
        k = next(i for i, x in enumerate(g) if isinstance(x, tuple))
        return [x for x in g[:k] if x != 's_nop 0'], g[k], g[k+1:]
    pend = []
    carry = []
    misc = []
    for t in range(NST):
        if t + 1 < NST: misc = setaddr(t + 1) + misc
        if t == 2: misc += qsetup
        if t == 4: misc += q2.lines
        for c in range(18):
            n = t * 18 + c
            if c == 18 - LA:
                assert not pend, (t, len(pend))
                if t + 1 < NST:
                    assert not any(x in misc for x in setaddr(t + 1)), t
                    e.wait_vm(('gu', t + 1), barrier=True)
                else:
                    e('s_barrier')
                if t + 3 < NST: pend = gu_dma(t + 3)
                elif t == 15: pend = q_dma(0)
                elif t == 16: pend = q_dma(1)
                elif t == 17: pend = q_dma(2)
                pend = [split(g) for g in pend]
                if pend[0][0]:
                    for x in pend[0][0]: e(x)
                    pend[0] = ([], pend[0][1], pend[0][2])
            fl = {0: [], 1: [], 2: [], 3: []}
            nc = c + LA
            rd = []
            if nc < 18: rd = wreads(nc, n + LA, t)
            elif t + 1 < NST: rd = wreads(nc - 18, n + LA, t + 1)
            if rd: fl[0].append(rd[0]); fl[1].append(rd[1])
            ar = []
            if t + 1 < NST and c in (12, 13): ar = areads(t + 1)[2*(c - 12):2*(c - 12) + 2]
            if ar:
                fl[2].append(ar[0]); fl[3].append(ar[1])
            elif pend:
                pre, d, post = pend.pop(0)
                assert not pre
                fl[2].append(d)
                fl[3] += post
                if pend and pend[0][0]:
                    fl[3] += pend[0][0]
                    pend[0] = ([], pend[0][1], pend[0][2])
            elif c in (6, 9) and kvst.left():
                g = kvst.take(1)[0]
                fl[2].append(g[0]); fl[3].append(g[1])
            else:
                for gp in (2, 3):
                    for _ in range(2):
                        if misc: fl[gp].append(misc.pop(0))
            if t == 17 and not rd and misc:
                pass
            for i in range(4):
                e.mf16(acc[c, i], FW[n % NW], FA[t % 2][i], '0' if t == 0 else None)
                for f in fl[i]:
                    if isinstance(f, tuple): e.op(f[0], f[1])
                    else: e.op(f)
    for pre, d, post in pend:
        for x in pre: e(x)
        e('s_nop 0'); e.op(d[0], d[1])
        for x in post: e(x)
    assert not misc and kvst.left() == 0, (len(misc), kvst.left())
    st('gu_loop')
    return dict(acc=acc)
```

```python
from v5b import *
import v5fin as FIN

def phase_attn(e, st, gu):
    accGU = gu['acc']
    vA, vW0, vW1, vAb, vW0b, vW1b = 3, 4, 5, 7, 8, 9
    vDKV, vK, vV = 13, 16, 6
    vK1 = 29
    e(f's_lshl_b32 s{sWoff}, s{sWave}, 12\nv_add_u32 v{vAb}, s{sWoff}, v{vL16}')
    lane_w_base(e, vW0b, vW1b, vT, 2, 1024)
    e(f'v_add_u32 v{vW0b}, {Q_ACTB}, v{vW0b}\nv_add_u32 v{vW1b}, {Q_ACTB}, v{vW1b}')
    vHo = 10
    e(f'v_bfe_u32 v{vT}, v{vLane}, 4, 1\nv_lshlrev_b32 v{vHo}, 9, v{vT}\nv_and_b32 v{vT}, 15, v{vLane}\nv_lshl_add_u32 v{vHo}, v{vT}, 4, v{vHo}')
    e(f'v_lshrrev_b32 v{vT}, 5, v{vLane}\nv_lshl_add_u32 v{vHo}, v{vT}, 8, v{vHo}')
    def qaddr(t):
        so = (t % 4) * Q_SS
        return [f'v_add_u32 v{c}, {so}, v{b}' for c, b in ((vA, vAb), (vW0, vW0b), (vW1, vW1b))]
    for x in qaddr(0): e(x)
    QA = [[R('v', 32 + 64*x + 16*j, 16) for j in range(4)] for x in range(2)]
    XA = [R('v', 192 + 4*i, 4) for i in range(2)]; XW = [R('v', 200 + 4*i, 4) for i in range(4)]
    YA = [R('v', 216 + 4*i, 4) for i in range(2)]; YW = [R('v', 224 + 4*i, 4) for i in range(4)]
    def q_reads(ks, FA, FW):
        r = []
        def wrd(j):
            base = vW0 if (j & 1) == 0 else vW1
            for i2 in range(2):
                r.append(f'ds_read_b64_tr_b16 {FW[j][2*i2:2*i2+2]}, v{base} offset:{(4*ks + i2)*1024 + (j >> 1)*512}')
        wrd(0)
        for i in range(2): r.append(f'ds_read_b128 {FA[i]}, v{vA} offset:{i*2048 + ks*1024}')
        for j in range(1, 4): wrd(j)
        return r
    e.wait_vm(('q', 0), also_lgkm0=True, barrier=True)
    for x in q_reads(0, XA, XW): e.op(x)
    srd_from(e, sACT, pWs, SZ_ACT2, WS_ACT2)
    e(f's_lshl_b32 s4, s{sH}, 19\ns_lshl_b32 s5, s{sNL}, 14')
    for sr, off in ((sKF, WS_KF), (sVF, WS_VF)):
        e(f's_add_u32 s{sr}, s{pWs}, {off:#x}\ns_addc_u32 s{sr+1}, s{pWs+1}, 0\ns_add_u32 s{sr}, s{sr}, s4\ns_addc_u32 s{sr+1}, s{sr+1}, 0\ns_mov_b32 s{sr+2}, s5\ns_mov_b32 s{sr+3}, 0x20000')
    e(f's_mov_b32 s{sK2}, {f2u(GK2):#x}\nv_mov_b32 v{vK1}, {f2u(GK1):#x}')
    e(f's_lshl_b32 s4, s{sTt}, 3\ns_lshl_b32 s5, s{sWave}, 1\ns_add_u32 s4, s4, s5\ns_mul_i32 s4, s4, {544*1024}\ns_add_u32 s4, s4, {256*1024}')
    e(f's_lshl_b32 s{sFb}, s{sFb}, 6\ns_add_u32 s{sFb}, s{sFb}, s4\ns_lshl_b32 s{sMb}, s{sMb}, 6\ns_add_u32 s{sMb}, s{sMb}, s4')
    e(f'v_add_u32 v{vDKV}, s{sWoff}, v{vL16}')
    e(f's_mov_b32 s{sKoff}, 0\ns_mov_b32 s{sVoff}, 0')
    frs = []
    def tl(c, ip): return [accGU[c, 2*ip][r] for r in range(4)] + [accGU[c, 2*ip + 1][r] for r in range(4)]
    for ip in range(2): frs.append((tl(8, ip), tl(17, ip), sMb, ip*544*1024))
    for ip in range(2):
        for b in range(8): frs.append((tl(b, ip), tl(9 + b, ip), sFb, ip*544*1024 + b*1024))
    def gelu_frag(k):
        gs, us, sb, off = frs[k]
        o = []
        if k < 2:
            G = [str(x) for x in gs]; U = [str(x) for x in us]; E = [f'v{240+r}' for r in range(8)]; P = 248
        else:
            G = [f'v{160+r}' for r in range(8)]; U = [f'v{168+r}' for r in range(8)]; E = [f'v{176+r}' for r in range(8)]; P = 184 + 4 * (k % 2)
            for r in range(8): o.append(f'v_accvgpr_read_b32 {G[r]}, {gs[r]}')
        for r in range(8): o.append(f'v_mul_f32 {E[r]}, {G[r]}, {G[r]}')
        if k >= 2:
            for r in range(8): o.append(f'v_accvgpr_read_b32 {U[r]}, {us[r]}')
        for r in range(8): o.append(f'v_fma_f32 {E[r]}, {E[r]}, s{sK2}, v{vK1}')
        for r in range(8): o.append(f'v_mul_f32 {E[r]}, {G[r]}, {E[r]}')
        for r in range(8): o += [f'v_exp_f32 {E[r]}, {E[r]}', f'v_mul_f32 {G[r]}, {G[r]}, {U[r]}']
        for r in range(8): o.append(f'v_add_f32 {E[r]}, 1.0, {E[r]}')
        for r in range(8): o.append(f'v_rcp_f32 {E[r]}, {E[r]}')
        for r in range(8): o.append(f'v_mul_f32 {G[r]}, {G[r]}, {E[r]}')
        for r in range(4): o.append(f'v_cvt_pk_bf16_f32 v{P+r}, {G[2*r]}, {G[2*r+1]}')
        o += ['s_nop 1', f'v_permlane32_swap_b32 v{P}, v{P+2}', f'v_permlane32_swap_b32 v{P+1}, v{P+3}']
        o.append(f's_add_u32 s4, s{sb}, {off}')
        o.append((f'buffer_store_dwordx4 v[{P}:{P+3}], v{vHo}, {srd(sACT)}, s4 offen {ST}', 'hst'))
        return o
    def q_mf(FA, FW, first): return [(QA[x][j], FW[j], FA[1 - x], '0' if first else None) for j in range(4) for x in range(2)]
    def dma_tile(srd_, soff, tag):
        return [(f'buffer_load_dwordx4 v{vDKV}, {srd(srd_)}, s{soff} offen offset:{1024*i} sc1 lds', tag) for i in range(4)]
    def adv(soff): return [f's_add_u32 s{soff}, s{soff}, 16384']
    def tile_groups(srd_, soff, ldsoff, tag):
        d = dma_tile(srd_, soff, tag)
        return [[f's_add_u32 m0, s{sWoff}, {ldsoff}', 's_nop 0', d[0]], [d[1]], [d[2]], [d[3]] + adv(soff)]
    st('q_first')
    NST = 18
    vPoll, vPo = 30, 17
    for t in range(NST):
        gl = gelu_frag(t)
        if t == 0: gl = ['s_nop 7'] + gl
        cut = [k * len(gl) // 16 for k in range(17)]
        cut[15] = min(cut[15], len(gl) - 9)
        gsp = [gl[cut[k]:cut[k + 1]] for k in range(16)]
        fills = {}
        for k, x in enumerate(q_reads(1, YA, YW)): put(fills, k // 2, [x])
        for k in range(8): put(fills, k, gsp[k])
        if t == 10:
            put(fills, 7, [f'v_and_b32 v{vPo}, 7, v{vLane}', f'v_lshlrev_b32 v{vPo}, 2, v{vPo}', f'v_lshrrev_b32 v{vPoll}, 3, v{vLane}',
                           f'v_and_b32 v{vPoll}, 1, v{vPoll}', f'v_lshlrev_b32 v{vPoll}, 9, v{vPoll}', f'v_add_u32 v{vPo}, v{vPo}, v{vPoll}',
                           f's_lshr_b32 s5, s{sH}, 1', 's_lshl_b32 s5, s5, 5', f's_add_u32 s{sT2}, s5, {FL_KV}',
                           (f'buffer_load_dword v{vPoll}, v{vPo}, {srd(SF)}, s{sT2} offen sc1', 'poll')])
        run_sub(e, q_mf(XA, XW, t == 0), fills)
        fills = {}
        if t + 1 < NST:
            e.wait_vm(('q', t + 1), also_lgkm0=True, barrier=True)
            for x in qaddr(t + 1): e(x)
            for k, x in enumerate(q_reads(0, XA, XW)): put(fills, k // 2, [x])
        if t == 13: flag_check(e, vPoll, vPo, f's{sT2}', 16)
        dm = []
        if t + 3 < NST: dm += q_dma(t + 3)
        if t == 14: dm += tile_groups(sKF, sKoff, KB, ('K', 0))
        if t == 15: dm += tile_groups(sKF, sKoff, KB + 16384, ('K', 1)) + tile_groups(sKF, sKoff, KB + 32768, ('K', 2))
        if t == 16: dm += tile_groups(sKF, sKoff, KB + 49152, ('K', 3)) + tile_groups(sVF, sVoff, 0, ('V', 0))
        spread(fills, dm, 1, 7)
        if t == 4:
            assert 'kvst' not in e.vm
            put(fills, 0, publish_ops([f's_lshl_b32 s4, s{sCt}, 3', f's_add_u32 s4, s4, s{sTt}', 's_lshl_b32 s4, s4, 2', f's_add_u32 s4, s4, {FL_KV}'], 'L_pubkv'))
        for k in range(8): put(fills, k, gsp[8 + k])
        run_sub(e, q_mf(YA, YW, False), fills)
    st('q_loop')
    return attn_main(e, st, dict(QA=QA, tile_groups=tile_groups, dma_tile=dma_tile, adv=adv, vDKV=vDKV, vK=vK, vV=vV))

def attn_main(e, st, L):
    QA, tile_groups, dma_tile, adv = L['QA'], L['tile_groups'], L['dma_tile'], L['adv']
    vDKV, vK, vV = L['vDKV'], L['vK'], L['vV']
    vDelta = [17, 18]; vl = [19, 22]; vDl = 21; vNI = 29; vTm = 14
    Q = [[R('v', 32 + 32*x + 4*s, 4) for s in range(8)] for x in range(2)]
    S = [[R('v', 96 + 32*x + 16*kb, 16) for kb in range(2)] for x in range(2)]
    P = [[R('v', 160 + 16*x + 4*u, 4) for u in range(4)] for x in range(2)]
    NM = [R('v', 192 + 16*x, 16) for x in range(2)]
    O = [[R('a', 64*x + 16*t, 16) for t in range(4)] for x in range(2)]
    F = [R('a', 128 + 4*i, 4) for i in range(16)]
    TMP = 224
    L_, S_ = 0, 1
    e.wait_vm(('K', 0), also_lgkm0=True, barrier=True)
    emit_groups(e, tile_groups(sVF, sVoff, 16384, ('V', 1)))
    e(f'v_add_u32 v{vK}, {KB}, v{vL16}')
    for f in range(16): e.ds(f'ds_read_b128 {F[f]}, v{vK} offset:{f*1024}')
    e(f's_mov_b32 s{sT0}, {f2u(QSCALE):#x}')
    e('s_nop 7')
    def qconv(x):
        o = []
        for j in range(4):
            q = QA[x][j]
            for r in range(16): o.append(f'v_mul_f32 {q[r]}, s{sT0}, {q[r]}')
            for half in range(2):
                for r in range(4): o.append(f'v_cvt_pk_bf16_f32 {Q[x][2*j+half][r]}, {q[8*half+2*r]}, {q[8*half+2*r+1]}')
        return o
    qc1all = qconv(1)
    for i in qconv(0) + qc1all[:48]: e(i)
    e(f'v_and_b32 v{vTm}, 31, v{vLane}\nv_lshrrev_b32 v{vTm+1}, 5, v{vLane}\nv_lshlrev_b32 v{vTm+1}, 2, v{vTm+1}\nv_sub_u32 v{vTm}, v{vTm}, v{vTm+1}')
    e(f's_lshl_b32 s{sT0}, s{sWave}, 5')
    e(f's_sub_u32 s{sT1}, 15, s{sP}\ns_lshl_b32 s{sT1}, s{sT1}, 7\ns_add_u32 s{sT1}, s{sT1}, s{sT0}')
    e(f'v_add_u32 v{vDelta[L_]}, s{sT1}, v{vTm}')
    e(f's_lshl_b32 s{sT1}, s{sP}, 7\ns_add_u32 s{sT1}, s{sT1}, s{sT0}')
    e(f'v_add_u32 v{vDelta[S_]}, s{sT1}, v{vTm}')
    e(f'v_mov_b32 v{vNI}, {NEG_INF:#x}')
    MK = MKP
    def mask_burst(x, kb, Sx=None):
        Sx = Sx if Sx is not None else S[x][kb]
        o = [f's_add_u32 s{sT2}, s{sJt}, {32*kb}', f'v_subrev_u32 v{vDl}, s{sT2}, v{vDelta[x]}']
        def cmp(r):
            cr = (r & 3) + 8 * (r >> 2)
            return f'v_cmp_ge_i32 s[{MK[r%4]}:{MK[r%4]+1}], v{vDl}, {cr}'
        o += [cmp(0), cmp(1), cmp(2)]
        for r in range(16):
            o.append(f'v_cndmask_b32 {Sx[r]}, v{vNI}, {Sx[r]}, s[{MK[r%4]}:{MK[r%4]+1}]')
            if r + 3 < 16: o.append(cmp(r + 3))
        return o
    def tile0_soft(x):
        o = []
        for kb in range(2): o += mask_burst(x, kb)
        m = TMP + 2*x
        allr = [S[x][kb][r] for kb in range(2) for r in range(16)]
        o.append(f'v_max3_f32 v{m}, {allr[0]}, {allr[1]}, {allr[2]}')
        for k in range(3, 31, 2): o.append(f'v_max3_f32 v{m}, v{m}, {allr[k]}, {allr[k+1]}')
        o.append(f'v_max_f32 v{m}, v{m}, {allr[31]}')
        o += [f'v_mov_b32 v{m+1}, v{m}', 's_nop 1', f'v_permlane32_swap_b32 v{m}, v{m+1}', 's_nop 1', f'v_max_f32 v{m}, v{m}, v{m+1}', f'v_sub_f32 {NM[x][0]}, 0, v{m}']
        for r in range(1, 16): o.append(f'v_mov_b32 {NM[x][r]}, {NM[x][0]}')
        for rr in allr: o.append(f'v_add_f32 {rr}, {rr}, {NM[x][0]}')
        for r in range(16): o.append(f'v_exp_f32 {S[x][0][r]}, {S[x][0][r]}')
        for r in range(6): o.append(f'v_exp_f32 {S[x][1][r]}, {S[x][1][r]}')
        o.append(f'v_mov_b32 v{vl[x]}, {S[x][0][0]}')
        for r in range(1, 16): o.append(f'v_add_f32 v{vl[x]}, v{vl[x]}, {S[x][0][r]}')
        for r in range(5): o.append(f'v_add_f32 v{vl[x]}, v{vl[x]}, {S[x][1][r]}')
        for q in range(8): o.append(f'v_cvt_pk_bf16_f32 {P[x][q >> 2][q & 3]}, {S[x][0][2*q]}, {S[x][0][2*q+1]}')
        return o
    zer = [f'v_accvgpr_write_b32 a{i}, 0' for i in range(128)]
    e(f's_mov_b32 s{sJt}, 0\ns_mov_b32 s33, {f2u(QSCALE):#x}')
    qc1 = [x.replace(f's{sT0},', 's33,') for x in qc1all[48:]]
    k = 0
    for kb in range(2):
        for s_ in range(8):
            e.mf(S[L_][kb], F[kb*8+s_], Q[L_][s_], '0' if s_ == 0 else None)
            for z in qc1[3*k:3*k+3]: e(z)
            for z in zer[16+4*k:16+4*k+4]: e(z)
            k += 1
    tl = tile0_soft(L_)
    k = 0; pos = 0
    for kb in range(2):
        for s_ in range(8):
            e.mf(S[S_][kb], F[kb*8+s_], Q[S_][s_], '0' if s_ == 0 else None)
            if k < 2:
                for z in zer[8*k:8*k+8]: e(z)
            else:
                for i in tl[pos:pos+7]: e(i)
                pos += 7
            k += 1
    for i in tl[pos:]: e(i)
    ts = tile0_soft(S_)
    zr = zer[80:]
    for k in range(len(ts)):
        e(ts[k])
    for z in zr: e(z)
    st('tile0')
    e.wait_vm(('V', 1), also_lgkm0=True, barrier=True)
    assert 'hst' not in e.vm
    emit_list(e, publish_ops([f's_lshl_b32 s4, s{sTt}, 5', f's_add_u32 s4, s4, s{sCj}', 's_lshl_b32 s4, s4, 2', f's_add_u32 s4, s4, {FL_GU}'], 'L_pubgu'))
    emit_groups(e, tile_groups(sKF, sKoff, KB, ('K', 4)) + tile_groups(sVF, sVoff, 32768, ('V', 2)))
    r1, r2, r3 = sKd, sVd, sKmax
    vKb = 3
    sWK = sM0K
    e(f's_mov_b32 s{r1}, 16384\ns_mov_b32 s{r2}, 32768\ns_mov_b32 s{r3}, 49152\ns_mov_b32 s{sJt}, 64\ns_add_u32 s{sWK}, s{sWoff}, {KB}')
    e(f'v_add_u32 v{vKb}, {KB}, v{vL16}\nv_add_u32 v{vK}, {KB + 16384}, v{vL16}\nv_mov_b32 v{vV}, v{vL16}')
    def frag_read(f):
        ff = f % 32
        if ff < 8: return f'ds_read_b128 {F[ff % 16]}, v{vK} offset:{ff*1024}'
        if ff < 16: return f'ds_read_b128 {F[ff % 16]}, v{vV} offset:{(ff-8)*1024}'
        if ff < 24: return f'ds_read_b128 {F[ff % 16]}, v{vK} offset:{(8 + ff-16)*1024}'
        return f'ds_read_b128 {F[ff % 16]}, v{vV} offset:{(8 + ff-24)*1024}'
    def mfma(D, A, B, C=None): return f'v_mfma_f32_32x32x16_bf16 {D}, {A}, {B}, {C if C is not None else D}'
    LA = 12
    for f in range(LA): e(frag_read(f))
    def E(x, g_):
        g_ %= 32
        if 10 <= g_ <= 25: return S[x][0][g_-10]
        if g_ >= 26: return S[x][1][g_-26]
        return S[x][1][g_+6]
    def valu(x, g_, old, new):
        o = []
        if (old if g_ <= 9 else new): o.append(f'v_exp_f32 {E(x, g_)}, {E(x, g_)}')
        gp = (g_ - 1) % 32
        prev_old = (gp <= 9) or (g_ == 0)
        if (old if prev_old else new): o.append(f'v_add_f32 v{vl[x]}, v{vl[x]}, {E(x, gp)}')
        if g_ % 2 == 0:
            if g_ <= 14 and old:
                q = g_ // 2
                o.append(f'v_cvt_pk_bf16_f32 {P[x][2 + (q >> 2)][q & 3]}, {S[x][1][2*q]}, {S[x][1][2*q+1]}')
            if g_ >= 16 and new:
                q = (g_ - 16) // 2
                o.append(f'v_cvt_pk_bf16_f32 {P[x][q >> 2][q & 3]}, {S[x][0][2*q]}, {S[x][0][2*q+1]}')
        return o
    def strip(l): return [x[0] if isinstance(x, tuple) else x for x in l]
    def book(g_, dma=True, mk=False):
        o = []
        if g_ == 18: o += [f'v_add_u32 v{vK}, s{r2}, v{vKb}']
        if g_ == 22: o += [f'v_add_u32 v{vV}, s{r1}, v{vL16}']
        if dma:
            dk = strip(dma_tile(sKF, sKoff, None)); dv = strip(dma_tile(sVF, sVoff, None))
            if g_ == 20: o += [f's_add_u32 m0, s{r1}, s{sWK}', 's_nop 0', dk[0]]
            if g_ in (21, 22): o += [dk[g_-20]]
            if g_ == 23: o += [dk[3], f's_add_u32 m0, s{r3}, s{sWoff}'] + adv(sKoff)
            if g_ in (24, 25, 26): o += [dv[g_-24]]
            if g_ == 27: o += [dv[3]] + adv(sVoff)
        if g_ == 29: o += [f's_mov_b32 s{r1}, s{r2}', f's_mov_b32 s{r2}, s{r3}']
        if g_ == 30: o += [f's_add_u32 s{r3}, s{r3}, 16384', f's_and_b32 s{r3}, s{r3}, 0xffff']
        if g_ == 31 and mk: o += [f's_add_u32 s{sJt}, s{sJt}, 64']
        return o
    def step(qk, pv, masked, dma=True):
        for f in range(32):
            isK = f < 8 or 16 <= f < 24
            act = qk if isK else pv
            if f == 20: e(f's_waitcnt vmcnt({8 if dma else 0})\ns_barrier')
            if f % 8 == 0: e('s_waitcnt lgkmcnt(4)')
            todo = {x: valu(x, f, x in pv, x in qk) for x in range(2) if (x in pv or x in qk)}
            pre = []
            if f in (10, 26):
                for x in masked: pre += mask_burst(x, 0 if f == 10 else 1)
            first = True
            for x in act:
                if isK:
                    kb = 0 if f < 8 else 1; s_ = f % 8
                    e(mfma(S[x][kb], F[f % 16], Q[x][s_], NM[x] if s_ == 0 else None))
                else:
                    u = ((f - 8) // 4) if f < 16 else 2 + (f - 24) // 4; t = f % 4
                    e(mfma(O[x][t], F[f % 16], P[x][u]))
                if first:
                    e(frag_read(f + LA))
                    for i in book(f, dma, bool(masked)): e(i)
                    for i in pre: e(i)
                    for y in list(todo):
                        if y not in act:
                            for i in todo.pop(y): e(i)
                    first = False
                for i in todo.pop(x): e(i)
    def loop(lab, cnt_sreg, body):
        e(f's_cmp_eq_u32 s{cnt_sreg}, 0\ns_cbranch_scc1 {lab}_end')
        e(f's_sub_u32 s{cnt_sreg}, 0, s{cnt_sreg}')
        e('.p2align 6')
        e.label(lab)
        body()
        e(f's_add_u32 s{cnt_sreg}, s{cnt_sreg}, 1\ns_cbranch_scc0 {lab}')
        e.label(lab + '_end')
    def ctx_base(x):
        if x == L_: e(f's_sub_u32 s{sT0}, 15, s{sP}\ns_lshl_b32 s{sT0}, s{sT0}, 2')
        else: e(f's_lshl_b32 s{sT0}, s{sP}, 2')
        e(f's_add_u32 s{sT0}, s{sT0}, s{sWave}\ns_mul_i32 s{sT0}, s{sT0}, 544\ns_lshl_b32 s{sT1}, s{sH}, 3\ns_add_u32 s{sT0}, s{sT0}, s{sT1}\ns_lshl_b32 s{sT0}, s{sT0}, 10')
    def epi(x, check, Ox=None, inter=None):
        Ox = Ox if Ox is not None else O[x]
        T0 = TMP; EB = 128
        inter = list(inter or [])
        e(f'v_mov_b32 v{T0}, v{vl[x]}\ns_nop 1\nv_permlane32_swap_b32 v{vl[x]}, v{T0}\ns_nop 1')
        e(f'v_add_f32 v{vl[x]}, v{vl[x]}, v{T0}')
        if check:
            e(f'v_mov_b32 v{T0+1}, 0x5d800000')
            e(f'v_cmp_nlt_f32 vcc, v{vl[x]}, v{T0+1}')
        e(f'v_rcp_f32 v{T0}, v{vl[x]}')
        e('s_nop 1')
        if check: e(f's_or_b32 s{sSlow}, s{sSlow}, vcc_lo\ns_or_b32 s{sSlow}, s{sSlow}, vcc_hi')
        ctx_base(x)
        per = (len(inter) + 3) // 4
        for t in range(4):
            emit_groups(e, inter[t*per:(t+1)*per])
            ee = EB + 16 * (t % 2)
            for r in range(16): e(f'v_accvgpr_read_b32 v{ee+r}, {Ox[t][r]}')
            for r in range(16): e(f'v_mul_f32 v{ee+r}, v{ee+r}, v{T0}')
            for r in range(8): e(f'v_cvt_pk_bf16_f32 v{ee+r}, v{ee+2*r}, v{ee+2*r+1}')
            e(f's_add_u32 s{sT1}, s{sT0}, {t*2048}')
            e.vmem(f'buffer_store_dwordx4 v[{ee}:{ee+3}], v{vL16}, {srd(sACT)}, s{sT1} offen {ST}', 'cst')
            e.vmem(f'buffer_store_dwordx4 v[{ee+4}:{ee+7}], v{vL16}, {srd(sACT)}, s{sT1} offen offset:1024 {ST}', 'cst')
    def pfx(ptr, key, k, n):
        if ARG('nopf2'): return
        for x in pf_ops(ptr, key, k, n): e(x[0] if isinstance(x, tuple) else x)
    e(f's_sub_u32 s{sCnt}, s{sNS}, 3\ns_max_i32 s{sCnt}, s{sCnt}, 0')
    loop('LAT_A', sCnt, lambda: step([L_, S_], [L_, S_], []))
    st('A')
    e(f's_sub_u32 s{sCnt}, s{sNS}, 1\ns_min_u32 s{sCnt}, s{sCnt}, 2')
    e(f's_sub_u32 s{sJt}, s{sNS}, s{sCnt}\ns_lshl_b32 s{sJt}, s{sJt}, 6')
    loop('LAT_B', sCnt, lambda: step([L_, S_], [L_, S_], [S_]))
    pfx(pWd, 'wd', 0, 2)
    step([L_], [L_, S_], [L_])
    e('s_nop 7\ns_nop 7')
    st('BC')
    pfx(pWd, 'wd', 1, 2)
    epi(S_, True)
    pfx(pWo, 'wo', 0, 1)
    FIN.setup(e)
    st('epiS')
    e(f's_sub_u32 s{sCnt}, s{sNL}, s{sNS}\ns_sub_u32 s{sCnt}, s{sCnt}, 3\ns_max_i32 s{sCnt}, s{sCnt}, 0')
    loop('LAT_D', sCnt, lambda: step([L_], [L_], []))
    st('D')
    e(f's_cmp_eq_u32 s{sP}, 7\ns_cselect_b32 s{sCnt}, 1, 2')
    e(f's_sub_u32 s{sJt}, s{sNL}, s{sCnt}\ns_lshl_b32 s{sJt}, s{sJt}, 6')
    loop('LAT_E', sCnt, lambda: step([L_], [L_], [L_], dma=False))
    for f in range(8, 16): e(frag_read(f))
    for g_ in range(0, 16):
        for i in valu(L_, g_, True, False): e(i)
    e('s_waitcnt lgkmcnt(0)')
    for k, f in enumerate(range(8, 16)):
        e(mfma(O[L_][f % 4], F[f % 16], P[L_][(f - 8) // 4]))
        e(frag_read(24 + k))
    e('s_waitcnt lgkmcnt(0)')
    for f in range(24, 32): e(mfma(O[L_][f % 4], F[f % 16], P[L_][2 + (f - 24) // 4]))
    e('s_nop 7\ns_nop 7')
    FIN.check_gu(e)
    e('s_barrier')
    e.vm = []
    epi(L_, True, inter=FIN.pre())
    st('epiL')
    if ARG('forceslow'): e(f's_mov_b32 s{sSlow}, 1')
    e(f'v_mov_b32 v{TMP}, s{sSlow}\nv_lshlrev_b32 v{TMP+1}, 2, v0\nv_and_b32 v{TMP+1}, 0x300, v{TMP+1}\nv_lshrrev_b32 v{TMP+1}, 6, v{TMP+1}\nv_add_u32 v{TMP+1}, 163824, v{TMP+1}')
    e(f'ds_write_b32 v{TMP+1}, v{TMP}\ns_waitcnt lgkmcnt(0)\ns_barrier')
    e(f'v_mov_b32 v{TMP+1}, 163824\nds_read_b128 v[{TMP+4}:{TMP+7}], v{TMP+1}\ns_waitcnt lgkmcnt(0)')
    e(f'v_or_b32 v{TMP+4}, v{TMP+4}, v{TMP+5}\nv_or_b32 v{TMP+6}, v{TMP+6}, v{TMP+7}\nv_or_b32 v{TMP+4}, v{TMP+4}, v{TMP+6}\ns_nop 0')
    e(f'v_readfirstlane_b32 s{sSlow}, v{TMP+4}')
    e('s_nop 1')
    e(f's_cmp_eq_u32 s{sSlow}, 0\ns_cbranch_scc1 L_noslow')
    vm_saved = list(e.vm)
    e('s_waitcnt vmcnt(0)\ns_barrier')
    for x in (L_, S_):
        lab = f'L_sl{x}'
        vm = TMP + 12
        Ox = O[0]
        for i in range(64): e(f'v_accvgpr_write_b32 a{i}, 0')
        e(f'v_mov_b32 v{vm}, v{vNI}\nv_mov_b32 v{vl[x]}, 0')
        e(f's_mov_b32 s{sKoff}, 0\ns_mov_b32 s{sJt}, 0')
        e(f's_mov_b32 s{sCnt}, s{sNL if x == L_ else sNS}')
        e.label(lab)
        e('s_barrier')
        e(f's_mov_b32 m0, s{sWoff}\ns_nop 0')
        for i in strip(dma_tile(sKF, sKoff, None)): e(i)
        e(f's_add_u32 m0, s{sWoff}, 16384\ns_nop 0')
        for i in strip(dma_tile(sVF, sKoff, None)): e(i)
        e(f's_add_u32 s{sKoff}, s{sKoff}, 16384')
        e('s_waitcnt vmcnt(0)\ns_barrier')
        for f in range(16): e(f'ds_read_b128 {F[f]}, v{vL16} offset:{f*1024}')
        e('s_waitcnt lgkmcnt(0)')
        for kb in range(2):
            for s_ in range(8): e(mfma(S[0][kb], F[kb*8+s_], Q[x][s_], '0' if s_ == 0 else None))
        for f in range(16): e(f'ds_read_b128 {F[f]}, v{vL16} offset:{16384 + f*1024}')
        e('s_nop 7\ns_nop 7')
        for kb in range(2):
            for i in mask_burst(x, kb, S[0][kb]): e(i)
        allr = [S[0][kb][r] for kb in range(2) for r in range(16)]
        m = TMP
        e(f'v_max3_f32 v{m}, {allr[0]}, {allr[1]}, {allr[2]}')
        for k in range(3, 31, 2): e(f'v_max3_f32 v{m}, v{m}, {allr[k]}, {allr[k+1]}')
        e(f'v_max3_f32 v{m}, v{m}, {allr[31]}, v{vm}')
        e(f'v_mov_b32 v{m+1}, v{m}\ns_nop 1\nv_permlane32_swap_b32 v{m}, v{m+1}\ns_nop 1')
        e(f'v_max_f32 v{m}, v{m}, v{m+1}')
        e(f'v_sub_f32 v{m+1}, v{vm}, v{m}\nv_exp_f32 v{m+1}, v{m+1}\nv_mov_b32 v{vm}, v{m}')
        for rr in allr: e(f'v_sub_f32 {rr}, {rr}, v{m}')
        for rr in allr: e(f'v_exp_f32 {rr}, {rr}')
        e(f'v_mul_f32 v{vl[x]}, v{vl[x]}, v{m+1}')
        for rr in allr: e(f'v_add_f32 v{vl[x]}, v{vl[x]}, {rr}')
        for kb in range(2):
            for q in range(8): e(f'v_cvt_pk_bf16_f32 {P[0][2*kb + (q >> 2)][q & 3]}, {S[0][kb][2*q]}, {S[0][kb][2*q+1]}')
        for i in range(64):
            e(f'v_accvgpr_read_b32 v{m+2}, a{i}\nv_mul_f32 v{m+2}, v{m+2}, v{m+1}\nv_accvgpr_write_b32 a{i}, v{m+2}')
        e('s_waitcnt lgkmcnt(0)\ns_nop 1')
        for u in range(4):
            for t in range(4): e(mfma(Ox[t], F[u*4+t], P[0][u]))
        e(f's_add_u32 s{sJt}, s{sJt}, 64')
        e(f's_sub_u32 s{sCnt}, s{sCnt}, 1\ns_cmp_lg_u32 s{sCnt}, 0\ns_cbranch_scc1 {lab}')
        e('s_nop 7\ns_nop 7')
        epi(x, False, Ox)
    e('s_waitcnt vmcnt(0)\ns_barrier')
    FIN.ptrs(e)
    for g in FIN.pre():
        for x in g: e(x[0] if isinstance(x, tuple) else x)
    e('s_waitcnt vmcnt(0)')
    e.label('L_noslow')
    e.vm = vm_saved
    st('slowchk')
```

```python
from v5b import *
HS = [14, 14, 14, 15, 15] if ARG('uneven') else [15, 14, 14, 14, 15]
CS = [12, 13, 13, 13, 13] if not ARG('uneven') else [12, 13, 13, 13, 13]
NS = 4; SS = 40960; ACTB = 16384; PITCH = 1152; ND = 10
sW, sA, sO = S0, sACT, S3
fTt, fNt, fSp, fHst, fHn, fCst, fCn = 36, 37, 40, 45, 46, 47, 49
fSo = {(0, 0): '0', (0, 1): 's56', (1, 0): 's57', (1, 1): 's58', (2, 0): 's59', (2, 1): 's67'}
fM0A, fM0W, fDst, fDeltaA, fDeltaW, fT0, fCnt = 70, 71, 82, 83, 86, 87, 94
fStage, fPo, fTile, fPb = 28, 29, 30, 31
vDA, vDW, vPoll, vPo = 11, 12, 25, 26

def ptrs(e):
    e(f's_lshl_b32 s4, s{fTt}, 2\ns_add_u32 s4, s4, s{sWave}\ns_mul_i32 s4, s4, 544\ns_lshl_b32 s5, s{fHst}, 2\ns_add_u32 s4, s4, s5\ns_add_u32 s4, s4, 256\ns_lshl_b32 s4, s4, 10')
    e(f'v_add_u32 v{vDA}, s4, v{vL16}')
    e(f'v_lshrrev_b32 v{vT}, 3, v{vLane}\nv_mul_u32_u24 v{vDW}, {PITCH}, v{vT}')
    e(f'v_bfe_u32 v{vT}, v{vLane}, 4, 1\nv_bfe_u32 v{PFV}, v{vLane}, 2, 1\nv_xor_b32 v{vT}, v{vT}, v{PFV}')
    e(f'v_lshl_add_u32 v{vDW}, v{vT}, 6, v{vDW}\nv_and_b32 v{vT}, 3, v{vLane}\nv_lshl_add_u32 v{vDW}, v{vT}, 4, v{vDW}')
    e(f's_mul_i32 s4, s{fNt}, 384\ns_lshl_b32 s5, s{fHst}, 6\ns_lshl_b32 s6, s{sWave}, 4\ns_add_u32 s5, s5, s6\ns_mul_i32 s5, s5, {PITCH}\ns_add_u32 s4, s4, s5')
    e(f'v_add_u32 v{vDW}, s4, v{vDW}')
    e(f's_mov_b32 s{fDst}, 0')
    make_srd(e, sW, pWd, SZ['wd'])

def setup(e):
    e(f's_cmp_ge_u32 s{sIdx}, 15\ns_cselect_b32 s4, 1, 0\ns_mul_i32 s5, s4, 15\ns_sub_u32 s5, s{sIdx}, s5')
    e(f's_lshl_b32 s6, s{sXcd}, 1\ns_add_u32 s{fTt}, s6, s4')
    e(f's_mul_i32 s6, s5, 86\ns_lshr_b32 s{fSp}, s6, 8\ns_mul_i32 s6, s{fSp}, 3\ns_sub_u32 s{fNt}, s5, s6')
    hst = [sum(HS[:i]) for i in range(5)]; cst = [sum(CS[:i]) for i in range(5)]
    e(f's_mov_b32 s{fHst}, {hst[0]}\ns_mov_b32 s{fHn}, {HS[0]}\ns_mov_b32 s{fCst}, {cst[0]}\ns_mov_b32 s{fCn}, {CS[0]}')
    for i in range(1, 5):
        e(f's_cmp_eq_u32 s{fSp}, {i}\ns_cselect_b32 s{fHst}, {hst[i]}, s{fHst}\ns_cselect_b32 s{fHn}, {HS[i]}, s{fHn}\ns_cselect_b32 s{fCst}, {cst[i]}, s{fCst}\ns_cselect_b32 s{fCn}, {CS[i]}, s{fCn}')
    e(f's_add_u32 s4, s{fHst}, s{fHn}\ns_lshl_b32 s5, s4, 2\ns_add_u32 s5, s5, 256\ns_lshl_b32 s6, s{fCst}, 2\ns_sub_u32 s5, s6, s5\ns_lshl_b32 s{fDeltaA}, s5, 10')
    e(f's_sub_u32 s4, s{fCst}, s4\ns_mul_i32 s{fDeltaW}, s4, {64*PITCH}')
    for (nb2, j), r in fSo.items():
        if r != '0': e(f's_mov_b32 {r}, {nb2 * 128 + j * (8 * PITCH - 1024)}')
    e(f's_lshl_b32 s{fM0A}, s{sWave}, 12')
    e(f's_lshl_b32 s4, s{sWave}, 11\ns_add_u32 s{fM0W}, s4, {ACTB}')
    ptrs(e)
    e(f'v_and_b32 v{vPo}, 31, v{vLane}\nv_lshlrev_b32 v{vPo}, 2, v{vPo}')
    e(f's_lshr_b32 s4, s{fTt}, 1\ns_lshl_b32 s4, s4, 7\ns_add_u32 s{fPo}, s4, {FL_GU}')
    e(f'buffer_load_dword v{vPoll}, v{vPo}, {srd(SF)}, s{fPo} offen sc1')

def check_gu(e):
    flag_check(e, vPoll, vPo, f's{fPo}', 32)

_cnt = [0]
def dma_ops(tag=None):
    g = []
    g.append([f's_add_u32 m0, s{fDst}, s{fM0A}', f's_add_u32 s{fT0}, s{fDst}, s{fM0W}', (f'buffer_load_dwordx4 v{vDA}, {srd(sA)}, 0 offen sc1 lds', tag)])
    for i in range(1, 4):
        g.append([(f'buffer_load_dwordx4 v{vDA}, {srd(sA)}, 0 offen offset:{1024*i} sc1 lds', tag)])
    for nb2 in range(3):
        g.append([f's_add_u32 m0, s{fT0}, {nb2*8192}', 's_nop 0', (f'buffer_load_dwordx4 v{vDW}, {srd(sW)}, {fSo[nb2,0]} offen lds', tag)])
        g.append([(f'buffer_load_dwordx4 v{vDW}, {srd(sW)}, {fSo[nb2,1]} offen offset:1024 lds', tag)])
    g[-1] += [f'v_add_u32 v{vDA}, 4096, v{vDA}', f'v_add_u32 v{vDW}, {64*PITCH}, v{vDW}',
              f's_add_u32 s{fDst}, s{fDst}, {SS}', f's_cmp_ge_u32 s{fDst}, {NS*SS}', f's_cselect_b32 s{fDst}, 0, s{fDst}']
    return g
def pre():
    return dma_ops(('f', 0)) + dma_ops(('f', 1)) + (pre2x() if ARG('oldpre') else [])
def pre2x():
    return dma_ops(('f', 2)) + dma_ops(('f', 3))[:5]
def pre2():
    return [] if ARG('oldpre') else pre2x()

def phase_fin(e, st):
    def mfma(D, A, B, C=None): return f'v_mfma_f32_32x32x16_bf16 {D}, {A}, {B}, {C if C is not None else D}'
    def strip(l): return [x[0] if isinstance(x, tuple) else x for x in l]
    def pub_ctx(suffix):
        o = []
        for x, lab in ((0, 'L_pubcl' + suffix), (1, 'L_pubcs' + suffix)):
            ops = ([f's_sub_u32 s4, 15, s{sP}'] if x == 0 else [f's_mov_b32 s4, s{sP}']) + \
                  ['s_lshl_b32 s4, s4, 5', f's_add_u32 s4, s4, s{sH}', 's_lshl_b32 s4, s4, 2', f's_add_u32 s4, s4, {FL_CTX}']
            o += strip(publish_ops(ops, lab, vt=22))
        return o
    e(f's_cmp_lt_u32 s{sIdx}, 30\ns_cbranch_scc1 LF_go')
    e('s_waitcnt vmcnt(0)\ns_barrier')
    for x in pub_ctx('x'): e(x)
    e('s_branch L_end')
    e.label('LF_go')
    vA, vAb = 3, 4
    vW0b, vW1b = 8, 9
    vB = [13, 14, 15]; vBb = [16, 17, 18]
    FS = [([R('v', 160 + 20*b + 4*i, 4) for i in range(2)], [R('v', 168 + 20*b + 4*i, 4) for i in range(3)]) for b in range(4)]
    acc = {(j, i): R('v', 64 + 16 * (2*j + i), 16) for j in range(3) for i in range(2)}
    e(f's_and_b32 s4, s{sWave}, 1\ns_lshl_b32 s4, s4, 13\nv_add_u32 v{vAb}, s4, v{vL16}')
    lane_w_base(e, vW0b, vW1b, vT, 1, 512)
    e(f'v_add_u32 v{vW0b}, {ACTB}, v{vW0b}\nv_add_u32 v{vW1b}, {ACTB}, v{vW1b}')
    e(f's_lshr_b32 s4, s{sWave}, 1\ns_cmp_eq_u32 s4, 0\ns_cbranch_scc0 LF_wn1')
    e(f'v_mov_b32 v{vBb[0]}, v{vW0b}\nv_mov_b32 v{vBb[1]}, v{vW1b}\nv_add_u32 v{vBb[2]}, 8192, v{vW0b}\ns_branch LF_wn2')
    e.label('LF_wn1')
    e(f'v_add_u32 v{vBb[0]}, 8192, v{vW1b}\nv_add_u32 v{vBb[1]}, 16384, v{vW0b}\nv_add_u32 v{vBb[2]}, 16384, v{vW1b}')
    e.label('LF_wn2')
    p2 = pre2()
    for i in range(96):
        e(f'v_mov_b32 v{64+i}, 0')
        if i % 6 == 5 and p2: emit_list(e, p2.pop(0))
    for g in p2: emit_list(e, g)
    e(f's_mov_b32 s{fStage}, 0')
    e(f'v_mov_b32 v{vA}, v{vAb}')
    for j in range(3): e(f'v_mov_b32 v{vB[j]}, v{vBb[j]}')
    def reads(ks, FA, FW):
        r = []
        def wrd(j):
            for i2 in range(2):
                r.append(f'ds_read_b64_tr_b16 {FW[j][2*i2:2*i2+2]}, v{vB[j]} offset:{(4*ks + 2*i2)*512}')
        wrd(0)
        for i in range(2): r.append(f'ds_read_b128 {FA[i]}, v{vA} offset:{i*4096 + ks*1024}')
        wrd(1); wrd(2)
        return r
    def mfmas(FA, FW): return [mfma(acc[j, i], FW[j], FA[i]) for j in range(3) for i in range(2)]
    def inter(mf, fills):
        for k, m in enumerate(mf):
            e(m)
            for f in fills.get(k, []): e(f)
    e.wait_vm(('f', 0), barrier=True)
    st('fin_first')
    for x in reads(0, *FS[0]) + reads(1, *FS[1]): e(x)
    SW = []
    def body(h2, h1, vm, hook=None):
        dg = [strip(g) for g in dma_ops()]
        for ks in range(4):
            fills = {}
            rd = []
            if ks == 2 and vm is not None:
                e(f's_waitcnt vmcnt({vm}) lgkmcnt(0)\ns_barrier')
                for x in [f's_add_u32 s{fStage}, s{fStage}, {SS}', f's_cmp_ge_u32 s{fStage}, {NS*SS}', f's_cselect_b32 s{fStage}, 0, s{fStage}',
                          f'v_add_u32 v{vA}, s{fStage}, v{vAb}'] + [f'v_add_u32 v{vB[j]}, s{fStage}, v{vBb[j]}' for j in range(3)]: e(x)
            elif ks == 3:
                pass
            elif ks == 2:
                e('s_waitcnt lgkmcnt(0)')
            else:
                e('s_waitcnt lgkmcnt(8)')
            if ks < 2: rd = reads(ks + 2, *FS[ks + 2])
            elif vm is not None: rd = reads(ks - 2, *FS[ks - 2])
            for k_, x in enumerate(rd): fills.setdefault(k_ // 2, []).append(x)
            if ks == 2 and SW:
                fills.setdefault(0, []).extend(SW); SW.clear()
            part = []
            if h2 and ks == 0: part = dg[5:8]
            if h2 and ks == 1: part = dg[8:10]
            if h1 and ks == 2: part = dg[0:3]
            if h1 and ks == 3: part = dg[3:5]
            for k_, g in enumerate(part): fills.setdefault(min(1 + 2*k_, 5), []).extend(g)
            if ks == 3 and hook: fills.setdefault(0, []).extend(hook)
            inter(mfmas(*FS[ks]), fills)
    def body_switch(sw):
        SW.extend(sw)
        body(True, True, 2*ND)
    def loop(lab, hook=None):
        e('.p2align 6'); e.label(lab)
        body(True, True, 2*ND, hook)
        e(f's_sub_u32 s{fCnt}, s{fCnt}, 1\ns_cmp_lg_u32 s{fCnt}, 0\ns_cbranch_scc1 {lab}')
    e(f's_sub_u32 s{fCnt}, s{fHn}, 5\ns_sub_u32 s33, s{fCnt}, 3')
    hook = [f's_cmp_lg_u32 s{fCnt}, s33', 's_cbranch_scc1 LF_nohook'] + pub_ctx('') + ['LF_nohook:']
    loop('LF_loop1', hook)
    e(f's_lshl_b32 s4, s{fTt}, 7\ns_add_u32 s{fPo}, s4, {FL_CTX}')
    e(f'buffer_load_dword v{vPoll}, v{vPo}, {srd(SF)}, s{fPo} offen sc1')
    body(True, True, 2*ND)
    e(f's_waitcnt vmcnt({ND})')
    e.vm = []
    flag_check(e, vPoll, vPo, f's{fPo}', 32)
    sw = [f'v_add_u32 v{vDA}, s{fDeltaA}, v{vDA}', f'v_add_u32 v{vDW}, s{fDeltaW}, v{vDW}',
          f's_mov_b32 s{sW}, s{pWo}', f's_mov_b32 s{sW+1}, s{pWo+1}', f's_mov_b32 s{sW+2}, {SZ["wo"]:#x}']
    body_switch(sw)
    e(f's_sub_u32 s{fCnt}, s{fCn}, 1')
    loop('LF_loop2')
    body(True, False, 2*ND); body(False, False, ND); body(False, False, 0); body(False, False, None)
    st('fin_loop')
    units = [(j, i, m) for j in range(3) for i in range(2) for m in range(2)]
    sX, sOut = S1, S2
    srd_from(e, sO, pWs, SZ_PART, WS_PART)
    srd_from(e, sX, pX, SZ['x']); srd_from(e, sOut, pOut, SZ['out'])
    e(f's_mul_i32 s{fTile}, s{fTt}, 3\ns_add_u32 s{fTile}, s{fTile}, s{fNt}')
    e(f's_mul_i32 s{fPb}, s{fTile}, {12*5*4*1024}\ns_lshl_b32 s4, s{sWave}, 10\ns_add_u32 s{fPb}, s{fPb}, s4')
    vXo, vOo, vTt = 10, 11, 7
    e(f's_lshl_b32 s4, s{fTt}, 7\ns_and_b32 s5, s{sWave}, 1\ns_lshl_b32 s5, s5, 6\ns_add_u32 s4, s4, s5')
    e(f'v_and_b32 v{vTt}, 31, v{vLane}\nv_add_u32 v{vTt}, s4, v{vTt}\ns_movk_i32 s5, 1152\nv_mul_lo_u32 v{vTt}, v{vTt}, s5')
    e(f's_mul_i32 s4, s{fNt}, 384\ns_lshr_b32 s5, s{sWave}, 1\ns_mul_i32 s5, s5, 192\ns_add_u32 s4, s4, s5\nv_add_u32 v{vTt}, s4, v{vTt}')
    e(f'v_lshrrev_b32 v{vTt+1}, 5, v{vLane}\nv_lshl_add_u32 v{vXo}, v{vTt+1}, 3, v{vTt}\nv_lshl_add_u32 v{vOo}, v{vTt+1}, 4, v{vTt}')
    e('s_nop 7')
    n0 = st.n; names0 = list(st.names)
    for sp in range(5):
        st.n = n0; st.names = list(names0)
        if sp < 4: e(f's_cmp_lg_u32 s{fSp}, {sp}\ns_cbranch_scc1 LX_n{sp}')
        own = [u for u in range(12) if u % 5 == sp]
        nn = 0
        for u, (j, i, m) in enumerate(units):
            if u in own: continue
            p_ = 160 + 4 * (nn % 8); nn += 1
            for r in range(4): e(f'v_cvt_pk_bf16_f32 v{p_+r}, {acc[j,i][8*m+2*r]}, {acc[j,i][8*m+2*r+1]}')
            e(f's_add_u32 s4, s{fPb}, {(u*5 + sp)*4*1024}')
            e(f'buffer_store_dwordx4 v[{p_}:{p_+3}], v{vL16}, {srd(sO)}, s4 offen sc1')
        for k, u in enumerate(own):
            j, i, m = units[u]
            off = i*32*1152 + (32*j + 16*m)*2
            xr = (20, 24, 52)[k]
            e(f's_mov_b32 s4, {off}')
            e(f'buffer_load_dwordx2 v[{xr}:{xr+1}], v{vXo}, {srd(sX)}, s4 offen')
            e(f'buffer_load_dwordx2 v[{xr+2}:{xr+3}], v{vXo}, {srd(sX)}, s4 offen offset:16')
        st('x_issued')
        e('s_waitcnt vmcnt(0)\ns_barrier')
        st('x_drained')
        for xx in strip(publish_ops([f's_lshl_b32 s4, s{fTile}, 3', f's_add_u32 s4, s4, {sp}', 's_lshl_b32 s4, s4, 2', f's_add_u32 s4, s4, {FL_EX}'], f'L_pubex{sp}')): e(xx)
        e(f'v_min_u32 v{vPo-7}, 4, v{vLane}\nv_lshlrev_b32 v{vPo-7}, 2, v{vPo-7}')
        e(f's_lshl_b32 s{fPo}, s{fTile}, 5\ns_add_u32 s{fPo}, s{fPo}, {FL_EX}')
        e(f'buffer_load_dword v{vPo-8}, v{vPo-7}, {srd(SF)}, s{fPo} offen sc1\ns_waitcnt vmcnt(0)')
        flag_check(e, vPo - 8, vPo - 7, f's{fPo}', 5, lanemask=0x1f & ~(1 << sp))
        st('x_flags')
        srcs = [q for q in range(5) if q != sp]
        def preg(k, z): return 160 + 16*k + 4*z
        for k, u in enumerate(own):
            for z, q in enumerate(srcs):
                r0 = preg(k, z)
                e(f's_add_u32 s4, s{fPb}, {(u*5 + q)*4*1024}')
                e(f'buffer_load_dwordx4 v[{r0}:{r0+3}], v{vL16}, {srd(sO)}, s4 offen sc1')
        e('s_mov_b32 s5, 0xffff0000')
        for k, u in enumerate(own):
            j, i, m = units[u]
            e(f's_waitcnt vmcnt({4*(len(own) - 1 - k) + k})')
            a_ = acc[j, i][8*m:8*m+8]
            for r in range(8):
                src = (20, 24, 52)[k] + (r >> 1)
                e(f'v_and_b32 v{56+r}, s5, v{src}' if r & 1 else f'v_lshlrev_b32 v{56+r}, 16, v{src}')
            for r in range(8): e(f'v_add_f32 v{56+r}, v{56+r}, {a_[r]}')
            for z in range(4):
                for r in range(8):
                    src = preg(k, z) + (r >> 1)
                    e(f'v_and_b32 v{vTt}, s5, v{src}' if r & 1 else f'v_lshlrev_b32 v{vTt}, 16, v{src}')
                    e(f'v_add_f32 v{56+r}, v{56+r}, v{vTt}')
            o_ = 40 + 4*k
            for r in range(4): e(f'v_cvt_pk_bf16_f32 v{o_+r}, v{56+2*r}, v{56+2*r+1}')
            e(f's_nop 1\nv_permlane32_swap_b32 v{o_}, v{o_+2}\nv_permlane32_swap_b32 v{o_+1}, v{o_+3}')
            off = i*32*1152 + (32*j + 16*m)*2
            e(f's_mov_b32 s4, {off}')
            e(f'buffer_store_dwordx4 v[{o_}:{o_+3}], v{vOo}, {srd(sOut)}, s4 offen {"sc1" if ARG("outsc1") else ""}')
        e('s_branch L_end')
        if sp < 4: e.label(f'LX_n{sp}')
```

```python
from v5c import *
import v5fin

def gen_mega(name):
    e = Em()
    st = St(e)
    kernel_header(e, name)
    kv = phase_start_kv(e, st)
    gu = phase_gu(e, st, kv)
    phase_attn(e, st, gu)
    v5fin.phase_fin(e, st)
    e.label('L_end')
    if gen_common.STAMP:
        e('s_waitcnt vmcnt(0)')
        st('end')
        st.flush()
    if ARG('span'):
        e('s_waitcnt vmcnt(0)\ns_memrealtime s[4:5]\ns_waitcnt lgkmcnt(0)')
        e(f'v_mov_b32 v6, s92\nv_mov_b32 v7, s4\ns_add_u32 s4, s{pWs}, {gen_common.WS_STAMP:#x}\ns_addc_u32 s5, s{pWs+1}, 0\ns_mov_b32 s6, 0x100000\ns_mov_b32 s7, 0x20000')
        e(f's_lshl_b32 s32, s2, 2\ns_add_u32 s32, s32, s{sWave}\ns_lshl_b32 s32, s32, 3\nv_mov_b32 v5, s32\ns_mov_b64 exec, 1')
        e('buffer_store_dwordx2 v[6:7], v5, s[4:7], 0 offen')
    e.label('L_done')
    e('s_endpgm')
    e.label('L_codeend')
    return e, kernel_desc(name, 512, 102, 256), st

if __name__ == '__main__':
    gen_common.STAMP = 'stamp' in sys.argv
    HEADER = open('parallel_sum__compressed_kv_cla__glu_gated_geglu__prompt.s.ref').read().split('; Override launch')[0]
    KNAME = 'parallel_sum__compressed_kv_cla__glu_gated_geglu__prompt_kernel'
    e, desc, st = gen_mega(KNAME)
    out = HEADER
    out += '; @launch grid=(256,1,1) block=(256,1,1) lds=163840\n'
    out += '.amdgcn_target "amdgcn-amd-amdhsa--gfx950"\n.text\n' + e.text()
    out += '.section .rodata,"a"\n.p2align 6\n' + desc
    errs = check_hazards(e.lines, 'mega')
    print('hazards:', len(errs), 'lines', len(e.lines), 'stamps', st.names, file=sys.stderr)
    if ARG('nosc1ld'): out = out.replace(' sc1 lds', ' lds')
    open(sys.argv[1], 'w').write(out)
```

```python
from v5c import *
import v5fin

def gen_mega(name):
    e = Em()
    st = St(e)
    kernel_header(e, name)
    kv = phase_start_kv(e, st)
    if ARG('exit_kv'): e('s_branch L_end')
    gu = phase_gu(e, st, kv)
    if ARG('exit_gu'): e('s_branch L_end')
    phase_attn(e, st, gu)
    v5fin.phase_fin(e, st)
    e.label('L_end')
    if gen_common.STAMP:
        e('s_waitcnt vmcnt(0)')
        st('end')
        if ARG('dbgout'):
            e('s_cmp_lg_u32 s2, 0\ns_cbranch_scc1 L_nodbg\ns_cmp_lg_u32 s3, 0\ns_cbranch_scc1 L_nodbg')
            load_ptr(e, 4, 'dbg')
            e('s_waitcnt lgkmcnt(0)\ns_mov_b32 s6, 256\ns_mov_b32 s7, 0x20000')
            e(f'v_readlane_b32 s32, v{mega_common.vStamp}, 61')
            sel = [3, 4, 5, 6, 7, 8, 9, 14, 17, 18, 21]
            for k, n in enumerate(sel):
                e(f'v_readlane_b32 s33, v{mega_common.vStamp}, {32 + n}\ns_nop 3\ns_sub_u32 s33, s33, s32\nv_mov_b32 v3, s33\nv_mov_b32 v4, {4*(k+1)}')
                e('buffer_store_dword v3, v4, s[4:7], 0 offen')
            e.label('L_nodbg')
        st.flush()
    if ARG('span'):
        e('s_waitcnt vmcnt(0)\ns_memrealtime s[4:5]\ns_waitcnt lgkmcnt(0)')
        e(f'v_mov_b32 v6, s92\nv_mov_b32 v7, s4\ns_add_u32 s4, s{pWs}, {gen_common.WS_STAMP:#x}\ns_addc_u32 s5, s{pWs+1}, 0\ns_mov_b32 s6, 0x100000\ns_mov_b32 s7, 0x20000')
        e(f's_lshl_b32 s32, s2, 2\ns_add_u32 s32, s32, s{sWave}\ns_lshl_b32 s32, s32, 3\nv_mov_b32 v5, s32\ns_mov_b64 exec, 1')
        e('buffer_store_dwordx2 v[6:7], v5, s[4:7], 0 offen')
    e.label('L_done')
    e('s_endpgm')
    e.label('L_codeend')
    return e, kernel_desc(name, 512, 102, 256), st

if __name__ == '__main__':
    gen_common.STAMP = 'stamp' in sys.argv
    HEADER = open('parallel_sum__compressed_kv_cla__glu_gated_geglu__prompt.s.ref').read().split('; Override launch')[0]
    KNAME = 'parallel_sum__compressed_kv_cla__glu_gated_geglu__prompt_kernel'
    e, desc, st = gen_mega(KNAME)
    out = HEADER
    out += '; @launch grid=(256,1,1) block=(256,1,1) lds=163840\n'
    out += '.amdgcn_target "amdgcn-amd-amdhsa--gfx950"\n.text\n' + e.text()
    out += '.section .rodata,"a"\n.p2align 6\n' + desc
    errs = check_hazards(e.lines, 'mega')
    print('hazards:', len(errs), 'lines', len(e.lines), 'stamps', st.names, file=sys.stderr)
    if ARG('nosc1ld'): out = out.replace(' sc1 lds', ' lds')
    open(sys.argv[1], 'w').write(out)
```

```python
import sys
import mega_common
from mega_common import *
mega_common.vStamp = 31
vStamp = 31

GK1 = -2.302208198
GK2 = GK1 * 0.044715
QSCALE = 1.4426950408889634 / (128 ** 0.5)
NEG_INF = 0xff800000
ST = 'sc1'
PFS = 33; PFV = 23
vT = 20
ARG = lambda k: k in sys.argv

def run_sub(e, mfs, fills):
    for k, m in enumerate(mfs):
        e.mf(*m)
        for f in fills.get(k, []):
            if isinstance(f, tuple): e.op(f[0], f[1])
            else: e.op(f)
def put(fills, gap, items): fills.setdefault(gap, []).extend(items)
def emit_groups(e, groups):
    for g in groups:
        for f in g:
            if isinstance(f, tuple): e.op(f[0], f[1])
            else: e.op(f)
def emit_list(e, l): emit_groups(e, [l])
def spread(fills, groups, g0, g1):
    n = len(groups)
    for k, g in enumerate(groups): put(fills, g0 + (k * (g1 - g0 + 1)) // max(n, 1), g)
def pf_ops(ptr, key, k, n):
    per = SZ[key] // 1024
    lines = (per + 127) // 128
    L = (lines + n - 1) // n
    lo = k * L; cnt = min(L, lines - lo)
    return [f's_mov_b32 s4, s{ptr}', f's_mov_b32 s5, s{ptr+1}', f's_mov_b32 s6, {SZ[key]:#x}', 's_mov_b32 s7, 0x20000',
            f's_lshl_b32 s{PFS}, s2, 2', f's_add_u32 s{PFS}, s{PFS}, s{sWave}', f's_mul_i32 s{PFS}, s{PFS}, {per}', f's_add_u32 s{PFS}, s{PFS}, {lo*128}',
            f'v_lshlrev_b32 v{PFV}, 7, v{vLane}', f's_mov_b32 exec_lo, {hex((1 << min(cnt, 32)) - 1)}', f's_mov_b32 exec_hi, {hex((1 << max(cnt - 32, 0)) - 1)}',
            (f'buffer_load_dword v{PFV+1}, v{PFV}, s[4:7], s{PFS} offen', 'pf'), 's_mov_b64 exec, -1']
def publish_ops(soff_instrs, lab, vt=14):
    return [f's_cmp_lg_u32 s{sWave}, 0', f's_cbranch_scc1 {lab}', f'v_mov_b32 v{vt}, s{sTag}', f'v_mov_b32 v{vt+1}, 0'] + soff_instrs + \
           ['s_mov_b64 exec, 1', (f'buffer_store_dword v{vt}, v{vt+1}, {srd(SF)}, s4 offen sc1', 'OPT'), 's_mov_b64 exec, -1', f'{lab}:']

sCt, sTt = 34, 35
kM0A, kM0W, kSoW, kSoA = 38, 39, 44, 48
gG, gU, gA, gM = S3, S4, 56, 60
sCj, sFb, sMb = 36, 37, 40
gSoffA, gSoffW, gM0A, gM0G, gM0U, gM0M = 41, 42, 43, 44, 48, 66
sKVo = [67, 70, 71, 82, 83, 86, 87, 94]
sACT = 96
qW, sKF, sVF = S0, S1, S2
qSoffA, qSoffW, qM0A, qM0W = 45, 46, 47, 49
sH, sP, sNS, sNL = 50, 51, 52, 53
sCnt, sKd, sVd, sKoff, sVoff, sKmax, sWoff, sM0K, sM0V, sJt = 54, 55, 38, 39, 41, 42, 43, 44, 48, 66
sT0, sT1, sT2, sK2 = 34, 95, 100, 101
MKP = [60, 62, 4, 6]
G_NST = 18; GOFF = 16384; UOFF = 24576; MOFF = 32768; MUO = 1152; G_SS = 35072; G_PITCH = 9216
gDA, gDW, gDM, vKVo = 25, 26, 27, 28
def g_slot(t): return ((t + 2) % 4) * G_SS
def gu_dma(t):
    slot = g_slot(t); tg = ('gu', t)
    g = []
    g.append([f's_add_u32 m0, s{gM0A}, {slot}', 's_nop 0', (f'buffer_load_dwordx4 v{gDA}, {srd(gA)}, 0 offen sc1 lds', tg)])
    g.append([(f'buffer_load_dwordx4 v{gDA}, {srd(gA)}, 0 offen offset:1024 sc1 lds', tg)])
    g.append([(f'buffer_load_dwordx4 v{gDA}, {srd(gA)}, s{gSoffA} offen offset:2048 sc1 lds', tg)])
    g.append([(f'buffer_load_dwordx4 v{gDA}, {srd(gA)}, s{gSoffA} offen offset:3072 sc1 lds', tg), f'v_add_u32 v{gDA}, 2048, v{gDA}'])
    g.append([f's_add_u32 m0, s{gM0G}, {slot}', 's_nop 0', (f'buffer_load_dwordx4 v{gDW}, {srd(gG)}, 0 offen lds', tg)])
    g.append([(f'buffer_load_dwordx4 v{gDW}, {srd(gG)}, s{gSoffW} offen offset:1024 lds', tg)])
    g.append([f's_add_u32 m0, s{gM0U}, {slot}', 's_nop 0', (f'buffer_load_dwordx4 v{gDW}, {srd(gU)}, 0 offen lds', tg)])
    g.append([(f'buffer_load_dwordx4 v{gDW}, {srd(gU)}, s{gSoffW} offen offset:1024 lds', tg), f'v_add_u32 v{gDW}, {32*G_PITCH}, v{gDW}'])
    g.append([f's_add_u32 m0, s{gM0M}, {slot}', 's_nop 0', (f'buffer_load_dwordx4 v{gDM}, {srd(gM)}, 0 offen lds', tg), f'v_add_u32 v{gDM}, {32*G_PITCH}, v{gDM}'])
    return g
Q_SS = 24576; Q_ACTB = 16384; KB = 98304
qDA, qDW = 11, 12
def q_dma(t):
    slot = (t % 4) * Q_SS; tg = ('q', t)
    g = []
    g.append([f's_add_u32 m0, s{qM0A}, {slot}', 's_nop 0', (f'buffer_load_dwordx4 v{qDA}, {srd(gA)}, 0 offen sc1 lds', tg)])
    g.append([(f'buffer_load_dwordx4 v{qDA}, {srd(gA)}, 0 offen offset:1024 sc1 lds', tg)])
    g.append([(f'buffer_load_dwordx4 v{qDA}, {srd(gA)}, s{qSoffA} offen offset:2048 sc1 lds', tg)])
    g.append([(f'buffer_load_dwordx4 v{qDA}, {srd(gA)}, s{qSoffA} offen offset:3072 sc1 lds', tg), f'v_add_u32 v{qDA}, 2048, v{qDA}'])
    g.append([f's_add_u32 m0, s{qM0W}, {slot}', 's_nop 0', (f'buffer_load_dwordx4 v{qDW}, {srd(qW)}, 0 offen lds', tg)])
    g.append([(f'buffer_load_dwordx4 v{qDW}, {srd(qW)}, s{qSoffW} offen offset:1024 lds', tg), f'v_add_u32 v{qDW}, {32*8192}, v{qDW}'])
    return g

def phase_start_kv(e, st):
    e('s_cmp_ge_u32 s2, 256\ns_cbranch_scc1 L_done')
    if gen_common.STAMP: e('s_memrealtime s[94:95]')
    if ARG('span'): e('s_memrealtime s[92:93]')
    for key, p in (('ws', pWs), ('x', pX), ('ckv', pCkv), ('wuk', pWkv), ('wuv', pTmp), ('wg', pWg), ('wu', pWu), ('wq', pWq), ('wo', pWo),
                   ('wd', pWd), ('out', pOut), ('dbg', pDbg)):
        load_ptr(e, p, key)
    e(f'v_and_b32 v{vLane}, 63, v0\nv_lshrrev_b32 v3, 6, v0\nv_lshlrev_b32 v{vL16}, 4, v{vLane}')
    e(f's_and_b32 s{sXcd}, s2, 7\ns_lshr_b32 s{sIdx}, s2, 3')
    e(f'v_readfirstlane_b32 s{sWave}, v3')
    WB = 98304
    vAx = [3, 4, 5, 6]; vAc, vW0, vW1, vDAe, vDAo, vDW = 7, 8, 9, 10, 11, 12
    e(f's_and_b32 s4, s{sIdx}, 3\ns_lshl_b32 s5, s{sXcd}, 2\ns_add_u32 s{sCt}, s5, s4\ns_lshr_b32 s{sTt}, s{sIdx}, 2')
    e(f'v_lshrrev_b32 v{vT}, 3, v{vLane}\nv_lshlrev_b32 v{vDAe}, 10, v{vT}\nv_lshrrev_b32 v{vT}, 4, v{vLane}\nv_and_b32 v{vT+1}, 7, v{vLane}')
    e(f'v_xor_b32 v{vT}, v{vT}, v{vT+1}\nv_lshl_add_u32 v{vDAe}, v{vT}, 4, v{vDAe}')
    e(f's_lshl_b32 s4, s{sTt}, 18\ns_lshl_b32 s5, s{sWave}, 16\ns_add_u32 s4, s4, s5\nv_add_u32 v{vDAe}, s4, v{vDAe}')
    e(f'v_xor_b32 v{vDAo}, 64, v{vDAe}')
    for j_ in range(1, 8): e(f's_mov_b32 s{kSoA+j_}, {8192*j_ - 1024*(j_ & 3)}')
    for j_ in range(1, 4): e(f's_mov_b32 s{kSoW+j_}, {j_*(4*8192-1024)}')
    e('s_movk_i32 s33, 8192')
    lane_w_dma(e, vDW, vT, 33)
    e(f's_and_b32 s4, s{sCt}, 15\ns_lshl_b32 s4, s4, 9\ns_and_b32 s5, s{sWave}, 1\ns_lshl_b32 s5, s5, 8\ns_add_u32 s4, s4, s5')
    e(f's_lshr_b32 s5, s{sWave}, 1\ns_lshl_b32 s5, s5, 17\ns_add_u32 s4, s4, s5\nv_add_u32 v{vDW}, s4, v{vDW}')
    e(f's_lshl_b32 s{kM0A}, s{sWave}, 13')
    e(f's_and_b32 s4, s{sWave}, 1\ns_lshl_b32 s4, s4, 13\ns_lshr_b32 s5, s{sWave}, 1\ns_lshl_b32 s5, s5, 12')
    e(f's_add_u32 s{kM0W}, s4, s5\ns_add_u32 s{kM0W}, s{kM0W}, {WB}')
    e('s_waitcnt lgkmcnt(0)')
    if gen_common.STAMP: e(f'v_writelane_b32 v{vStamp}, s94, 61')
    st.real(62); st('start')
    sW, sA, sO = S0, S1, S2
    e(f's_mov_b32 s60, s{pWkv}\ns_mov_b32 s61, s{pWkv+1}')
    e(f's_cmp_lt_u32 s{sCt}, 16\ns_cselect_b32 s{pWkv}, s{pWkv}, s{pTmp}\ns_cselect_b32 s{pWkv+1}, s{pWkv+1}, s{pTmp+1}')
    srd_from(e, sW, pWkv, SZ['wuk']); srd_from(e, sA, pCkv, SZ['ckv'])
    def dmaA(p, h):
        tg = ('ka', p); g = []
        for jj in range(4):
            j_ = 4*h + jj
            ins = (f'buffer_load_dwordx4 v{vDAo if j_ & 1 else vDAe}, {srd(sA)}, {"s%d" % (kSoA + j_) if j_ else "0"} offen' + (f' offset:{1024*jj}' if jj else '') + ' lds', tg)
            g.append(([f's_add_u32 m0, s{kM0A}, {(p % 3)*32768 + 4096*h}', 's_nop 0'] if jj == 0 else []) + [ins])
        if h == 1: g[-1] += [f'v_add_u32 v{vDAe}, 128, v{vDAe}', f'v_add_u32 v{vDAo}, 128, v{vDAo}']
        return g
    def dmaW(t):
        tg = ('kw', t)
        g = [[f's_add_u32 m0, s{kM0W}, {(t % 4)*16384}', 's_nop 0', (f'buffer_load_dwordx4 v{vDW}, {srd(sW)}, 0 offen lds', tg)]]
        for j_ in range(1, 4):
            g.append([(f'buffer_load_dwordx4 v{vDW}, {srd(sW)}, s{kSoW+j_} offen offset:{1024*j_} lds', tg)])
        g[-1] += [f'v_add_u32 v{vDW}, {32*8192}, v{vDW}']
        return g
    sX, sXN = S3, S4
    srd_from(e, sX, pX, SZ['x'])
    e(f's_lshl_b32 s32, s2, 3\ns_lshl_b32 s33, s{sWave}, 1\ns_add_u32 s32, s32, s33')
    e(f'v_lshrrev_b32 v72, 5, v{vLane}\nv_add_u32 v72, s32, v72')
    e(f'v_and_b32 v73, 31, v{vLane}')
    e('s_movk_i32 s33, 1152\nv_mul_lo_u32 v74, v72, s33\nv_lshl_add_u32 v74, v73, 4, v74')
    D = 32
    e.vmem(f'buffer_load_dwordx4 v[{D}:{D+3}], v74, {srd(sX)}, 0 offen', 'ln')
    e.vmem(f'buffer_load_dwordx4 v[{D+4}:{D+7}], v74, {srd(sX)}, 0 offen offset:512', 'ln')
    e('s_mov_b32 exec_lo, 0xff\ns_mov_b32 exec_hi, 0xff')
    e.vmem(f'buffer_load_dwordx4 v[{D+8}:{D+11}], v74, {srd(sX)}, 0 offen offset:1024', 'ln')
    e('s_mov_b64 exec, -1')
    emit_groups(e, dmaW(0) + dmaA(0, 0) + dmaA(0, 1) + dmaW(1))
    if not ARG('nopf'):
        e('s_getpc_b64 s[4:5]')
        e('L_pcbase:')
        e(f's_lshl_b32 s6, s{sIdx}, 2\ns_add_u32 s6, s6, s{sWave}\ns_and_b32 s6, s6, 15\ns_lshl_b32 s6, s6, 13')
        e(f'v_lshlrev_b32 v{PFV}, 7, v{vLane}\nv_add_u32 v{PFV}, s6, v{PFV}')
        e(f'v_cmp_gt_u32 vcc, L_codeend - L_pcbase, v{PFV}\ns_nop 0\ns_and_saveexec_b64 s[6:7], vcc\ns_cbranch_execz L_nopf')
        e.vmem(f'global_load_dword v{PFV+1}, v{PFV}, s[4:5]', None, optional=True)
        e('L_nopf:')
        e('s_mov_b64 exec, -1')
    if ARG('bulk1'):
        for ptr, key in ((60, 'wuk'), (pTmp, 'wuv'), (pCkv, 'ckv')): emit_list(e, pf_ops(ptr, key, 0, 1))
    e(f's_add_u32 s4, s{pWs}, {WS_FLAG + FL_E:#x}\ns_addc_u32 s5, s{pWs+1}, 0')
    e(f's_load_dword s{sTag}, s[4:5], 0')
    srd_from(e, SF, pWs, 0x10000, WS_FLAG)
    srd_from(e, sXN, pWs, SZ_XN, WS_XN)
    late = dmaA(1, 0) + dmaA(1, 1) + dmaW(2) + dmaW(3) + dmaA(2, 0)
    e('v_lshrrev_b32 v75, 5, v72\nv_mul_u32_u24 v75, 36, v75\nv_lshrrev_b32 v76, 1, v73\nv_add_u32 v75, v75, v76\nv_lshlrev_b32 v75, 10, v75')
    e('v_and_b32 v76, 1, v73\nv_lshlrev_b32 v76, 9, v76\nv_add_u32 v75, v75, v76\nv_and_b32 v76, 31, v72\nv_lshl_add_u32 v80, v76, 4, v75')
    e(f's_mov_b32 s5, {WS_VF:#x}\ns_cmp_lt_u32 s{sCt}, 16\ns_cselect_b32 s4, {WS_KF:#x}, s5')
    e(f's_add_u32 s{sO}, s{pWs}, s4\ns_addc_u32 s{sO+1}, s{pWs+1}, 0\ns_mov_b32 s{sO+2}, {SZ_KF:#x}\ns_mov_b32 s{sO+3}, 0x20000')
    e(f'v_and_b32 v{vT}, 31, v{vLane}\nv_lshlrev_b32 v{vAx[0]}, 7, v{vT}\nv_bfe_u32 v{vT}, v{vLane}, 1, 3\nv_lshrrev_b32 v{vT+1}, 5, v{vLane}')
    e(f'v_xor_b32 v{vT}, v{vT}, v{vT+1}\nv_lshl_add_u32 v{vAx[0]}, v{vT}, 4, v{vAx[0]}')
    e(f's_and_b32 s4, s{sWave}, 1\ns_lshl_b32 s4, s4, 14\nv_add_u32 v{vAx[0]}, s4, v{vAx[0]}')
    for q in range(1, 4): e(f'v_xor_b32 v{vAx[q]}, {32*q}, v{vAx[0]}')
    lane_w_base(e, vW0, vW1, vT, 2, 1024)
    e(f's_lshr_b32 s4, s{sWave}, 1\ns_lshl_b32 s4, s4, 13\ns_add_u32 s4, s4, {WB}')
    e(f'v_add_u32 v{vW0}, s4, v{vW0}\nv_add_u32 v{vW1}, s4, v{vW1}')
    st('kv_dma')
    e.wait_vm('ln')
    F = 48
    e('s_mov_b32 s36, 0xffff0000')
    def unpack(i):
        for k in range(4):
            e(f'v_lshlrev_b32 v{F+8*i+2*k}, 16, v{D+4*i+k}\nv_and_b32 v{F+8*i+2*k+1}, s36, v{D+4*i+k}')
    unpack(0); unpack(1)
    for k in range(8): e(f'v_mov_b32 v{F+16+k}, 0')
    e('s_mov_b32 exec_lo, 0xff\ns_mov_b32 exec_hi, 0xff'); unpack(2); e('s_mov_b64 exec, -1')
    def allred(r, t):
        for dpp in ('quad_perm:[1,0,3,2]', 'quad_perm:[2,3,0,1]', 'row_half_mirror', 'row_mirror'):
            e(f's_nop 1\nv_add_f32_dpp v{r}, v{r}, v{r} {dpp} row_mask:0xf bank_mask:0xf')
        e(f'v_mov_b32 v{t}, v{r}\ns_nop 1\nv_permlane16_swap_b32 v{r}, v{t}\ns_nop 1\nv_add_f32 v{r}, v{r}, v{t}')
    mu, va, t0, t1, t2, t3, t4 = 84, 85, 86, 87, 88, 89, 90
    e(f'v_add_f32 v{mu}, v{F}, v{F+1}')
    for k in range(2, 24): e(f'v_add_f32 v{mu}, v{mu}, v{F+k}')
    allred(mu, t0)
    e(f's_mov_b32 s37, 0x3ae38e39\nv_mul_f32 v{mu}, s37, v{mu}')
    e(f'v_mov_b32 v{va}, 0')
    for k in range(16): e(f'v_sub_f32 v{t1}, v{F+k}, v{mu}\nv_fmac_f32 v{va}, v{t1}, v{t1}')
    e('s_mov_b32 exec_lo, 0xff\ns_mov_b32 exec_hi, 0xff')
    for k in range(16, 24): e(f'v_sub_f32 v{t1}, v{F+k}, v{mu}\nv_fmac_f32 v{va}, v{t1}, v{t1}')
    e('s_mov_b64 exec, -1')
    allred(va, t0)
    e(f'v_mul_f32 v{va}, s37, v{va}')
    e(f'v_cvt_pk_bf16_f32 v{t1}, v{mu}, v{va}\nv_lshlrev_b32 v{mu}, 16, v{t1}\nv_and_b32 v{va}, s36, v{t1}')
    e(f'v_mov_b32 v{t2}, 0x3727c5ac\nv_add_f32 v{va}, v{t2}, v{va}')
    e(f'v_cvt_pk_bf16_f32 v{t1}, v{va}, v{va}\nv_lshlrev_b32 v{va}, 16, v{t1}\nv_sqrt_f32 v{va}, v{va}\ns_nop 0')
    e(f'v_cvt_pk_bf16_f32 v{t1}, v{va}, v{va}\nv_lshlrev_b32 v{va}, 16, v{t1}\nv_rcp_f32 v{t2}, v{va}\ns_nop 0')
    for i in range(3):
        if i == 2: e('s_mov_b32 exec_lo, 0xff\ns_mov_b32 exec_hi, 0xff')
        for k in range(4):
            r0, r1 = F+8*i+2*k, F+8*i+2*k+1
            e(f'v_sub_f32 v{r0}, v{r0}, v{mu}\nv_sub_f32 v{r1}, v{r1}, v{mu}')
            e(f'v_cvt_pk_bf16_f32 v{t3}, v{r0}, v{r1}')
            e(f'v_lshlrev_b32 v{r0}, 16, v{t3}\nv_and_b32 v{r1}, s36, v{t3}')
            for r in (r0, r1):
                e(f'v_mul_f32 v{t4}, v{r}, v{t2}\nv_fma_f32 v{t1}, -v{t4}, v{va}, v{r}\nv_fma_f32 v{r}, v{t1}, v{t2}, v{t4}')
            e(f'v_cvt_pk_bf16_f32 v{D+4*i+k}, v{r0}, v{r1}')
        e(f's_mov_b32 s37, {i*16*1024}')
        e.vmem(f'buffer_store_dwordx4 v[{D+4*i}:{D+4*i+3}], v80, {srd(sXN)}, s37 offen {ST}', 'xn')
    e('s_mov_b64 exec, -1')
    e('s_waitcnt lgkmcnt(0)')
    e(f's_mul_i32 s{sTag}, s{sTag}, 0x9E3779B1\ns_add_u32 s{sTag}, s{sTag}, 0x7F4A7C15')
    e(f's_mov_b32 s{sSlow}, 0')
    vAt = 22
    srd_from(e, S3, pDbg, 256)
    e(f's_cmp_lg_u32 s{sWave}, 0\ns_cbranch_scc1 L_noat')
    e(f'v_mov_b32 v{vAt}, 1\nv_mov_b32 v{vT}, 0\ns_mov_b64 exec, 1')
    e.vmem(f'buffer_atomic_add v{vAt}, v{vT}, {srd(S3)}, 0 offen sc0 sc1', None, optional=True)
    e('s_mov_b64 exec, -1')
    e.label('L_noat')
    if ARG('bulk2'):
        for ptr, key in ((60, 'wuk'), (pTmp, 'wuv'), (pCkv, 'ckv')): emit_list(e, pf_ops(ptr, key, 0, 1))
    if ARG('bulkall'):
        for ptr, key in ((pCkv, 'ckv'), (60, 'wuk'), (pTmp, 'wuv'), (pWg, 'wg'), (pWu, 'wu'), (pWq, 'wq')): emit_list(e, pf_ops(ptr, key, 0, 1))
    if ARG('bulklate'):
        for ptr, key in ((pWg, 'wg'), (pWu, 'wu'), (pWq, 'wq')): emit_list(e, pf_ops(ptr, key, 0, 1))
    e(f's_and_b32 s4, s{sIdx}, 3\ns_lshl_b32 s5, s{sXcd}, 2\ns_add_u32 s{sCj}, s5, s4')
    e(f's_mul_i32 s4, s{sCj}, 144\ns_and_b32 s5, s{sCj}, 1\ns_lshl_b32 s6, s5, 4\ns_add_u32 s{sFb}, s4, s6')
    e(f's_xor_b32 s5, s5, 1\ns_lshl_b32 s5, s5, 7\ns_add_u32 s{sMb}, s4, s5')
    e('s_nop 4')
    srd_from(e, gG, pWg, SZ['wg']); srd_from(e, gU, pWu, SZ['wu']); srd_from(e, gA, pWs, SZ_XN, WS_XN)
    e(f's_bitcmp1_b32 s{sWave}, 0\ns_cselect_b32 s4, s{pWu}, s{pWg}\ns_cselect_b32 s5, s{pWu+1}, s{pWg+1}')
    srd_from(e, gM, 4, SZ['wg'])
    e(f's_lshl_b32 s4, s{sTt}, 3\ns_lshl_b32 s5, s{sWave}, 1\ns_add_u32 s4, s4, s5\ns_mul_i32 s4, s4, {36*1024}\nv_add_u32 v{gDA}, s4, v{vL16}')
    e(f's_mov_b32 s{gSoffA}, {36*1024 - 2048}\ns_movk_i32 s6, {G_PITCH}')
    lane_w_dma(e, gDW, vT, 6)
    e(f's_and_b32 s4, s{sWave}, 1\ns_lshl_b32 s4, s4, 5\nv_xor_b32 v{gDW}, s4, v{gDW}')
    e(f's_lshl_b32 s4, s{sFb}, 1\ns_mul_i32 s5, s{sWave}, {8*G_PITCH}\ns_add_u32 s4, s4, s5\nv_add_u32 v{gDW}, s4, v{gDW}')
    e(f's_mov_b32 s{gSoffW}, {4*G_PITCH - 1024}')
    e(f'v_bfe_u32 v{vT}, v{vLane}, 1, 2\nv_bfe_u32 v{vT+1}, v{vLane}, 3, 1\nv_lshl_add_u32 v{vT}, v{vT+1}, 3, v{vT}')
    e(f'v_bfe_u32 v{vT+1}, v{vLane}, 4, 1\nv_lshl_add_u32 v{vT}, v{vT+1}, 2, v{vT}')
    e(f'v_bfe_u32 v{vT+1}, v{vLane}, 5, 1\nv_lshl_add_u32 v{vT}, v{vT+1}, 4, v{vT}')
    e(f'v_mul_lo_u32 v{gDM}, v{vT}, s6\nv_and_b32 v{vT}, 1, v{vLane}\nv_lshl_add_u32 v{gDM}, v{vT}, 4, v{gDM}')
    e(f's_lshl_b32 s4, s{sMb}, 1\nv_add_u32 v{gDM}, s4, v{gDM}')
    e(f's_lshl_b32 s{gM0A}, s{sWave}, 12')
    gM0U_early = 40 + 0
    e(f's_lshl_b32 s4, s{sWave}, 11\ns_add_u32 s{gM0G}, s4, {GOFF}\ns_add_u32 s{gM0U}, s4, {UOFF}')
    e(f's_and_b32 s4, s{sWave}, 1\ns_mul_i32 s4, s4, {MUO}\ns_add_u32 s{gM0M}, s4, {MOFF}')
    st('ln')
    XA = [R('a', 32 + 4*i, 4) for i in range(4)]; XW = [R('a', 48 + 4*i, 4) for i in range(4)]
    YA = [R('a', 64 + 4*i, 4) for i in range(4)]; YW = [R('a', 80 + 4*i, 4) for i in range(4)]
    acc = [[None]*4 for _ in range(4)]
    for j in range(4):
        for i in range(4):
            n = 4*j + i
            acc[i][j] = R('v', 32 + 16*n, 16) if n < 14 else R('a', 16*(n - 14), 16)
    def reads(t, ks, FA, FW):
        so = (t % 4) * 16384
        r = []
        def wrd(j):
            base = vW0 if (j & 1) == 0 else vW1
            for i2 in range(2):
                r.append(f'ds_read_b64_tr_b16 {FW[j][2*i2:2*i2+2]}, v{base} offset:{so + (4*ks + i2)*1024 + (j >> 1)*512}')
        r.append(f'v_add_u32 v{vAc}, {((t // 2) % 3)*32768}, v{vAx[2*(t & 1) + ks]}')
        wrd(0)
        for i in range(4): r.append(f'ds_read_b128 {FA[i]}, v{vAc} offset:{i*4096}')
        wrd(1); wrd(2); wrd(3)
        return r
    def mfs(FA, FW, isK, first):
        return [((acc[i][j], FW[j], FA[i], '0' if first else None) if isK else (acc[i][j], FA[i], FW[j], '0' if first else None))
                for j in range(4) for i in range(4)]
    NST = 16
    e.wait_vm(('ka', 0), barrier=True)
    assert e.vm_count(('kw', 0)) is None
    st('kv_first')
    saved = (list(e.vm), list(e.lg))
    def place(fills, rd):
        put(fills, 0, rd[:3])
        for k, x in enumerate(rd[3:]): put(fills, 1 + k // 2, [x])
    g0 = gu_dma(0); g1 = gu_dma(1)
    def loop(isK):
        for x in reads(0, 0, XA, XW): e.op(x)
        for t in range(NST):
            fills = {}
            place(fills, reads(t, 1, YA, YW))
            if t == 0: spread(fills, late[:12], 1, 15)
            run_sub(e, mfs(XA, XW, isK, t == 0), fills)
            fills = {}
            if t + 1 < NST:
                need = [('kw', t + 1)] + ([('ka', (t + 1) // 2)] if (t + 1) % 2 == 0 else [])
                cnts = [(e.vm_count(x), x) for x in need if e.vm_count(x) is not None]
                e.wait_vm(min(cnts)[1] if cnts else ('kw', t + 1), also_lgkm0=True, barrier=True)
                place(fills, reads(t + 1, 0, XA, XW))
            else:
                e.lgkm0(); e('s_barrier')
            if t == 12: flag_check(e, 16, vL16, 0, 64, ndw=4)
            dm = []
            q, h = ((t + 5) // 2, 0) if t % 2 == 1 else ((t + 4) // 2, 1)
            if t == 0: dm += late[12:]
            if q < 8: dm += dmaA(q, h)
            if t + 4 < NST: dm += dmaW(t + 4)
            if t == 12: dm += g0[:4]
            if t == 13: dm += g0[4:]
            if t == 14: dm += g1
            if t == 15: dm += gu_dma(2)
            spread(fills, dm, (6 if t < 12 else 5) if t > 0 else 1, 15)
            if not ARG('nopf2') and not ARG('bulkall') and not ARG('bulklate') and not ARG('bulkmid') and 1 <= t < 12:
                k = t - 1
                if k < 10 and not ARG('nopfg'): put(fills, 14, pf_ops(pWg if k % 2 == 0 else pWu, 'wg', k // 2, 5))
                if t in (3, 7, 11) and not ARG('wqgu') and not ARG('nopfq'): put(fills, 15, pf_ops(pWq, 'wq', (t - 3) // 4, 3))
            if ARG('bulkmid') and t in (2, 5, 8):
                ptr, key = ((pWg, 'wg'), (pWu, 'wu'), (pWq, 'wq'))[(t - 2) // 3]
                put(fills, 15, pf_ops(ptr, key, 0, 1))
            if t == 3:
                assert 'xn' not in e.vm
                hook = f'L_ln{int(isK)}'
                put(fills, 2, [f's_cmp_lg_u32 s{sWave}, 0', f's_cbranch_scc1 {hook}',
                               f'v_mov_b32 v14, s{sTag}', f'v_mov_b32 v15, 0', f's_lshl_b32 s4, s2, 2', f'v_readfirstlane_b32 s5, v{vAt}', 's_mov_b64 exec, 1',
                               (f'buffer_store_dword v14, v15, {srd(SF)}, s4 offen sc1', 'OPT'),
                               f's_cmp_lg_u32 s5, 255', f's_cbranch_scc1 {hook}x', f's_mov_b32 s4, {FL_E}',
                               (f'buffer_store_dword v14, v15, {srd(SF)}, s4 offen sc1', 'OPT'), f'{hook}x:', 's_mov_b64 exec, -1', f'{hook}:'])
            if t == 9:
                put(fills, 0, [(f'buffer_load_dwordx4 v[16:19], v{vL16}, {srd(SF)}, 0 offen sc1', 'poll')])
            run_sub(e, mfs(YA, YW, isK, False), fills)
        e('s_nop 7')
        return
    e(f's_cmp_lt_u32 s{sCt}, 16\ns_cbranch_scc0 L_kvV')
    loop(True)
    e('s_branch L_kvE')
    e.label('L_kvV')
    e.vm, e.lg = list(saved[0]), list(saved[1])
    loop(False)
    e.label('L_kvE')
    st('kv_loop')
    return dict(acc=acc)
```

```python
from v5b import *
import v5fin as FIN

def phase_attn(e, st, gu):
    accGU = gu['acc']
    vA, vW0, vW1, vAb, vW0b, vW1b = 3, 4, 5, 7, 8, 9
    vDKV, vK, vV = 13, 16, 6
    vK1 = 29
    e(f's_lshl_b32 s{sWoff}, s{sWave}, 12\nv_add_u32 v{vAb}, s{sWoff}, v{vL16}')
    lane_w_base(e, vW0b, vW1b, vT, 2, 1024)
    e(f'v_add_u32 v{vW0b}, {Q_ACTB}, v{vW0b}\nv_add_u32 v{vW1b}, {Q_ACTB}, v{vW1b}')
    vHo = 10
    e(f'v_bfe_u32 v{vT}, v{vLane}, 4, 1\nv_lshlrev_b32 v{vHo}, 9, v{vT}\nv_and_b32 v{vT}, 15, v{vLane}\nv_lshl_add_u32 v{vHo}, v{vT}, 4, v{vHo}')
    e(f'v_lshrrev_b32 v{vT}, 5, v{vLane}\nv_lshl_add_u32 v{vHo}, v{vT}, 8, v{vHo}')
    def qaddr(t):
        so = (t % 4) * Q_SS
        return [f'v_add_u32 v{c}, {so}, v{b}' for c, b in ((vA, vAb), (vW0, vW0b), (vW1, vW1b))]
    for x in qaddr(0): e(x)
    QA = [[R('v', 32 + 64*x + 16*j, 16) for j in range(4)] for x in range(2)]
    XA = [R('v', 192 + 4*i, 4) for i in range(2)]; XW = [R('v', 200 + 4*i, 4) for i in range(4)]
    YA = [R('v', 216 + 4*i, 4) for i in range(2)]; YW = [R('v', 224 + 4*i, 4) for i in range(4)]
    def q_reads(ks, FA, FW):
        r = []
        def wrd(j):
            base = vW0 if (j & 1) == 0 else vW1
            for i2 in range(2):
                r.append(f'ds_read_b64_tr_b16 {FW[j][2*i2:2*i2+2]}, v{base} offset:{(4*ks + i2)*1024 + (j >> 1)*512}')
        wrd(0)
        for i in range(2): r.append(f'ds_read_b128 {FA[i]}, v{vA} offset:{i*2048 + ks*1024}')
        for j in range(1, 4): wrd(j)
        return r
    e.wait_vm(('q', 0), also_lgkm0=True, barrier=True)
    for x in q_reads(0, XA, XW): e.op(x)
    srd_from(e, sACT, pWs, SZ_ACT2, WS_ACT2)
    e(f's_lshl_b32 s4, s{sH}, 19\ns_lshl_b32 s5, s{sNL}, 14')
    for sr, off in ((sKF, WS_KF), (sVF, WS_VF)):
        e(f's_add_u32 s{sr}, s{pWs}, {off:#x}\ns_addc_u32 s{sr+1}, s{pWs+1}, 0\ns_add_u32 s{sr}, s{sr}, s4\ns_addc_u32 s{sr+1}, s{sr+1}, 0\ns_mov_b32 s{sr+2}, s5\ns_mov_b32 s{sr+3}, 0x20000')
    e(f's_mov_b32 s{sK2}, {f2u(GK2):#x}\nv_mov_b32 v{vK1}, {f2u(GK1):#x}')
    e(f's_lshl_b32 s4, s{sTt}, 3\ns_lshl_b32 s5, s{sWave}, 1\ns_add_u32 s4, s4, s5\ns_mul_i32 s4, s4, {544*1024}\ns_add_u32 s4, s4, {256*1024}')
    e(f's_lshl_b32 s{sFb}, s{sFb}, 6\ns_add_u32 s{sFb}, s{sFb}, s4\ns_lshl_b32 s{sMb}, s{sMb}, 6\ns_add_u32 s{sMb}, s{sMb}, s4')
    e(f'v_add_u32 v{vDKV}, s{sWoff}, v{vL16}')
    e(f's_mov_b32 s{sKoff}, 0\ns_mov_b32 s{sVoff}, 0')
    frs = []
    def tl(c, ip): return [accGU[c, 2*ip][r] for r in range(4)] + [accGU[c, 2*ip + 1][r] for r in range(4)]
    for ip in range(2): frs.append((tl(8, ip), tl(17, ip), sMb, ip*544*1024))
    for ip in range(2):
        for b in range(8): frs.append((tl(b, ip), tl(9 + b, ip), sFb, ip*544*1024 + b*1024))
    def gelu_frag(k):
        gs, us, sb, off = frs[k]
        o = []
        if k < 2:
            G = [str(x) for x in gs]; U = [str(x) for x in us]; E = [f'v{240+r}' for r in range(8)]; P = 248
        else:
            G = [f'v{160+r}' for r in range(8)]; U = [f'v{168+r}' for r in range(8)]; E = [f'v{176+r}' for r in range(8)]; P = 184 + 4 * (k % 2)
            for r in range(8): o.append(f'v_accvgpr_read_b32 {G[r]}, {gs[r]}')
        for r in range(8): o.append(f'v_mul_f32 {E[r]}, {G[r]}, {G[r]}')
        if k >= 2:
            for r in range(8): o.append(f'v_accvgpr_read_b32 {U[r]}, {us[r]}')
        for r in range(8): o.append(f'v_fma_f32 {E[r]}, {E[r]}, s{sK2}, v{vK1}')
        for r in range(8): o.append(f'v_mul_f32 {E[r]}, {G[r]}, {E[r]}')
        for r in range(8): o += [f'v_exp_f32 {E[r]}, {E[r]}', f'v_mul_f32 {G[r]}, {G[r]}, {U[r]}']
        for r in range(8): o.append(f'v_add_f32 {E[r]}, 1.0, {E[r]}')
        for r in range(8): o.append(f'v_rcp_f32 {E[r]}, {E[r]}')
        for r in range(8): o.append(f'v_mul_f32 {G[r]}, {G[r]}, {E[r]}')
        for r in range(4): o.append(f'v_cvt_pk_bf16_f32 v{P+r}, {G[2*r]}, {G[2*r+1]}')
        o += ['s_nop 1', f'v_permlane32_swap_b32 v{P}, v{P+2}', f'v_permlane32_swap_b32 v{P+1}, v{P+3}']
        o.append(f's_add_u32 s4, s{sb}, {off}')
        o.append((f'buffer_store_dwordx4 v[{P}:{P+3}], v{vHo}, {srd(sACT)}, s4 offen {ST}', 'hst'))
        return o
    def q_mf(FA, FW, first): return [(QA[x][j], FW[j], FA[1 - x], '0' if first else None) for j in range(4) for x in range(2)]
    def dma_tile(srd_, soff, tag):
        return [(f'buffer_load_dwordx4 v{vDKV}, {srd(srd_)}, s{soff} offen offset:{1024*i} sc1 lds', tag) for i in range(4)]
    def adv(soff): return [f's_add_u32 s{soff}, s{soff}, 16384']
    def tile_groups(srd_, soff, ldsoff, tag):
        d = dma_tile(srd_, soff, tag)
        return [[f's_add_u32 m0, s{sWoff}, {ldsoff}', 's_nop 0', d[0]], [d[1]], [d[2]], [d[3]] + adv(soff)]
    st('q_first')
    NST = 18
    vPoll, vPo = 30, 17
    for t in range(NST):
        gl = gelu_frag(t)
        if t == 0: gl = ['s_nop 7'] + gl
        cut = [k * len(gl) // 16 for k in range(17)]
        cut[15] = min(cut[15], len(gl) - 9)
        gsp = [gl[cut[k]:cut[k + 1]] for k in range(16)]
        fills = {}
        for k, x in enumerate(q_reads(1, YA, YW)): put(fills, k // 2, [x])
        for k in range(8): put(fills, k, gsp[k])
        if t == 10:
            put(fills, 7, [f'v_and_b32 v{vPo}, 7, v{vLane}', f'v_lshlrev_b32 v{vPo}, 2, v{vPo}', f'v_lshrrev_b32 v{vPoll}, 3, v{vLane}',
                           f'v_and_b32 v{vPoll}, 1, v{vPoll}', f'v_lshlrev_b32 v{vPoll}, 9, v{vPoll}', f'v_add_u32 v{vPo}, v{vPo}, v{vPoll}',
                           f's_lshr_b32 s5, s{sH}, 1', 's_lshl_b32 s5, s5, 5', f's_add_u32 s{sT2}, s5, {FL_KV}',
                           (f'buffer_load_dword v{vPoll}, v{vPo}, {srd(SF)}, s{sT2} offen sc1', 'poll')])
        run_sub(e, q_mf(XA, XW, t == 0), fills)
        fills = {}
        if t + 1 < NST:
            e.wait_vm(('q', t + 1), also_lgkm0=True, barrier=True)
            for x in qaddr(t + 1): e(x)
            for k, x in enumerate(q_reads(0, XA, XW)): put(fills, k // 2, [x])
        if t == 13: flag_check(e, vPoll, vPo, f's{sT2}', 16)
        dm = []
        if t + 3 < NST: dm += q_dma(t + 3)
        if t == 14: dm += tile_groups(sKF, sKoff, KB, ('K', 0))
        if t == 15: dm += tile_groups(sKF, sKoff, KB + 16384, ('K', 1)) + tile_groups(sKF, sKoff, KB + 32768, ('K', 2))
        if t == 16: dm += tile_groups(sKF, sKoff, KB + 49152, ('K', 3)) + tile_groups(sVF, sVoff, 0, ('V', 0))
        spread(fills, dm, 1, 7)
        if t == 4:
            assert 'kvst' not in e.vm
            put(fills, 0, publish_ops([f's_lshl_b32 s4, s{sCt}, 3', f's_add_u32 s4, s4, s{sTt}', 's_lshl_b32 s4, s4, 2', f's_add_u32 s4, s4, {FL_KV}'], 'L_pubkv'))
        for k in range(8): put(fills, k, gsp[8 + k])
        run_sub(e, q_mf(YA, YW, False), fills)
    st('q_loop')
    return attn_main(e, st, dict(QA=QA, tile_groups=tile_groups, dma_tile=dma_tile, adv=adv, vDKV=vDKV, vK=vK, vV=vV))

def attn_main(e, st, L):
    QA, tile_groups, dma_tile, adv = L['QA'], L['tile_groups'], L['dma_tile'], L['adv']
    vDKV, vK, vV = L['vDKV'], L['vK'], L['vV']
    vDelta = [17, 18]; vl = [19, 22]; vDl = 21; vNI = 29; vTm = 14
    Q = [[R('v', 32 + 32*x + 4*s, 4) for s in range(8)] for x in range(2)]
    S = [[R('v', 96 + 32*x + 16*kb, 16) for kb in range(2)] for x in range(2)]
    P = [[R('v', 160 + 16*x + 4*u, 4) for u in range(4)] for x in range(2)]
    NM = [R('v', 192 + 16*x, 16) for x in range(2)]
    O = [[R('a', 64*x + 16*t, 16) for t in range(4)] for x in range(2)]
    F = [R('a', 128 + 4*i, 4) for i in range(16)]
    TMP = 224
    L_, S_ = 0, 1
    e.wait_vm(('K', 0), also_lgkm0=True, barrier=True)
    emit_groups(e, tile_groups(sVF, sVoff, 16384, ('V', 1)))
    e(f'v_add_u32 v{vK}, {KB}, v{vL16}')
    for f in range(16): e.ds(f'ds_read_b128 {F[f]}, v{vK} offset:{f*1024}')
    e(f's_mov_b32 s{sT0}, {f2u(QSCALE):#x}')
    e('s_nop 7')
    def qconv(x):
        o = []
        for j in range(4):
            q = QA[x][j]
            for r in range(16): o.append(f'v_mul_f32 {q[r]}, s{sT0}, {q[r]}')
            for half in range(2):
                for r in range(4): o.append(f'v_cvt_pk_bf16_f32 {Q[x][2*j+half][r]}, {q[8*half+2*r]}, {q[8*half+2*r+1]}')
        return o
    qc1all = qconv(1)
    for i in qconv(0) + qc1all[:48]: e(i)
    e(f'v_and_b32 v{vTm}, 31, v{vLane}\nv_lshrrev_b32 v{vTm+1}, 5, v{vLane}\nv_lshlrev_b32 v{vTm+1}, 2, v{vTm+1}\nv_sub_u32 v{vTm}, v{vTm}, v{vTm+1}')
    e(f's_lshl_b32 s{sT0}, s{sWave}, 5')
    e(f's_sub_u32 s{sT1}, 15, s{sP}\ns_lshl_b32 s{sT1}, s{sT1}, 7\ns_add_u32 s{sT1}, s{sT1}, s{sT0}')
    e(f'v_add_u32 v{vDelta[L_]}, s{sT1}, v{vTm}')
    e(f's_lshl_b32 s{sT1}, s{sP}, 7\ns_add_u32 s{sT1}, s{sT1}, s{sT0}')
    e(f'v_add_u32 v{vDelta[S_]}, s{sT1}, v{vTm}')
    e(f'v_mov_b32 v{vNI}, {NEG_INF:#x}')
    MK = MKP
    def mask_burst(x, kb, Sx=None):
        Sx = Sx if Sx is not None else S[x][kb]
        o = [f's_add_u32 s{sT2}, s{sJt}, {32*kb}', f'v_subrev_u32 v{vDl}, s{sT2}, v{vDelta[x]}']
        def cmp(r):
            cr = (r & 3) + 8 * (r >> 2)
            return f'v_cmp_ge_i32 s[{MK[r%4]}:{MK[r%4]+1}], v{vDl}, {cr}'
        o += [cmp(0), cmp(1), cmp(2)]
        for r in range(16):
            o.append(f'v_cndmask_b32 {Sx[r]}, v{vNI}, {Sx[r]}, s[{MK[r%4]}:{MK[r%4]+1}]')
            if r + 3 < 16: o.append(cmp(r + 3))
        return o
    def tile0_soft(x):
        o = []
        if x == S_:
            o += [f's_cmp_lg_u32 s{sP}, 0', 's_cbranch_scc1 L_t0nomask']
            for kb in range(2): o += mask_burst(x, kb)
            o += ['L_t0nomask:']
        m = TMP + 2*x
        allr = [S[x][kb][r] for kb in range(2) for r in range(16)]
        o.append(f'v_max3_f32 v{m}, {allr[0]}, {allr[1]}, {allr[2]}')
        for k in range(3, 31, 2): o.append(f'v_max3_f32 v{m}, v{m}, {allr[k]}, {allr[k+1]}')
        o.append(f'v_max_f32 v{m}, v{m}, {allr[31]}')
        o += [f'v_mov_b32 v{m+1}, v{m}', 's_nop 1', f'v_permlane32_swap_b32 v{m}, v{m+1}', 's_nop 1', f'v_max_f32 v{m}, v{m}, v{m+1}', f'v_sub_f32 {NM[x][0]}, 0, v{m}']
        for r in range(1, 16): o.append(f'v_mov_b32 {NM[x][r]}, {NM[x][0]}')
        for rr in allr: o.append(f'v_add_f32 {rr}, {rr}, {NM[x][0]}')
        for r in range(16): o.append(f'v_exp_f32 {S[x][0][r]}, {S[x][0][r]}')
        for r in range(6): o.append(f'v_exp_f32 {S[x][1][r]}, {S[x][1][r]}')
        o.append(f'v_mov_b32 v{vl[x]}, {S[x][0][0]}')
        for r in range(1, 16): o.append(f'v_add_f32 v{vl[x]}, v{vl[x]}, {S[x][0][r]}')
        for r in range(5): o.append(f'v_add_f32 v{vl[x]}, v{vl[x]}, {S[x][1][r]}')
        for q in range(8): o.append(f'v_cvt_pk_bf16_f32 {P[x][q >> 2][q & 3]}, {S[x][0][2*q]}, {S[x][0][2*q+1]}')
        return o
    zer = [f'v_accvgpr_write_b32 a{i}, 0' for i in range(128)]
    e(f's_mov_b32 s{sJt}, 0\ns_mov_b32 s33, {f2u(QSCALE):#x}')
    qc1 = [x.replace(f's{sT0},', 's33,') for x in qc1all[48:]]
    k = 0
    for kb in range(2):
        for s_ in range(8):
            e.mf(S[L_][kb], F[kb*8+s_], Q[L_][s_], '0' if s_ == 0 else None)
            for z in qc1[3*k:3*k+3]: e(z)
            for z in zer[16+4*k:16+4*k+4]: e(z)
            k += 1
    tl = tile0_soft(L_)
    k = 0; pos = 0
    for kb in range(2):
        for s_ in range(8):
            e.mf(S[S_][kb], F[kb*8+s_], Q[S_][s_], '0' if s_ == 0 else None)
            if k < 2:
                for z in zer[8*k:8*k+8]: e(z)
            else:
                for i in tl[pos:pos+7]: e(i)
                pos += 7
            k += 1
    for i in tl[pos:]: e(i)
    ts = tile0_soft(S_)
    zr = zer[80:]
    for k in range(len(ts)):
        e(ts[k])
    for z in zr: e(z)
    st('tile0')
    e.wait_vm(('V', 1), also_lgkm0=True, barrier=True)
    assert 'hst' not in e.vm
    emit_list(e, publish_ops([f's_lshl_b32 s4, s{sTt}, 5', f's_add_u32 s4, s4, s{sCj}', 's_lshl_b32 s4, s4, 2', f's_add_u32 s4, s4, {FL_GU}'], 'L_pubgu'))
    emit_groups(e, tile_groups(sKF, sKoff, KB, ('K', 4)) + tile_groups(sVF, sVoff, 32768, ('V', 2)))
    r1, r2, r3 = sKd, sVd, sKmax
    vKb = 3
    sWK = sM0K
    e(f's_mov_b32 s{r1}, 16384\ns_mov_b32 s{r2}, 32768\ns_mov_b32 s{r3}, 49152\ns_mov_b32 s{sJt}, 64\ns_add_u32 s{sWK}, s{sWoff}, {KB}')
    e(f'v_add_u32 v{vKb}, {KB}, v{vL16}\nv_add_u32 v{vK}, {KB + 16384}, v{vL16}\nv_mov_b32 v{vV}, v{vL16}')
    def frag_read(f):
        ff = f % 32
        if ff < 8: return f'ds_read_b128 {F[ff % 16]}, v{vK} offset:{ff*1024}'
        if ff < 16: return f'ds_read_b128 {F[ff % 16]}, v{vV} offset:{(ff-8)*1024}'
        if ff < 24: return f'ds_read_b128 {F[ff % 16]}, v{vK} offset:{(8 + ff-16)*1024}'
        return f'ds_read_b128 {F[ff % 16]}, v{vV} offset:{(8 + ff-24)*1024}'
    def mfma(D, A, B, C=None): return f'v_mfma_f32_32x32x16_bf16 {D}, {A}, {B}, {C if C is not None else D}'
    LA = 12
    for f in range(LA): e(frag_read(f))
    def E(x, g_):
        g_ %= 32
        if 10 <= g_ <= 25: return S[x][0][g_-10]
        if g_ >= 26: return S[x][1][g_-26]
        return S[x][1][g_+6]
    def valu(x, g_, old, new):
        o = []
        if (old if g_ <= 9 else new): o.append(f'v_exp_f32 {E(x, g_)}, {E(x, g_)}')
        gp = (g_ - 1) % 32
        prev_old = (gp <= 9) or (g_ == 0)
        if (old if prev_old else new): o.append(f'v_add_f32 v{vl[x]}, v{vl[x]}, {E(x, gp)}')
        if g_ % 2 == 0:
            if g_ <= 14 and old:
                q = g_ // 2
                o.append(f'v_cvt_pk_bf16_f32 {P[x][2 + (q >> 2)][q & 3]}, {S[x][1][2*q]}, {S[x][1][2*q+1]}')
            if g_ >= 16 and new:
                q = (g_ - 16) // 2
                o.append(f'v_cvt_pk_bf16_f32 {P[x][q >> 2][q & 3]}, {S[x][0][2*q]}, {S[x][0][2*q+1]}')
        return o
    def strip(l): return [x[0] if isinstance(x, tuple) else x for x in l]
    def book(g_, dma=True, mk=False):
        o = []
        if g_ == 18: o += [f'v_add_u32 v{vK}, s{r2}, v{vKb}']
        if g_ == 22: o += [f'v_add_u32 v{vV}, s{r1}, v{vL16}']
        if dma:
            dk = strip(dma_tile(sKF, sKoff, None)); dv = strip(dma_tile(sVF, sVoff, None))
            if g_ == 20: o += [f's_add_u32 m0, s{r1}, s{sWK}', 's_nop 0', dk[0]]
            if g_ in (21, 22): o += [dk[g_-20]]
            if g_ == 23: o += [dk[3], f's_add_u32 m0, s{r3}, s{sWoff}'] + adv(sKoff)
            if g_ in (24, 25, 26): o += [dv[g_-24]]
            if g_ == 27: o += [dv[3]] + adv(sVoff)
        if g_ == 29: o += [f's_mov_b32 s{r1}, s{r2}', f's_mov_b32 s{r2}, s{r3}']
        if g_ == 30: o += [f's_add_u32 s{r3}, s{r3}, 16384', f's_and_b32 s{r3}, s{r3}, 0xffff']
        if g_ == 31 and mk: o += [f's_add_u32 s{sJt}, s{sJt}, 64']
        return o
    def step(qk, pv, masked, dma=True, extra=None):
        extra = list(extra or [])
        for f in range(32):
            isK = f < 8 or 16 <= f < 24
            act = qk if isK else pv
            if f == 20: e(f's_waitcnt vmcnt({8 if dma else 0})\ns_barrier')
            if f % 8 == 0: e('s_waitcnt lgkmcnt(4)')
            todo = {x: valu(x, f, x in pv, x in qk) for x in range(2) if (x in pv or x in qk)}
            pre = []
            if f in (10, 26):
                for x in masked: pre += mask_burst(x, 0 if f == 10 else 1)
            first = True
            for x in act:
                if isK:
                    kb = 0 if f < 8 else 1; s_ = f % 8
                    e(mfma(S[x][kb], F[f % 16], Q[x][s_], NM[x] if s_ == 0 else None))
                else:
                    u = ((f - 8) // 4) if f < 16 else 2 + (f - 24) // 4; t = f % 4
                    e(mfma(O[x][t], F[f % 16], P[x][u]))
                if first:
                    e(frag_read(f + LA))
                    for i in book(f, dma, bool(masked)): e(i)
                    for i in pre: e(i)
                    if extra and f not in (10, 26):
                        for i in extra.pop(0): e(i)
                    for y in list(todo):
                        if y not in act:
                            for i in todo.pop(y): e(i)
                    first = False
                for i in todo.pop(x): e(i)
    def loop(lab, cnt_sreg, body):
        e(f's_cmp_eq_u32 s{cnt_sreg}, 0\ns_cbranch_scc1 {lab}_end')
        e(f's_sub_u32 s{cnt_sreg}, 0, s{cnt_sreg}')
        e('.p2align 6')
        e.label(lab)
        body()
        e(f's_add_u32 s{cnt_sreg}, s{cnt_sreg}, 1\ns_cbranch_scc0 {lab}')
        e.label(lab + '_end')
    def ctx_base(x):
        if x == L_: e(f's_sub_u32 s{sT0}, 15, s{sP}\ns_lshl_b32 s{sT0}, s{sT0}, 2')
        else: e(f's_lshl_b32 s{sT0}, s{sP}, 2')
        e(f's_add_u32 s{sT0}, s{sT0}, s{sWave}\ns_mul_i32 s{sT0}, s{sT0}, 544\ns_lshl_b32 s{sT1}, s{sH}, 3\ns_add_u32 s{sT0}, s{sT0}, s{sT1}\ns_lshl_b32 s{sT0}, s{sT0}, 10')
    def epi(x, check, Ox=None, inter=None):
        Ox = Ox if Ox is not None else O[x]
        T0 = TMP; EB = 128
        inter = list(inter or [])
        e(f'v_mov_b32 v{T0}, v{vl[x]}\ns_nop 1\nv_permlane32_swap_b32 v{vl[x]}, v{T0}\ns_nop 1')
        e(f'v_add_f32 v{vl[x]}, v{vl[x]}, v{T0}')
        if check:
            e(f'v_mov_b32 v{T0+1}, 0x5d800000')
            e(f'v_cmp_nlt_f32 vcc, v{vl[x]}, v{T0+1}')
        e(f'v_rcp_f32 v{T0}, v{vl[x]}')
        e('s_nop 1')
        if check: e(f's_or_b32 s{sSlow}, s{sSlow}, vcc_lo\ns_or_b32 s{sSlow}, s{sSlow}, vcc_hi')
        ctx_base(x)
        per = (len(inter) + 3) // 4
        for t in range(4):
            emit_groups(e, inter[t*per:(t+1)*per])
            ee = EB + 16 * (t % 2)
            for r in range(16): e(f'v_accvgpr_read_b32 v{ee+r}, {Ox[t][r]}')
            for r in range(16): e(f'v_mul_f32 v{ee+r}, v{ee+r}, v{T0}')
            for r in range(8): e(f'v_cvt_pk_bf16_f32 v{ee+r}, v{ee+2*r}, v{ee+2*r+1}')
            e(f's_add_u32 s{sT1}, s{sT0}, {t*2048}')
            e.vmem(f'buffer_store_dwordx4 v[{ee}:{ee+3}], v{vL16}, {srd(sACT)}, s{sT1} offen {ST}', 'cst')
            e.vmem(f'buffer_store_dwordx4 v[{ee+4}:{ee+7}], v{vL16}, {srd(sACT)}, s{sT1} offen offset:1024 {ST}', 'cst')
    def pfx(ptr, key, k, n):
        if ARG('nopf2'): return
        for x in pf_ops(ptr, key, k, n): e(x[0] if isinstance(x, tuple) else x)
    e(f's_sub_u32 s{sCnt}, s{sNS}, 3\ns_max_i32 s{sCnt}, s{sCnt}, 0')
    loop('LAT_A', sCnt, lambda: step([L_, S_], [L_, S_], []))
    st('A')
    e(f's_sub_u32 s{sCnt}, s{sNS}, 1\ns_min_u32 s{sCnt}, s{sCnt}, 2')
    e(f's_sub_u32 s{sJt}, s{sNS}, s{sCnt}\ns_lshl_b32 s{sJt}, s{sJt}, 6')
    loop('LAT_B', sCnt, lambda: step([L_, S_], [L_, S_], [S_]))
    a2 = Asm(); FIN.setup(a2)
    fs = [FIN.retemp(x) for x in a2.lines]
    ex = []; cur = []
    for k, x in enumerate(fs):
        cur.append(x)
        nxt = fs[k + 1].split()[0] if k + 1 < len(fs) else ''
        if len(cur) >= 3 and not (nxt.startswith('s_cselect') or nxt.startswith('s_addc') or nxt.startswith('s_cbranch')):
            ex.append(cur); cur = []
    if cur: ex.append(cur)
    def pfl(ptr, key, k, n): return [x[0] if isinstance(x, tuple) else x for x in pf_ops(ptr, key, k, n)]
    if not ARG('nopf2'): ex = [pfl(pWd, 'wd', 0, 2)] + ex
    assert len(ex) <= 30, len(ex)
    step([L_], [L_, S_], [L_], extra=ex)
    e('s_nop 7\ns_nop 7')
    st('BC')
    pfx(pWd, 'wd', 1, 2)
    epi(S_, True)
    pfx(pWo, 'wo', 0, 1)
    st('epiS')
    e(f's_sub_u32 s{sCnt}, s{sNL}, s{sNS}\ns_sub_u32 s{sCnt}, s{sCnt}, 3\ns_max_i32 s{sCnt}, s{sCnt}, 0')
    loop('LAT_D', sCnt, lambda: step([L_], [L_], []))
    st('D')
    e(f's_cmp_eq_u32 s{sP}, 7\ns_cselect_b32 s{sCnt}, 1, 2')
    e(f's_sub_u32 s{sJt}, s{sNL}, s{sCnt}\ns_lshl_b32 s{sJt}, s{sJt}, 6')
    loop('LAT_E', sCnt, lambda: step([L_], [L_], [L_], dma=False))
    for f in range(12, 16): e(frag_read(f))
    e('s_waitcnt lgkmcnt(4)')
    vw = []
    for g_ in range(0, 16): vw += valu(L_, g_, True, False)
    per = (len(vw) + 7) // 8
    for k, f in enumerate(range(8, 16)):
        if k == 4: e('s_waitcnt lgkmcnt(4)')
        e(mfma(O[L_][f % 4], F[f % 16], P[L_][(f - 8) // 4]))
        e(frag_read(24 + k))
        for i in vw[k*per:(k+1)*per]: e(i)
    e('s_waitcnt lgkmcnt(0)')
    for f in range(24, 32): e(mfma(O[L_][f % 4], F[f % 16], P[L_][2 + (f - 24) // 4]))
    e('s_nop 7\ns_nop 7')
    FIN.check_gu(e)
    e('s_barrier')
    e.vm = []
    epi(L_, True, inter=FIN.pre())
    st('epiL')
    if ARG('forceslow'): e(f's_mov_b32 s{sSlow}, 1')
    e(f'v_mov_b32 v{TMP}, s{sSlow}\nv_lshlrev_b32 v{TMP+1}, 2, v0\nv_and_b32 v{TMP+1}, 0x300, v{TMP+1}\nv_lshrrev_b32 v{TMP+1}, 6, v{TMP+1}\nv_add_u32 v{TMP+1}, 163824, v{TMP+1}')
    e(f'ds_write_b32 v{TMP+1}, v{TMP}\ns_waitcnt lgkmcnt(0)\ns_barrier')
    e(f'v_mov_b32 v{TMP+1}, 163824\nds_read_b128 v[{TMP+4}:{TMP+7}], v{TMP+1}\ns_waitcnt lgkmcnt(0)')
    e(f'v_or_b32 v{TMP+4}, v{TMP+4}, v{TMP+5}\nv_or_b32 v{TMP+6}, v{TMP+6}, v{TMP+7}\nv_or_b32 v{TMP+4}, v{TMP+4}, v{TMP+6}\ns_nop 0')
    e(f'v_readfirstlane_b32 s{sSlow}, v{TMP+4}')
    e('s_nop 1')
    e(f's_cmp_eq_u32 s{sSlow}, 0\ns_cbranch_scc1 L_noslow')
    vm_saved = list(e.vm)
    e('s_waitcnt vmcnt(0)\ns_barrier')
    for x in (L_, S_):
        lab = f'L_sl{x}'
        vm = TMP + 12
        Ox = O[0]
        for i in range(64): e(f'v_accvgpr_write_b32 a{i}, 0')
        e(f'v_mov_b32 v{vm}, v{vNI}\nv_mov_b32 v{vl[x]}, 0')
        e(f's_mov_b32 s{sKoff}, 0\ns_mov_b32 s{sJt}, 0')
        e(f's_mov_b32 s{sCnt}, s{sNL if x == L_ else sNS}')
        e.label(lab)
        e('s_barrier')
        e(f's_mov_b32 m0, s{sWoff}\ns_nop 0')
        for i in strip(dma_tile(sKF, sKoff, None)): e(i)
        e(f's_add_u32 m0, s{sWoff}, 16384\ns_nop 0')
        for i in strip(dma_tile(sVF, sKoff, None)): e(i)
        e(f's_add_u32 s{sKoff}, s{sKoff}, 16384')
        e('s_waitcnt vmcnt(0)\ns_barrier')
        for f in range(16): e(f'ds_read_b128 {F[f]}, v{vL16} offset:{f*1024}')
        e('s_waitcnt lgkmcnt(0)')
        for kb in range(2):
            for s_ in range(8): e(mfma(S[0][kb], F[kb*8+s_], Q[x][s_], '0' if s_ == 0 else None))
        for f in range(16): e(f'ds_read_b128 {F[f]}, v{vL16} offset:{16384 + f*1024}')
        e('s_nop 7\ns_nop 7')
        for kb in range(2):
            for i in mask_burst(x, kb, S[0][kb]): e(i)
        allr = [S[0][kb][r] for kb in range(2) for r in range(16)]
        m = TMP
        e(f'v_max3_f32 v{m}, {allr[0]}, {allr[1]}, {allr[2]}')
        for k in range(3, 31, 2): e(f'v_max3_f32 v{m}, v{m}, {allr[k]}, {allr[k+1]}')
        e(f'v_max3_f32 v{m}, v{m}, {allr[31]}, v{vm}')
        e(f'v_mov_b32 v{m+1}, v{m}\ns_nop 1\nv_permlane32_swap_b32 v{m}, v{m+1}\ns_nop 1')
        e(f'v_max_f32 v{m}, v{m}, v{m+1}')
        e(f'v_sub_f32 v{m+1}, v{vm}, v{m}\nv_exp_f32 v{m+1}, v{m+1}\nv_mov_b32 v{vm}, v{m}')
        for rr in allr: e(f'v_sub_f32 {rr}, {rr}, v{m}')
        for rr in allr: e(f'v_exp_f32 {rr}, {rr}')
        e(f'v_mul_f32 v{vl[x]}, v{vl[x]}, v{m+1}')
        for rr in allr: e(f'v_add_f32 v{vl[x]}, v{vl[x]}, {rr}')
        for kb in range(2):
            for q in range(8): e(f'v_cvt_pk_bf16_f32 {P[0][2*kb + (q >> 2)][q & 3]}, {S[0][kb][2*q]}, {S[0][kb][2*q+1]}')
        for i in range(64):
            e(f'v_accvgpr_read_b32 v{m+2}, a{i}\nv_mul_f32 v{m+2}, v{m+2}, v{m+1}\nv_accvgpr_write_b32 a{i}, v{m+2}')
        e('s_waitcnt lgkmcnt(0)\ns_nop 1')
        for u in range(4):
            for t in range(4): e(mfma(Ox[t], F[u*4+t], P[0][u]))
        e(f's_add_u32 s{sJt}, s{sJt}, 64')
        e(f's_sub_u32 s{sCnt}, s{sCnt}, 1\ns_cmp_lg_u32 s{sCnt}, 0\ns_cbranch_scc1 {lab}')
        e('s_nop 7\ns_nop 7')
        epi(x, False, Ox)
    e('s_waitcnt vmcnt(0)\ns_barrier')
    FIN.ptrs(e)
    for g in FIN.pre():
        for x in g: e(x[0] if isinstance(x, tuple) else x)
    e('s_waitcnt vmcnt(0)')
    e.label('L_noslow')
    e.vm = vm_saved
    st('slowchk')
```

```python
from v5b import *
if ARG('oldmap'):
    HS = [15, 14, 14, 14, 15]; CS = [12, 13, 13, 13, 13]
elif ARG('map2'):
    HS = [14, 14, 14, 15, 15]; CS = [12, 12, 13, 13, 14]
else:
    HS = [13, 14, 14, 15, 16]; CS = [12, 12, 13, 14, 13]
assert sum(HS) == 72 and sum(CS) == 64
NS = 4; SS = 40960; ACTB = 16384; PITCH = 1152; ND = 10
sW, sA, sO = S0, sACT, S3
fTt, fNt, fSp, fHst, fHn, fCst, fCn = 36, 37, 40, 45, 46, 47, 49
fSo = {(0, 0): '0', (0, 1): 's56', (1, 0): 's57', (1, 1): 's58', (2, 0): 's59', (2, 1): 's67'}
fM0A, fM0W, fDst, fDeltaA, fDeltaW, fT0, fCnt = 70, 71, 82, 83, 86, 87, 94
fStage, fPo, fTile, fPb = 28, 29, 30, 31
vDA, vDW, vPoll, vPo = 11, 12, 25, 26

import re as _re
def retemp(x):
    return _re.sub(r'\bs6\b', 's101', _re.sub(r'\bs5\b', 's33', _re.sub(r'\bs4\b', 's32', x)))
def ptrs(e):
    e(f's_lshl_b32 s4, s{fTt}, 2\ns_add_u32 s4, s4, s{sWave}\ns_mul_i32 s4, s4, 544\ns_lshl_b32 s5, s{fHst}, 2\ns_add_u32 s4, s4, s5\ns_add_u32 s4, s4, 256\ns_lshl_b32 s4, s4, 10')
    e(f'v_add_u32 v{vDA}, s4, v{vL16}')
    e(f'v_lshrrev_b32 v{vT}, 3, v{vLane}\nv_mul_u32_u24 v{vDW}, {PITCH}, v{vT}')
    e(f'v_bfe_u32 v{vT}, v{vLane}, 4, 1\nv_bfe_u32 v{PFV}, v{vLane}, 2, 1\nv_xor_b32 v{vT}, v{vT}, v{PFV}')
    e(f'v_lshl_add_u32 v{vDW}, v{vT}, 6, v{vDW}\nv_and_b32 v{vT}, 3, v{vLane}\nv_lshl_add_u32 v{vDW}, v{vT}, 4, v{vDW}')
    e(f's_mul_i32 s4, s{fNt}, 384\ns_lshl_b32 s5, s{fHst}, 6\ns_lshl_b32 s6, s{sWave}, 4\ns_add_u32 s5, s5, s6\ns_mul_i32 s5, s5, {PITCH}\ns_add_u32 s4, s4, s5')
    e(f'v_add_u32 v{vDW}, s4, v{vDW}')
    e(f's_mov_b32 s{fDst}, 0')
    make_srd(e, sW, pWd, SZ['wd'])

def setup(e):
    if ARG('oldmap'):
        e(f's_cmp_ge_u32 s{sIdx}, 15\ns_cselect_b32 s4, 1, 0\ns_mul_i32 s5, s4, 15\ns_sub_u32 s5, s{sIdx}, s5')
        e(f's_lshl_b32 s6, s{sXcd}, 1\ns_add_u32 s{fTt}, s6, s4')
        e(f's_mul_i32 s6, s5, 86\ns_lshr_b32 s{fSp}, s6, 8\ns_mul_i32 s6, s{fSp}, 3\ns_sub_u32 s{fNt}, s5, s6')
    else:
        e(f's_sub_u32 s5, s{sIdx}, 2\ns_max_i32 s5, s5, 0')
        e(f's_mul_i32 s6, s5, 43\ns_lshr_b32 s{fSp}, s6, 8\ns_mul_i32 s6, s{fSp}, 6\ns_sub_u32 s5, s5, s6')
        e(f's_cmp_ge_u32 s5, 3\ns_cselect_b32 s4, 1, 0\ns_mul_i32 s6, s4, 3\ns_sub_u32 s{fNt}, s5, s6')
        e(f's_lshl_b32 s6, s{sXcd}, 1\ns_add_u32 s{fTt}, s6, s4')
    hst = [sum(HS[:i]) for i in range(5)]; cst = [sum(CS[:i]) for i in range(5)]
    e(f's_mov_b32 s{fHst}, {hst[0]}\ns_mov_b32 s{fHn}, {HS[0]}\ns_mov_b32 s{fCst}, {cst[0]}\ns_mov_b32 s{fCn}, {CS[0]}')
    for i in range(1, 5):
        e(f's_cmp_eq_u32 s{fSp}, {i}\ns_cselect_b32 s{fHst}, {hst[i]}, s{fHst}\ns_cselect_b32 s{fHn}, {HS[i]}, s{fHn}\ns_cselect_b32 s{fCst}, {cst[i]}, s{fCst}\ns_cselect_b32 s{fCn}, {CS[i]}, s{fCn}')
    e(f's_add_u32 s4, s{fHst}, s{fHn}\ns_lshl_b32 s5, s4, 2\ns_add_u32 s5, s5, 256\ns_lshl_b32 s6, s{fCst}, 2\ns_sub_u32 s5, s6, s5\ns_lshl_b32 s{fDeltaA}, s5, 10')
    e(f's_sub_u32 s4, s{fCst}, s4\ns_mul_i32 s{fDeltaW}, s4, {64*PITCH}')
    for (nb2, j), r in fSo.items():
        if r != '0': e(f's_mov_b32 {r}, {nb2 * 128 + j * (8 * PITCH - 1024)}')
    e(f's_lshl_b32 s{fM0A}, s{sWave}, 12')
    e(f's_lshl_b32 s4, s{sWave}, 11\ns_add_u32 s{fM0W}, s4, {ACTB}')
    ptrs(e)
    e(f'v_and_b32 v{vPo}, 31, v{vLane}\nv_lshlrev_b32 v{vPo}, 2, v{vPo}')
    e(f's_lshr_b32 s4, s{fTt}, 1\ns_lshl_b32 s4, s4, 7\ns_add_u32 s{fPo}, s4, {FL_GU}')
    e(f'buffer_load_dword v{vPoll}, v{vPo}, {srd(SF)}, s{fPo} offen sc1')

def check_gu(e):
    flag_check(e, vPoll, vPo, f's{fPo}', 32)

_cnt = [0]
def dma_ops(tag=None):
    g = []
    g.append([f's_add_u32 m0, s{fDst}, s{fM0A}', f's_add_u32 s{fT0}, s{fDst}, s{fM0W}', (f'buffer_load_dwordx4 v{vDA}, {srd(sA)}, 0 offen sc1 lds', tag)])
    for i in range(1, 4):
        g.append([(f'buffer_load_dwordx4 v{vDA}, {srd(sA)}, 0 offen offset:{1024*i} sc1 lds', tag)])
    for nb2 in range(3):
        g.append([f's_add_u32 m0, s{fT0}, {nb2*8192}', 's_nop 0', (f'buffer_load_dwordx4 v{vDW}, {srd(sW)}, {fSo[nb2,0]} offen lds', tag)])
        g.append([(f'buffer_load_dwordx4 v{vDW}, {srd(sW)}, {fSo[nb2,1]} offen offset:1024 lds', tag)])
    g[-1] += [f'v_add_u32 v{vDA}, 4096, v{vDA}', f'v_add_u32 v{vDW}, {64*PITCH}, v{vDW}',
              f's_add_u32 s{fDst}, s{fDst}, {SS}', f's_cmp_ge_u32 s{fDst}, {NS*SS}', f's_cselect_b32 s{fDst}, 0, s{fDst}']
    return g
def pre():
    return dma_ops(('f', 0)) + dma_ops(('f', 1)) + (pre2x() if ARG('oldpre') else [])
def pre2x():
    return dma_ops(('f', 2)) + dma_ops(('f', 3))[:5]
def pre2():
    return [] if ARG('oldpre') else pre2x()

def phase_fin(e, st):
    def mfma(D, A, B, C=None): return f'v_mfma_f32_32x32x16_bf16 {D}, {A}, {B}, {C if C is not None else D}'
    def strip(l): return [x[0] if isinstance(x, tuple) else x for x in l]
    def pub_ctx(suffix):
        o = []
        for x, lab in ((0, 'L_pubcl' + suffix), (1, 'L_pubcs' + suffix)):
            ops = ([f's_sub_u32 s4, 15, s{sP}'] if x == 0 else [f's_mov_b32 s4, s{sP}']) + \
                  ['s_lshl_b32 s4, s4, 5', f's_add_u32 s4, s4, s{sH}', 's_lshl_b32 s4, s4, 2', f's_add_u32 s4, s4, {FL_CTX}']
            o += strip(publish_ops(ops, lab, vt=22))
        return o
    e((f's_cmp_lt_u32 s{sIdx}, 30' if ARG('oldmap') else f's_cmp_ge_u32 s{sIdx}, 2') + '\ns_cbranch_scc1 LF_go')
    e('s_waitcnt vmcnt(0)\ns_barrier')
    for x in pub_ctx('x'): e(x)
    e('s_branch L_end')
    e.label('LF_go')
    vA, vAb = 3, 4
    vW0b, vW1b = 8, 9
    vB = [13, 14, 15]; vBb = [16, 17, 18]
    FS = [([R('v', 160 + 20*b + 4*i, 4) for i in range(2)], [R('v', 168 + 20*b + 4*i, 4) for i in range(3)]) for b in range(4)]
    acc = {(j, i): R('v', 64 + 16 * (2*j + i), 16) for j in range(3) for i in range(2)}
    e(f's_and_b32 s4, s{sWave}, 1\ns_lshl_b32 s4, s4, 13\nv_add_u32 v{vAb}, s4, v{vL16}')
    lane_w_base(e, vW0b, vW1b, vT, 1, 512)
    e(f'v_add_u32 v{vW0b}, {ACTB}, v{vW0b}\nv_add_u32 v{vW1b}, {ACTB}, v{vW1b}')
    e(f's_lshr_b32 s4, s{sWave}, 1\ns_cmp_eq_u32 s4, 0\ns_cbranch_scc0 LF_wn1')
    e(f'v_mov_b32 v{vBb[0]}, v{vW0b}\nv_mov_b32 v{vBb[1]}, v{vW1b}\nv_add_u32 v{vBb[2]}, 8192, v{vW0b}\ns_branch LF_wn2')
    e.label('LF_wn1')
    e(f'v_add_u32 v{vBb[0]}, 8192, v{vW1b}\nv_add_u32 v{vBb[1]}, 16384, v{vW0b}\nv_add_u32 v{vBb[2]}, 16384, v{vW1b}')
    e.label('LF_wn2')
    p2 = pre2()
    for i in range(96):
        e(f'v_mov_b32 v{64+i}, 0')
        if i % 6 == 5 and p2: emit_list(e, p2.pop(0))
    for g in p2: emit_list(e, g)
    e(f's_mov_b32 s{fStage}, 0')
    e(f'v_mov_b32 v{vA}, v{vAb}')
    for j in range(3): e(f'v_mov_b32 v{vB[j]}, v{vBb[j]}')
    def reads(ks, FA, FW):
        r = []
        def wrd(j):
            for i2 in range(2):
                r.append(f'ds_read_b64_tr_b16 {FW[j][2*i2:2*i2+2]}, v{vB[j]} offset:{(4*ks + 2*i2)*512}')
        wrd(0)
        for i in range(2): r.append(f'ds_read_b128 {FA[i]}, v{vA} offset:{i*4096 + ks*1024}')
        wrd(1); wrd(2)
        return r
    def mfmas(FA, FW): return [mfma(acc[j, i], FW[j], FA[i]) for j in range(3) for i in range(2)]
    def inter(mf, fills):
        for k, m in enumerate(mf):
            e(m)
            for f in fills.get(k, []): e(f)
    e.wait_vm(('f', 0), barrier=True)
    st('fin_first')
    for x in reads(0, *FS[0]) + reads(1, *FS[1]): e(x)
    SW = []
    def body(h2, h1, vm, hook=None):
        dg = [strip(g) for g in dma_ops()]
        for ks in range(4):
            fills = {}
            rd = []
            if ks == 2 and vm is not None:
                e(f's_waitcnt vmcnt({vm}) lgkmcnt(0)\ns_barrier')
                for x in [f's_add_u32 s{fStage}, s{fStage}, {SS}', f's_cmp_ge_u32 s{fStage}, {NS*SS}', f's_cselect_b32 s{fStage}, 0, s{fStage}',
                          f'v_add_u32 v{vA}, s{fStage}, v{vAb}'] + [f'v_add_u32 v{vB[j]}, s{fStage}, v{vBb[j]}' for j in range(3)]: e(x)
            elif ks == 3:
                pass
            elif ks == 2:
                e('s_waitcnt lgkmcnt(0)')
            else:
                e('s_waitcnt lgkmcnt(8)')
            if ks < 2: rd = reads(ks + 2, *FS[ks + 2])
            elif vm is not None: rd = reads(ks - 2, *FS[ks - 2])
            for k_, x in enumerate(rd): fills.setdefault(k_ // 2, []).append(x)
            if ks == 2 and SW:
                fills.setdefault(0, []).extend(SW); SW.clear()
            part = []
            if h2 and ks == 0: part = dg[5:8]
            if h2 and ks == 1: part = dg[8:10]
            if h1 and ks == 2: part = dg[0:3]
            if h1 and ks == 3: part = dg[3:5]
            for k_, g in enumerate(part): fills.setdefault(min(1 + 2*k_, 5), []).extend(g)
            if ks == 3 and hook: fills.setdefault(0, []).extend(hook)
            inter(mfmas(*FS[ks]), fills)
    def body_switch(sw):
        SW.extend(sw)
        body(True, True, 2*ND)
    def loop(lab, hook=None):
        e('.p2align 6'); e.label(lab)
        body(True, True, 2*ND, hook)
        e(f's_sub_u32 s{fCnt}, s{fCnt}, 1\ns_cmp_lg_u32 s{fCnt}, 0\ns_cbranch_scc1 {lab}')
    e(f's_sub_u32 s{fCnt}, s{fHn}, 5\ns_sub_u32 s33, s{fCnt}, 3')
    hook = [f's_cmp_lg_u32 s{fCnt}, s33', 's_cbranch_scc1 LF_nohook'] + pub_ctx('') + ['LF_nohook:']
    loop('LF_loop1', hook)
    e(f's_lshl_b32 s4, s{fTt}, 7\ns_add_u32 s{fPo}, s4, {FL_CTX}')
    e(f'buffer_load_dword v{vPoll}, v{vPo}, {srd(SF)}, s{fPo} offen sc1')
    body(True, True, 2*ND)
    e(f's_waitcnt vmcnt({ND})')
    e.vm = []
    flag_check(e, vPoll, vPo, f's{fPo}', 32)
    sw = [f'v_add_u32 v{vDA}, s{fDeltaA}, v{vDA}', f'v_add_u32 v{vDW}, s{fDeltaW}, v{vDW}',
          f's_mov_b32 s{sW}, s{pWo}', f's_mov_b32 s{sW+1}, s{pWo+1}', f's_mov_b32 s{sW+2}, {SZ["wo"]:#x}']
    body_switch(sw)
    e(f's_sub_u32 s{fCnt}, s{fCn}, 1')
    loop('LF_loop2')
    body(True, False, 2*ND); body(False, False, ND); body(False, False, 0); body(False, False, None)
    st('fin_loop')
    units = [(j, i, m) for j in range(3) for i in range(2) for m in range(2)]
    sX, sOut = S1, S2
    srd_from(e, sO, pWs, SZ_PART, WS_PART)
    srd_from(e, sX, pX, SZ['x']); srd_from(e, sOut, pOut, SZ['out'])
    e(f's_mul_i32 s{fTile}, s{fTt}, 3\ns_add_u32 s{fTile}, s{fTile}, s{fNt}')
    e(f's_mul_i32 s{fPb}, s{fTile}, {12*5*4*1024}\ns_lshl_b32 s4, s{sWave}, 10\ns_add_u32 s{fPb}, s{fPb}, s4')
    vXo, vOo, vTt = 10, 11, 7
    e(f's_lshl_b32 s4, s{fTt}, 7\ns_and_b32 s5, s{sWave}, 1\ns_lshl_b32 s5, s5, 6\ns_add_u32 s4, s4, s5')
    e(f'v_and_b32 v{vTt}, 31, v{vLane}\nv_add_u32 v{vTt}, s4, v{vTt}\ns_movk_i32 s5, 1152\nv_mul_lo_u32 v{vTt}, v{vTt}, s5')
    e(f's_mul_i32 s4, s{fNt}, 384\ns_lshr_b32 s5, s{sWave}, 1\ns_mul_i32 s5, s5, 192\ns_add_u32 s4, s4, s5\nv_add_u32 v{vTt}, s4, v{vTt}')
    e(f'v_lshrrev_b32 v{vTt+1}, 5, v{vLane}\nv_lshl_add_u32 v{vXo}, v{vTt+1}, 3, v{vTt}\nv_lshl_add_u32 v{vOo}, v{vTt+1}, 4, v{vTt}')
    e('s_nop 7')
    n0 = st.n; names0 = list(st.names)
    for sp in range(5):
        st.n = n0; st.names = list(names0)
        if sp < 4: e(f's_cmp_lg_u32 s{fSp}, {sp}\ns_cbranch_scc1 LX_n{sp}')
        own = [u for u in range(12) if u % 5 == sp]
        nn = 0
        for u, (j, i, m) in enumerate(units):
            if u in own: continue
            p_ = 160 + 4 * (nn % 8); nn += 1
            for r in range(4): e(f'v_cvt_pk_bf16_f32 v{p_+r}, {acc[j,i][8*m+2*r]}, {acc[j,i][8*m+2*r+1]}')
            e(f's_add_u32 s4, s{fPb}, {(u*5 + sp)*4*1024}')
            e(f'buffer_store_dwordx4 v[{p_}:{p_+3}], v{vL16}, {srd(sO)}, s4 offen sc1')
        for k, u in enumerate(own):
            j, i, m = units[u]
            off = i*32*1152 + (32*j + 16*m)*2
            xr = (20, 24, 52)[k]
            e(f's_mov_b32 s4, {off}')
            e(f'buffer_load_dwordx2 v[{xr}:{xr+1}], v{vXo}, {srd(sX)}, s4 offen')
            e(f'buffer_load_dwordx2 v[{xr+2}:{xr+3}], v{vXo}, {srd(sX)}, s4 offen offset:16')
        st('x_issued')
        e('s_waitcnt vmcnt(0)')
        st('x_drained')
        e(f's_lshl_b32 s4, s{fTile}, 5\ns_add_u32 s4, s4, s{sWave}\ns_lshl_b32 s{fPo}, s4, 2\ns_add_u32 s{fPo}, s{fPo}, {FL_EX}')
        e(f'v_mov_b32 v12, s{sTag}\nv_mov_b32 v13, {sp*16}\ns_mov_b64 exec, 1')
        e(f'buffer_store_dword v12, v13, {srd(SF)}, s{fPo} offen sc1')
        e('s_mov_b64 exec, -1')
        e(f'v_min_u32 v{vPo-7}, 4, v{vLane}\nv_lshlrev_b32 v{vPo-7}, 4, v{vPo-7}')
        e(f'buffer_load_dword v{vPo-8}, v{vPo-7}, {srd(SF)}, s{fPo} offen sc1\ns_waitcnt vmcnt(0)')
        flag_check(e, vPo - 8, vPo - 7, f's{fPo}', 5, lanemask=0x1f & ~(1 << sp))
        st('x_flags')
        srcs = [q for q in range(5) if q != sp]
        def preg(k, z): return 160 + 16*k + 4*z
        for k, u in enumerate(own):
            for z, q in enumerate(srcs):
                r0 = preg(k, z)
                e(f's_add_u32 s4, s{fPb}, {(u*5 + q)*4*1024}')
                e(f'buffer_load_dwordx4 v[{r0}:{r0+3}], v{vL16}, {srd(sO)}, s4 offen sc1')
        e('s_mov_b32 s5, 0xffff0000')
        for k, u in enumerate(own):
            j, i, m = units[u]
            e(f's_waitcnt vmcnt({4*(len(own) - 1 - k) + k})')
            a_ = acc[j, i][8*m:8*m+8]
            for r in range(8):
                src = (20, 24, 52)[k] + (r >> 1)
                e(f'v_and_b32 v{56+r}, s5, v{src}' if r & 1 else f'v_lshlrev_b32 v{56+r}, 16, v{src}')
            for r in range(8): e(f'v_add_f32 v{56+r}, v{56+r}, {a_[r]}')
            for z in range(4):
                for r in range(8):
                    src = preg(k, z) + (r >> 1)
                    e(f'v_and_b32 v{vTt}, s5, v{src}' if r & 1 else f'v_lshlrev_b32 v{vTt}, 16, v{src}')
                    e(f'v_add_f32 v{56+r}, v{56+r}, v{vTt}')
            o_ = 40 + 4*k
            for r in range(4): e(f'v_cvt_pk_bf16_f32 v{o_+r}, v{56+2*r}, v{56+2*r+1}')
            e(f's_nop 1\nv_permlane32_swap_b32 v{o_}, v{o_+2}\nv_permlane32_swap_b32 v{o_+1}, v{o_+3}')
            off = i*32*1152 + (32*j + 16*m)*2
            e(f's_mov_b32 s4, {off}')
            e(f'buffer_store_dwordx4 v[{o_}:{o_+3}], v{vOo}, {srd(sOut)}, s4 offen {"sc1" if ARG("outsc1") else ""}')
        e('s_branch L_end')
        if sp < 4: e.label(f'LX_n{sp}')
```

```python
import sys
import mega_common
from mega_common import *
mega_common.vStamp = 31
vStamp = 31

GK1 = -2.302208198
GK2 = GK1 * 0.044715
QSCALE = 1.4426950408889634 / (128 ** 0.5)
NEG_INF = 0xff800000
ST = 'sc1'
PFS = 33; PFV = 23
vT = 20
ARG = lambda k: k in sys.argv

def run_sub(e, mfs, fills):
    for k, m in enumerate(mfs):
        e.mf(*m)
        for f in fills.get(k, []):
            if isinstance(f, tuple): e.op(f[0], f[1])
            else: e.op(f)
def put(fills, gap, items): fills.setdefault(gap, []).extend(items)
def emit_groups(e, groups):
    for g in groups:
        for f in g:
            if isinstance(f, tuple): e.op(f[0], f[1])
            else: e.op(f)
def emit_list(e, l): emit_groups(e, [l])
def spread(fills, groups, g0, g1):
    n = len(groups)
    for k, g in enumerate(groups): put(fills, g0 + (k * (g1 - g0 + 1)) // max(n, 1), g)
def pf_ops(ptr, key, k, n):
    per = SZ[key] // 1024
    lines = (per + 127) // 128
    L = (lines + n - 1) // n
    lo = k * L; cnt = min(L, lines - lo)
    return [f's_mov_b32 s4, s{ptr}', f's_mov_b32 s5, s{ptr+1}', f's_mov_b32 s6, {SZ[key]:#x}', 's_mov_b32 s7, 0x20000',
            f's_lshl_b32 s{PFS}, s2, 2', f's_add_u32 s{PFS}, s{PFS}, s{sWave}', f's_mul_i32 s{PFS}, s{PFS}, {per}', f's_add_u32 s{PFS}, s{PFS}, {lo*128}',
            f'v_lshlrev_b32 v{PFV}, 7, v{vLane}', f's_mov_b32 exec_lo, {hex((1 << min(cnt, 32)) - 1)}', f's_mov_b32 exec_hi, {hex((1 << max(cnt - 32, 0)) - 1)}',
            (f'buffer_load_dword v{PFV+1}, v{PFV}, s[4:7], s{PFS} offen', 'pf'), 's_mov_b64 exec, -1']
def publish_ops(soff_instrs, lab, vt=14):
    return [f's_cmp_lg_u32 s{sWave}, 0', f's_cbranch_scc1 {lab}', f'v_mov_b32 v{vt}, s{sTag}', f'v_mov_b32 v{vt+1}, 0'] + soff_instrs + \
           ['s_mov_b64 exec, 1', (f'buffer_store_dword v{vt}, v{vt+1}, {srd(SF)}, s4 offen sc1', 'OPT'), 's_mov_b64 exec, -1', f'{lab}:']

sCt, sTt = 34, 35
kM0A, kM0W, kSoW, kSoA = 38, 39, 44, 48
gG, gU, gA, gM = S3, S4, 56, 60
sCj, sFb, sMb = 36, 37, 40
gSoffA, gSoffW, gM0A, gM0G, gM0U, gM0M = 41, 42, 43, 44, 48, 66
sKVo = [67, 70, 71, 82, 83, 86, 87, 94]
sACT = 96
qW, sKF, sVF = S0, S1, S2
qSoffA, qSoffW, qM0A, qM0W = 45, 46, 47, 49
sH, sP, sNS, sNL = 50, 51, 52, 53
sCnt, sKd, sVd, sKoff, sVoff, sKmax, sWoff, sM0K, sM0V, sJt = 54, 55, 38, 39, 41, 42, 43, 44, 48, 66
sT0, sT1, sT2, sK2 = 34, 95, 100, 101
MKP = [60, 62, 4, 6]
G_NST = 18; GOFF = 16384; UOFF = 24576; MOFF = 32768; MUO = 1152; G_SS = 35072; G_PITCH = 9216
gDA, gDW, gDM, vKVo = 25, 26, 27, 28
def g_slot(t): return ((t + 2) % 4) * G_SS
def gu_dma(t):
    slot = g_slot(t); tg = ('gu', t)
    g = []
    g.append([f's_add_u32 m0, s{gM0A}, {slot}', 's_nop 0', (f'buffer_load_dwordx4 v{gDA}, {srd(gA)}, 0 offen sc1 lds', tg)])
    g.append([(f'buffer_load_dwordx4 v{gDA}, {srd(gA)}, 0 offen offset:1024 sc1 lds', tg)])
    g.append([(f'buffer_load_dwordx4 v{gDA}, {srd(gA)}, s{gSoffA} offen offset:2048 sc1 lds', tg)])
    g.append([(f'buffer_load_dwordx4 v{gDA}, {srd(gA)}, s{gSoffA} offen offset:3072 sc1 lds', tg), f'v_add_u32 v{gDA}, 2048, v{gDA}'])
    g.append([f's_add_u32 m0, s{gM0G}, {slot}', 's_nop 0', (f'buffer_load_dwordx4 v{gDW}, {srd(gG)}, 0 offen lds', tg)])
    g.append([(f'buffer_load_dwordx4 v{gDW}, {srd(gG)}, s{gSoffW} offen offset:1024 lds', tg)])
    g.append([f's_add_u32 m0, s{gM0U}, {slot}', 's_nop 0', (f'buffer_load_dwordx4 v{gDW}, {srd(gU)}, 0 offen lds', tg)])
    g.append([(f'buffer_load_dwordx4 v{gDW}, {srd(gU)}, s{gSoffW} offen offset:1024 lds', tg), f'v_add_u32 v{gDW}, {32*G_PITCH}, v{gDW}'])
    g.append([f's_add_u32 m0, s{gM0M}, {slot}', 's_nop 0', (f'buffer_load_dwordx4 v{gDM}, {srd(gM)}, 0 offen lds', tg), f'v_add_u32 v{gDM}, {32*G_PITCH}, v{gDM}'])
    return g
Q_SS = 24576; Q_ACTB = 16384; KB = 98304
qDA, qDW = 11, 12
def q_dma(t):
    slot = (t % 4) * Q_SS; tg = ('q', t)
    g = []
    g.append([f's_add_u32 m0, s{qM0A}, {slot}', 's_nop 0', (f'buffer_load_dwordx4 v{qDA}, {srd(gA)}, 0 offen sc1 lds', tg)])
    g.append([(f'buffer_load_dwordx4 v{qDA}, {srd(gA)}, 0 offen offset:1024 sc1 lds', tg)])
    g.append([(f'buffer_load_dwordx4 v{qDA}, {srd(gA)}, s{qSoffA} offen offset:2048 sc1 lds', tg)])
    g.append([(f'buffer_load_dwordx4 v{qDA}, {srd(gA)}, s{qSoffA} offen offset:3072 sc1 lds', tg), f'v_add_u32 v{qDA}, 2048, v{qDA}'])
    g.append([f's_add_u32 m0, s{qM0W}, {slot}', 's_nop 0', (f'buffer_load_dwordx4 v{qDW}, {srd(qW)}, 0 offen lds', tg)])
    g.append([(f'buffer_load_dwordx4 v{qDW}, {srd(qW)}, s{qSoffW} offen offset:1024 lds', tg), f'v_add_u32 v{qDW}, {32*8192}, v{qDW}'])
    return g

def phase_start_kv(e, st):
    e('s_cmp_ge_u32 s2, 256\ns_cbranch_scc1 L_done')
    if gen_common.STAMP: e('s_memrealtime s[94:95]')
    if ARG('span'): e('s_memrealtime s[92:93]')
    for key, p in (('ws', pWs), ('x', pX), ('ckv', pCkv), ('wuk', pWkv), ('wuv', pTmp), ('wg', pWg), ('wu', pWu), ('wq', pWq), ('wo', pWo),
                   ('wd', pWd), ('out', pOut), ('dbg', pDbg)):
        load_ptr(e, p, key)
    e(f'v_and_b32 v{vLane}, 63, v0\nv_lshrrev_b32 v3, 6, v0\nv_lshlrev_b32 v{vL16}, 4, v{vLane}')
    e(f's_and_b32 s{sXcd}, s2, 7\ns_lshr_b32 s{sIdx}, s2, 3')
    e(f'v_readfirstlane_b32 s{sWave}, v3')
    if not ARG('latecodepf'):
        e('s_getpc_b64 s[4:5]')
        e('L_pcbase:')
        e(f's_lshl_b32 s6, s{sIdx}, 2\ns_add_u32 s6, s6, s{sWave}\ns_and_b32 s6, s6, 15\ns_lshl_b32 s6, s6, 13')
        e(f'v_lshlrev_b32 v{PFV}, 7, v{vLane}\nv_add_u32 v{PFV}, s6, v{PFV}')
        e(f'v_cmp_gt_u32 vcc, L_codeend - L_pcbase, v{PFV}\ns_nop 0\ns_and_saveexec_b64 s[6:7], vcc\ns_cbranch_execz L_nopf')
        e.vmem(f'global_load_dword v{PFV+1}, v{PFV}, s[4:5]', None, optional=True)
        e('L_nopf:')
        e('s_mov_b64 exec, -1')
    WB = 98304
    vAx = [3, 4, 5, 6]; vAc, vW0, vW1, vDAe, vDAo, vDW = 7, 8, 9, 10, 11, 12
    e(f's_and_b32 s4, s{sIdx}, 3\ns_lshl_b32 s5, s{sXcd}, 2\ns_add_u32 s{sCt}, s5, s4\ns_lshr_b32 s{sTt}, s{sIdx}, 2')
    e(f'v_lshrrev_b32 v{vT}, 3, v{vLane}\nv_lshlrev_b32 v{vDAe}, 10, v{vT}\nv_lshrrev_b32 v{vT}, 4, v{vLane}\nv_and_b32 v{vT+1}, 7, v{vLane}')
    e(f'v_xor_b32 v{vT}, v{vT}, v{vT+1}\nv_lshl_add_u32 v{vDAe}, v{vT}, 4, v{vDAe}')
    e(f's_lshl_b32 s4, s{sTt}, 18\ns_lshl_b32 s5, s{sWave}, 16\ns_add_u32 s4, s4, s5\nv_add_u32 v{vDAe}, s4, v{vDAe}')
    if ARG('rot'):
        e(f's_lshl_b32 s4, s{sTt}, 7\nv_add_u32 v{vDAe}, s4, v{vDAe}')
    e(f'v_xor_b32 v{vDAo}, 64, v{vDAe}')
    for j_ in range(1, 8): e(f's_mov_b32 s{kSoA+j_}, {8192*j_ - 1024*(j_ & 3)}')
    for j_ in range(1, 4): e(f's_mov_b32 s{kSoW+j_}, {j_*(4*8192-1024)}')
    e('s_movk_i32 s33, 8192')
    lane_w_dma(e, vDW, vT, 33)
    e(f's_and_b32 s4, s{sCt}, 15\ns_lshl_b32 s4, s4, 9\ns_and_b32 s5, s{sWave}, 1\ns_lshl_b32 s5, s5, 8\ns_add_u32 s4, s4, s5')
    e(f's_lshr_b32 s5, s{sWave}, 1\ns_lshl_b32 s5, s5, 17\ns_add_u32 s4, s4, s5\nv_add_u32 v{vDW}, s4, v{vDW}')
    if ARG('rot'):
        e(f's_lshl_b32 s4, s{sTt}, 19\nv_add_u32 v{vDW}, s4, v{vDW}')
        e(f'v_mov_b32 v29, 0x380\nv_mov_b32 v30, 0x3c0000')
    e(f's_lshl_b32 s{kM0A}, s{sWave}, 13')
    e(f's_and_b32 s4, s{sWave}, 1\ns_lshl_b32 s4, s4, 13\ns_lshr_b32 s5, s{sWave}, 1\ns_lshl_b32 s5, s5, 12')
    e(f's_add_u32 s{kM0W}, s4, s5\ns_add_u32 s{kM0W}, s{kM0W}, {WB}')
    e('s_waitcnt lgkmcnt(0)')
    if gen_common.STAMP: e(f'v_writelane_b32 v{vStamp}, s94, 61')
    st.real(62); st('start')
    sW, sA, sO = S0, S1, S2
    e(f's_mov_b32 s60, s{pWkv}\ns_mov_b32 s61, s{pWkv+1}')
    e(f's_cmp_lt_u32 s{sCt}, 16\ns_cselect_b32 s{pWkv}, s{pWkv}, s{pTmp}\ns_cselect_b32 s{pWkv+1}, s{pWkv+1}, s{pTmp+1}')
    srd_from(e, sW, pWkv, SZ['wuk']); srd_from(e, sA, pCkv, SZ['ckv'])
    def dmaA(p, h):
        tg = ('ka', p); g = []
        for jj in range(4):
            j_ = 4*h + jj
            ins = (f'buffer_load_dwordx4 v{vDAo if j_ & 1 else vDAe}, {srd(sA)}, {"s%d" % (kSoA + j_) if j_ else "0"} offen' + (f' offset:{1024*jj}' if jj else '') + ' lds', tg)
            g.append(([f's_add_u32 m0, s{kM0A}, {(p % 3)*32768 + 4096*h}', 's_nop 0'] if jj == 0 else []) + [ins])
        if h == 1:
            if ARG('rot'):
                g[-1] += [f'v_add_u32 v13, 128, v{vDAe}', f'v_bfi_b32 v{vDAe}, v29, v13, v{vDAe}', f'v_xor_b32 v{vDAo}, 64, v{vDAe}']
            else:
                g[-1] += [f'v_add_u32 v{vDAe}, 128, v{vDAe}', f'v_add_u32 v{vDAo}, 128, v{vDAo}']
        return g
    def dmaW(t):
        tg = ('kw', t)
        g = [[f's_add_u32 m0, s{kM0W}, {(t % 4)*16384}', 's_nop 0', (f'buffer_load_dwordx4 v{vDW}, {srd(sW)}, 0 offen lds', tg)]]
        for j_ in range(1, 4):
            g.append([(f'buffer_load_dwordx4 v{vDW}, {srd(sW)}, s{kSoW+j_} offen offset:{1024*j_} lds', tg)])
        if ARG('rot'): g[-1] += [f'v_add_u32 v13, {32*8192}, v{vDW}', f'v_bfi_b32 v{vDW}, v30, v13, v{vDW}']
        else: g[-1] += [f'v_add_u32 v{vDW}, {32*8192}, v{vDW}']
        return g
    if ARG('tlbwarm'):
        e(f's_lshl_b32 s32, s{sIdx}, 2\ns_add_u32 s32, s32, s{sWave}\nv_mov_b32 v{PFV}, 0\ns_mov_b64 exec, 1')
        for ptr, key in ((pCkv, 'ckv'), (60, 'wuk'), (pTmp, 'wuv'), (pWg, 'wg'), (pWu, 'wu'), (pWq, 'wq'), (pWd, 'wd'), (pWo, 'wo')):
            e(f's_mov_b32 s4, s{ptr}\ns_mov_b32 s5, s{ptr+1}\ns_mov_b32 s6, {SZ[key]:#x}\ns_mov_b32 s7, 0x20000\ns_mul_i32 s33, s32, {SZ[key] // 128}')
            e.vmem(f'buffer_load_dword v{PFV+1}, v{PFV}, s[4:7], s33 offen', 'pf')
        e('s_mov_b64 exec, -1')
    sX, sXN = S3, S4
    srd_from(e, sX, pX, SZ['x'])
    e(f's_lshl_b32 s32, s2, 3\ns_lshl_b32 s33, s{sWave}, 1\ns_add_u32 s32, s32, s33')
    e(f'v_lshrrev_b32 v72, 5, v{vLane}\nv_add_u32 v72, s32, v72')
    e(f'v_and_b32 v73, 31, v{vLane}')
    e('s_movk_i32 s33, 1152\nv_mul_lo_u32 v74, v72, s33\nv_lshl_add_u32 v74, v73, 4, v74')
    D = 32
    e.vmem(f'buffer_load_dwordx4 v[{D}:{D+3}], v74, {srd(sX)}, 0 offen', 'ln')
    e.vmem(f'buffer_load_dwordx4 v[{D+4}:{D+7}], v74, {srd(sX)}, 0 offen offset:512', 'ln')
    e('s_mov_b32 exec_lo, 0xff\ns_mov_b32 exec_hi, 0xff')
    e.vmem(f'buffer_load_dwordx4 v[{D+8}:{D+11}], v74, {srd(sX)}, 0 offen offset:1024', 'ln')
    e('s_mov_b64 exec, -1')
    emit_groups(e, dmaW(0) + dmaA(0, 0) + dmaA(0, 1) + dmaW(1))
    if ARG('latecodepf'):
        e('s_getpc_b64 s[4:5]')
        e('L_pcbaseX:')
        e(f's_lshl_b32 s6, s{sIdx}, 2\ns_add_u32 s6, s6, s{sWave}\ns_and_b32 s6, s6, 15\ns_lshl_b32 s6, s6, 13')
        e(f'v_lshlrev_b32 v{PFV}, 7, v{vLane}\nv_add_u32 v{PFV}, s6, v{PFV}')
        e(f'v_cmp_gt_u32 vcc, L_codeend - L_pcbaseX, v{PFV}\ns_nop 0\ns_and_saveexec_b64 s[6:7], vcc\ns_cbranch_execz L_nopfX')
        e.vmem(f'global_load_dword v{PFV+1}, v{PFV}, s[4:5]', None, optional=True)
        e('L_nopfX:')
        e('s_mov_b64 exec, -1')
    if ARG('bulk1'):
        for ptr, key in ((60, 'wuk'), (pTmp, 'wuv'), (pCkv, 'ckv')): emit_list(e, pf_ops(ptr, key, 0, 1))
    e(f's_add_u32 s4, s{pWs}, {WS_FLAG + FL_E:#x}\ns_addc_u32 s5, s{pWs+1}, 0')
    e(f's_load_dword s{sTag}, s[4:5], 0')
    srd_from(e, SF, pWs, 0x10000, WS_FLAG)
    srd_from(e, sXN, pWs, SZ_XN, WS_XN)
    late = dmaA(1, 0) + dmaA(1, 1) + dmaW(2) + dmaW(3) + dmaA(2, 0)
    e('v_lshrrev_b32 v75, 5, v72\nv_mul_u32_u24 v75, 36, v75\nv_lshrrev_b32 v76, 1, v73\nv_add_u32 v75, v75, v76\nv_lshlrev_b32 v75, 10, v75')
    e('v_and_b32 v76, 1, v73\nv_lshlrev_b32 v76, 9, v76\nv_add_u32 v75, v75, v76\nv_and_b32 v76, 31, v72\nv_lshl_add_u32 v80, v76, 4, v75')
    e(f's_mov_b32 s5, {WS_VF:#x}\ns_cmp_lt_u32 s{sCt}, 16\ns_cselect_b32 s4, {WS_KF:#x}, s5')
    e(f's_add_u32 s{sO}, s{pWs}, s4\ns_addc_u32 s{sO+1}, s{pWs+1}, 0\ns_mov_b32 s{sO+2}, {SZ_KF:#x}\ns_mov_b32 s{sO+3}, 0x20000')
    e(f'v_and_b32 v{vT}, 31, v{vLane}\nv_lshlrev_b32 v{vAx[0]}, 7, v{vT}\nv_bfe_u32 v{vT}, v{vLane}, 1, 3\nv_lshrrev_b32 v{vT+1}, 5, v{vLane}')
    e(f'v_xor_b32 v{vT}, v{vT}, v{vT+1}\nv_lshl_add_u32 v{vAx[0]}, v{vT}, 4, v{vAx[0]}')
    e(f's_and_b32 s4, s{sWave}, 1\ns_lshl_b32 s4, s4, 14\nv_add_u32 v{vAx[0]}, s4, v{vAx[0]}')
    for q in range(1, 4): e(f'v_xor_b32 v{vAx[q]}, {32*q}, v{vAx[0]}')
    lane_w_base(e, vW0, vW1, vT, 2, 1024)
    e(f's_lshr_b32 s4, s{sWave}, 1\ns_lshl_b32 s4, s4, 13\ns_add_u32 s4, s4, {WB}')
    e(f'v_add_u32 v{vW0}, s4, v{vW0}\nv_add_u32 v{vW1}, s4, v{vW1}')
    st('kv_dma')
    e.wait_vm('ln')
    F = 48
    e('s_mov_b32 s36, 0xffff0000')
    def unpack(i):
        for k in range(4):
            e(f'v_lshlrev_b32 v{F+8*i+2*k}, 16, v{D+4*i+k}\nv_and_b32 v{F+8*i+2*k+1}, s36, v{D+4*i+k}')
    unpack(0); unpack(1)
    for k in range(8): e(f'v_mov_b32 v{F+16+k}, 0')
    e('s_mov_b32 exec_lo, 0xff\ns_mov_b32 exec_hi, 0xff'); unpack(2); e('s_mov_b64 exec, -1')
    def allred(r, t):
        for dpp in ('quad_perm:[1,0,3,2]', 'quad_perm:[2,3,0,1]', 'row_half_mirror', 'row_mirror'):
            e(f's_nop 1\nv_add_f32_dpp v{r}, v{r}, v{r} {dpp} row_mask:0xf bank_mask:0xf')
        e(f'v_mov_b32 v{t}, v{r}\ns_nop 1\nv_permlane16_swap_b32 v{r}, v{t}\ns_nop 1\nv_add_f32 v{r}, v{r}, v{t}')
    mu, va, t0, t1, t2, t3, t4 = 84, 85, 86, 87, 88, 89, 90
    e(f'v_add_f32 v{mu}, v{F}, v{F+1}')
    for k in range(2, 24): e(f'v_add_f32 v{mu}, v{mu}, v{F+k}')
    allred(mu, t0)
    e(f's_mov_b32 s37, 0x3ae38e39\nv_mul_f32 v{mu}, s37, v{mu}')
    e(f'v_mov_b32 v{va}, 0')
    for k in range(16): e(f'v_sub_f32 v{t1}, v{F+k}, v{mu}\nv_fmac_f32 v{va}, v{t1}, v{t1}')
    e('s_mov_b32 exec_lo, 0xff\ns_mov_b32 exec_hi, 0xff')
    for k in range(16, 24): e(f'v_sub_f32 v{t1}, v{F+k}, v{mu}\nv_fmac_f32 v{va}, v{t1}, v{t1}')
    e('s_mov_b64 exec, -1')
    allred(va, t0)
    e(f'v_mul_f32 v{va}, s37, v{va}')
    e(f'v_cvt_pk_bf16_f32 v{t1}, v{mu}, v{va}\nv_lshlrev_b32 v{mu}, 16, v{t1}\nv_and_b32 v{va}, s36, v{t1}')
    e(f'v_mov_b32 v{t2}, 0x3727c5ac\nv_add_f32 v{va}, v{t2}, v{va}')
    e(f'v_cvt_pk_bf16_f32 v{t1}, v{va}, v{va}\nv_lshlrev_b32 v{va}, 16, v{t1}\nv_sqrt_f32 v{va}, v{va}\ns_nop 0')
    e(f'v_cvt_pk_bf16_f32 v{t1}, v{va}, v{va}\nv_lshlrev_b32 v{va}, 16, v{t1}\nv_rcp_f32 v{t2}, v{va}\ns_nop 0')
    for i in range(3):
        if i == 2: e('s_mov_b32 exec_lo, 0xff\ns_mov_b32 exec_hi, 0xff')
        for k in range(4):
            r0, r1 = F+8*i+2*k, F+8*i+2*k+1
            e(f'v_sub_f32 v{r0}, v{r0}, v{mu}\nv_sub_f32 v{r1}, v{r1}, v{mu}')
            e(f'v_cvt_pk_bf16_f32 v{t3}, v{r0}, v{r1}')
            e(f'v_lshlrev_b32 v{r0}, 16, v{t3}\nv_and_b32 v{r1}, s36, v{t3}')
            for r in (r0, r1):
                e(f'v_mul_f32 v{t4}, v{r}, v{t2}\nv_fma_f32 v{t1}, -v{t4}, v{va}, v{r}\nv_fma_f32 v{r}, v{t1}, v{t2}, v{t4}')
            e(f'v_cvt_pk_bf16_f32 v{D+4*i+k}, v{r0}, v{r1}')
        e(f's_mov_b32 s37, {i*16*1024}')
        e.vmem(f'buffer_store_dwordx4 v[{D+4*i}:{D+4*i+3}], v80, {srd(sXN)}, s37 offen {ST}', 'xn')
    e('s_mov_b64 exec, -1')
    e('s_waitcnt lgkmcnt(0)')
    e(f's_mul_i32 s{sTag}, s{sTag}, 0x9E3779B1\ns_add_u32 s{sTag}, s{sTag}, 0x7F4A7C15')
    e(f's_mov_b32 s{sSlow}, 0')
    vAt = 22
    srd_from(e, S3, pDbg, 256)
    e(f's_cmp_lg_u32 s{sWave}, 0\ns_cbranch_scc1 L_noat')
    e(f'v_mov_b32 v{vAt}, 1\nv_mov_b32 v{vT}, 0\ns_mov_b64 exec, 1')
    e.vmem(f'buffer_atomic_add v{vAt}, v{vT}, {srd(S3)}, 0 offen sc0 sc1', None, optional=True)
    e('s_mov_b64 exec, -1')
    e.label('L_noat')
    if ARG('bulk2'):
        for ptr, key in ((60, 'wuk'), (pTmp, 'wuv'), (pCkv, 'ckv')): emit_list(e, pf_ops(ptr, key, 0, 1))
    if ARG('bulkall'):
        for ptr, key in ((pCkv, 'ckv'), (60, 'wuk'), (pTmp, 'wuv'), (pWg, 'wg'), (pWu, 'wu'), (pWq, 'wq')): emit_list(e, pf_ops(ptr, key, 0, 1))
    if ARG('bulklate'):
        for ptr, key in ((pWg, 'wg'), (pWu, 'wu'), (pWq, 'wq')): emit_list(e, pf_ops(ptr, key, 0, 1))
    e(f's_and_b32 s4, s{sIdx}, 3\ns_lshl_b32 s5, s{sXcd}, 2\ns_add_u32 s{sCj}, s5, s4')
    e(f's_mul_i32 s4, s{sCj}, 144\ns_and_b32 s5, s{sCj}, 1\ns_lshl_b32 s6, s5, 4\ns_add_u32 s{sFb}, s4, s6')
    e(f's_xor_b32 s5, s5, 1\ns_lshl_b32 s5, s5, 7\ns_add_u32 s{sMb}, s4, s5')
    e('s_nop 4')
    srd_from(e, gG, pWg, SZ['wg']); srd_from(e, gU, pWu, SZ['wu']); srd_from(e, gA, pWs, SZ_XN, WS_XN)
    e(f's_bitcmp1_b32 s{sWave}, 0\ns_cselect_b32 s4, s{pWu}, s{pWg}\ns_cselect_b32 s5, s{pWu+1}, s{pWg+1}')
    srd_from(e, gM, 4, SZ['wg'])
    e(f's_lshl_b32 s4, s{sTt}, 3\ns_lshl_b32 s5, s{sWave}, 1\ns_add_u32 s4, s4, s5\ns_mul_i32 s4, s4, {36*1024}\nv_add_u32 v{gDA}, s4, v{vL16}')
    e(f's_mov_b32 s{gSoffA}, {36*1024 - 2048}\ns_movk_i32 s6, {G_PITCH}')
    lane_w_dma(e, gDW, vT, 6)
    e(f's_and_b32 s4, s{sWave}, 1\ns_lshl_b32 s4, s4, 5\nv_xor_b32 v{gDW}, s4, v{gDW}')
    e(f's_lshl_b32 s4, s{sFb}, 1\ns_mul_i32 s5, s{sWave}, {8*G_PITCH}\ns_add_u32 s4, s4, s5\nv_add_u32 v{gDW}, s4, v{gDW}')
    e(f's_mov_b32 s{gSoffW}, {4*G_PITCH - 1024}')
    e(f'v_bfe_u32 v{vT}, v{vLane}, 1, 2\nv_bfe_u32 v{vT+1}, v{vLane}, 3, 1\nv_lshl_add_u32 v{vT}, v{vT+1}, 3, v{vT}')
    e(f'v_bfe_u32 v{vT+1}, v{vLane}, 4, 1\nv_lshl_add_u32 v{vT}, v{vT+1}, 2, v{vT}')
    e(f'v_bfe_u32 v{vT+1}, v{vLane}, 5, 1\nv_lshl_add_u32 v{vT}, v{vT+1}, 4, v{vT}')
    e(f'v_mul_lo_u32 v{gDM}, v{vT}, s6\nv_and_b32 v{vT}, 1, v{vLane}\nv_lshl_add_u32 v{gDM}, v{vT}, 4, v{gDM}')
    e(f's_lshl_b32 s4, s{sMb}, 1\nv_add_u32 v{gDM}, s4, v{gDM}')
    e(f's_lshl_b32 s{gM0A}, s{sWave}, 12')
    gM0U_early = 40 + 0
    e(f's_lshl_b32 s4, s{sWave}, 11\ns_add_u32 s{gM0G}, s4, {GOFF}\ns_add_u32 s{gM0U}, s4, {UOFF}')
    e(f's_and_b32 s4, s{sWave}, 1\ns_mul_i32 s4, s4, {MUO}\ns_add_u32 s{gM0M}, s4, {MOFF}')
    st('ln')
    XA = [R('a', 32 + 4*i, 4) for i in range(4)]; XW = [R('a', 48 + 4*i, 4) for i in range(4)]
    YA = [R('a', 64 + 4*i, 4) for i in range(4)]; YW = [R('a', 80 + 4*i, 4) for i in range(4)]
    acc = [[None]*4 for _ in range(4)]
    for j in range(4):
        for i in range(4):
            n = 4*j + i
            acc[i][j] = R('v', 32 + 16*n, 16) if n < 14 else R('a', 16*(n - 14), 16)
    def reads(t, ks, FA, FW):
        so = (t % 4) * 16384
        r = []
        def wrd(j):
            base = vW0 if (j & 1) == 0 else vW1
            for i2 in range(2):
                r.append(f'ds_read_b64_tr_b16 {FW[j][2*i2:2*i2+2]}, v{base} offset:{so + (4*ks + i2)*1024 + (j >> 1)*512}')
        r.append(f'v_add_u32 v{vAc}, {((t // 2) % 3)*32768}, v{vAx[2*(t & 1) + ks]}')
        wrd(0)
        for i in range(4): r.append(f'ds_read_b128 {FA[i]}, v{vAc} offset:{i*4096}')
        wrd(1); wrd(2); wrd(3)
        return r
    def mfs(FA, FW, isK, first):
        return [((acc[i][j], FW[j], FA[i], '0' if first else None) if isK else (acc[i][j], FA[i], FW[j], '0' if first else None))
                for j in range(4) for i in range(4)]
    NST = 16
    e.wait_vm(('ka', 0), barrier=True)
    assert e.vm_count(('kw', 0)) is None
    st('kv_first')
    saved = (list(e.vm), list(e.lg))
    def place(fills, rd):
        put(fills, 0, rd[:3])
        for k, x in enumerate(rd[3:]): put(fills, 1 + k // 2, [x])
    g0 = gu_dma(0); g1 = gu_dma(1)
    KV0 = st.n
    def loop(isK):
        for x in reads(0, 0, XA, XW): e.op(x)
        for t in range(NST):
            if ARG('kviter') and isK: st(f'kv{t}')
            if ARG('kviter') and not isK:
                st.n = KV0 + t; st(f'kvx{t}'); st.names.pop()
            fills = {}
            place(fills, reads(t, 1, YA, YW))
            if t == 0: spread(fills, late[:12], 1, 15)
            run_sub(e, mfs(XA, XW, isK, t == 0), fills)
            fills = {}
            if t + 1 < NST:
                need = [('kw', t + 1)] + ([('ka', (t + 1) // 2)] if (t + 1) % 2 == 0 else [])
                cnts = [(e.vm_count(x), x) for x in need if e.vm_count(x) is not None]
                e.wait_vm(min(cnts)[1] if cnts else ('kw', t + 1), also_lgkm0=True, barrier=True)
                place(fills, reads(t + 1, 0, XA, XW))
            else:
                e.lgkm0(); e('s_barrier')
            if t == 12: flag_check(e, 16, vL16, 0, 64, ndw=4)
            dm = []
            q, h = ((t + 5) // 2, 0) if t % 2 == 1 else ((t + 4) // 2, 1)
            if t == 0: dm += late[12:]
            if q < 8: dm += dmaA(q, h)
            if t + 4 < NST: dm += dmaW(t + 4)
            if t == 12: dm += g0[:4]
            if t == 13: dm += g0[4:]
            if t == 14: dm += g1
            if t == 15: dm += gu_dma(2)
            spread(fills, dm, (6 if t < 12 else 5) if t > 0 else 1, 15)
            if not ARG('nopf2') and not ARG('bulkall') and not ARG('bulklate') and not ARG('bulkmid') and 1 <= t < 12:
                k = t - 1
                if k < 10 and not ARG('nopfg'): put(fills, 14, pf_ops(pWg if k % 2 == 0 else pWu, 'wg', k // 2, 5))
                if t in (3, 7, 11) and not ARG('wqgu') and not ARG('nopfq'): put(fills, 15, pf_ops(pWq, 'wq', (t - 3) // 4, 3))
            if ARG('bulkmid') and t in (2, 5, 8):
                ptr, key = ((pWg, 'wg'), (pWu, 'wu'), (pWq, 'wq'))[(t - 2) // 3]
                put(fills, 15, pf_ops(ptr, key, 0, 1))
            if t == 3:
                assert 'xn' not in e.vm
                hook = f'L_ln{int(isK)}'
                put(fills, 2, [f's_cmp_lg_u32 s{sWave}, 0', f's_cbranch_scc1 {hook}',
                               f'v_mov_b32 v14, s{sTag}', f'v_mov_b32 v15, 0', f's_lshl_b32 s4, s2, 2', f'v_readfirstlane_b32 s5, v{vAt}', 's_mov_b64 exec, 1',
                               (f'buffer_store_dword v14, v15, {srd(SF)}, s4 offen sc1', 'OPT'),
                               f's_cmp_lg_u32 s5, 255', f's_cbranch_scc1 {hook}x', f's_mov_b32 s4, {FL_E}',
                               (f'buffer_store_dword v14, v15, {srd(SF)}, s4 offen sc1', 'OPT'), f'{hook}x:', 's_mov_b64 exec, -1', f'{hook}:'])
            if t == 9:
                put(fills, 0, [(f'buffer_load_dwordx4 v[16:19], v{vL16}, {srd(SF)}, 0 offen sc1', 'poll')])
            run_sub(e, mfs(YA, YW, isK, False), fills)
        e('s_nop 7')
        return
    e(f's_cmp_lt_u32 s{sCt}, 16\ns_cbranch_scc0 L_kvV')
    loop(True)
    e('s_branch L_kvE')
    e.label('L_kvV')
    e.vm, e.lg = list(saved[0]), list(saved[1])
    loop(False)
    e.label('L_kvE')
    st('kv_loop')
    return dict(acc=acc)
```

```python
from v5b import *
if ARG('oldmap'):
    HS = [15, 14, 14, 14, 15]; CS = [12, 13, 13, 13, 13]
elif ARG('map3'):
    HS = [15, 14, 14, 14, 15]; CS = [12, 13, 13, 13, 13]
elif ARG('map2'):
    HS = [14, 14, 14, 15, 15]; CS = [12, 12, 13, 13, 14]
else:
    HS = [13, 14, 14, 15, 16]; CS = [12, 12, 13, 14, 13]
assert sum(HS) == 72 and sum(CS) == 64
NS = 4; SS = 40960; ACTB = 16384; PITCH = 1152; ND = 10
sW, sA, sO = S0, sACT, S3
fTt, fNt, fSp, fHst, fHn, fCst, fCn = 36, 37, 40, 45, 46, 47, 49
fSo = {(0, 0): '0', (0, 1): 's56', (1, 0): 's57', (1, 1): 's58', (2, 0): 's59', (2, 1): 's67'}
fM0A, fM0W, fDst, fDeltaA, fDeltaW, fT0, fCnt = 70, 71, 82, 83, 86, 87, 94
fStage, fPo, fTile, fPb = 28, 29, 30, 31
vDA, vDW, vPoll, vPo = 11, 12, 25, 26

import re as _re
def retemp(x):
    return _re.sub(r'\bs6\b', 's101', _re.sub(r'\bs5\b', 's33', _re.sub(r'\bs4\b', 's32', x)))
def ptrs(e):
    e(f's_lshl_b32 s4, s{fTt}, 2\ns_add_u32 s4, s4, s{sWave}\ns_mul_i32 s4, s4, 544\ns_lshl_b32 s5, s{fHst}, 2\ns_add_u32 s4, s4, s5\ns_add_u32 s4, s4, 256\ns_lshl_b32 s4, s4, 10')
    e(f'v_add_u32 v{vDA}, s4, v{vL16}')
    e(f'v_lshrrev_b32 v{vT}, 3, v{vLane}\nv_mul_u32_u24 v{vDW}, {PITCH}, v{vT}')
    e(f'v_bfe_u32 v{vT}, v{vLane}, 4, 1\nv_bfe_u32 v{PFV}, v{vLane}, 2, 1\nv_xor_b32 v{vT}, v{vT}, v{PFV}')
    e(f'v_lshl_add_u32 v{vDW}, v{vT}, 6, v{vDW}\nv_and_b32 v{vT}, 3, v{vLane}\nv_lshl_add_u32 v{vDW}, v{vT}, 4, v{vDW}')
    e(f's_mul_i32 s4, s{fNt}, 384\ns_lshl_b32 s5, s{fHst}, 6\ns_lshl_b32 s6, s{sWave}, 4\ns_add_u32 s5, s5, s6\ns_mul_i32 s5, s5, {PITCH}\ns_add_u32 s4, s4, s5')
    e(f'v_add_u32 v{vDW}, s4, v{vDW}')
    e(f's_mov_b32 s{fDst}, 0')
    make_srd(e, sW, pWd, SZ['wd'])

def setup(e):
    if ARG('oldmap'):
        e(f's_cmp_ge_u32 s{sIdx}, 15\ns_cselect_b32 s4, 1, 0\ns_mul_i32 s5, s4, 15\ns_sub_u32 s5, s{sIdx}, s5')
        e(f's_lshl_b32 s6, s{sXcd}, 1\ns_add_u32 s{fTt}, s6, s4')
        e(f's_mul_i32 s6, s5, 86\ns_lshr_b32 s{fSp}, s6, 8\ns_mul_i32 s6, s{fSp}, 3\ns_sub_u32 s{fNt}, s5, s6')
    elif ARG('map3'):
        e(f's_sub_u32 s5, s{sIdx}, 2\ns_max_i32 s5, s5, 0\ns_mul_i32 s6, s{sXcd}, 30\ns_add_u32 s5, s5, s6')
        e(f's_mul_i32 s6, s5, 1366\ns_lshr_b32 s{fSp}, s6, 16\ns_mul_i32 s6, s{fSp}, 48\ns_sub_u32 s5, s5, s6')
        e(f's_mul_i32 s6, s5, 86\ns_lshr_b32 s{fTt}, s6, 8\ns_mul_i32 s6, s{fTt}, 3\ns_sub_u32 s{fNt}, s5, s6')
    else:
        e(f's_sub_u32 s5, s{sIdx}, 2\ns_max_i32 s5, s5, 0')
        e(f's_mul_i32 s6, s5, 43\ns_lshr_b32 s{fSp}, s6, 8\ns_mul_i32 s6, s{fSp}, 6\ns_sub_u32 s5, s5, s6')
        e(f's_cmp_ge_u32 s5, 3\ns_cselect_b32 s4, 1, 0\ns_mul_i32 s6, s4, 3\ns_sub_u32 s{fNt}, s5, s6')
        e(f's_lshl_b32 s6, s{sXcd}, 1\ns_add_u32 s{fTt}, s6, s4')
    hst = [sum(HS[:i]) for i in range(5)]; cst = [sum(CS[:i]) for i in range(5)]
    e(f's_mov_b32 s{fHst}, {hst[0]}\ns_mov_b32 s{fHn}, {HS[0]}\ns_mov_b32 s{fCst}, {cst[0]}\ns_mov_b32 s{fCn}, {CS[0]}')
    for i in range(1, 5):
        e(f's_cmp_eq_u32 s{fSp}, {i}\ns_cselect_b32 s{fHst}, {hst[i]}, s{fHst}\ns_cselect_b32 s{fHn}, {HS[i]}, s{fHn}\ns_cselect_b32 s{fCst}, {cst[i]}, s{fCst}\ns_cselect_b32 s{fCn}, {CS[i]}, s{fCn}')
    e(f's_add_u32 s4, s{fHst}, s{fHn}\ns_lshl_b32 s5, s4, 2\ns_add_u32 s5, s5, 256\ns_lshl_b32 s6, s{fCst}, 2\ns_sub_u32 s5, s6, s5\ns_lshl_b32 s{fDeltaA}, s5, 10')
    e(f's_sub_u32 s4, s{fCst}, s4\ns_mul_i32 s{fDeltaW}, s4, {64*PITCH}')
    for (nb2, j), r in fSo.items():
        if r != '0': e(f's_mov_b32 {r}, {nb2 * 128 + j * (8 * PITCH - 1024)}')
    e(f's_lshl_b32 s{fM0A}, s{sWave}, 12')
    e(f's_lshl_b32 s4, s{sWave}, 11\ns_add_u32 s{fM0W}, s4, {ACTB}')
    ptrs(e)
    e(f'v_and_b32 v{vPo}, 31, v{vLane}\nv_lshlrev_b32 v{vPo}, 2, v{vPo}')
    e(f's_lshr_b32 s4, s{fTt}, 1\ns_lshl_b32 s4, s4, 7\ns_add_u32 s{fPo}, s4, {FL_GU}')
    e(f'buffer_load_dword v{vPoll}, v{vPo}, {srd(SF)}, s{fPo} offen sc1')

def check_gu(e):
    flag_check(e, vPoll, vPo, f's{fPo}', 32)

_cnt = [0]
def dma_ops(tag=None):
    g = []
    g.append([f's_add_u32 m0, s{fDst}, s{fM0A}', f's_add_u32 s{fT0}, s{fDst}, s{fM0W}', (f'buffer_load_dwordx4 v{vDA}, {srd(sA)}, 0 offen sc1 lds', tag)])
    for i in range(1, 4):
        g.append([(f'buffer_load_dwordx4 v{vDA}, {srd(sA)}, 0 offen offset:{1024*i} sc1 lds', tag)])
    for nb2 in range(3):
        g.append([f's_add_u32 m0, s{fT0}, {nb2*8192}', 's_nop 0', (f'buffer_load_dwordx4 v{vDW}, {srd(sW)}, {fSo[nb2,0]} offen lds', tag)])
        g.append([(f'buffer_load_dwordx4 v{vDW}, {srd(sW)}, {fSo[nb2,1]} offen offset:1024 lds', tag)])
    g[-1] += [f'v_add_u32 v{vDA}, 4096, v{vDA}', f'v_add_u32 v{vDW}, {64*PITCH}, v{vDW}',
              f's_add_u32 s{fDst}, s{fDst}, {SS}', f's_cmp_ge_u32 s{fDst}, {NS*SS}', f's_cselect_b32 s{fDst}, 0, s{fDst}']
    return g
def pre():
    return dma_ops(('f', 0)) + dma_ops(('f', 1)) + (pre2x() if ARG('oldpre') else [])
def pre2x():
    return dma_ops(('f', 2)) + dma_ops(('f', 3))[:5]
def pre2():
    return pre2x() if ARG('pre2') else []

def phase_fin(e, st):
    def mfma(D, A, B, C=None): return f'v_mfma_f32_32x32x16_bf16 {D}, {A}, {B}, {C if C is not None else D}'
    def strip(l): return [x[0] if isinstance(x, tuple) else x for x in l]
    def pub_ctx(suffix):
        o = []
        for x, lab in ((0, 'L_pubcl' + suffix), (1, 'L_pubcs' + suffix)):
            ops = ([f's_sub_u32 s4, 15, s{sP}'] if x == 0 else [f's_mov_b32 s4, s{sP}']) + \
                  ['s_lshl_b32 s4, s4, 5', f's_add_u32 s4, s4, s{sH}', 's_lshl_b32 s4, s4, 2', f's_add_u32 s4, s4, {FL_CTX}']
            o += strip(publish_ops(ops, lab, vt=22))
        return o
    e((f's_cmp_lt_u32 s{sIdx}, 30' if ARG('oldmap') else f's_cmp_ge_u32 s{sIdx}, 2') + '\ns_cbranch_scc1 LF_go')
    e('s_waitcnt vmcnt(0)\ns_barrier')
    for x in pub_ctx('x'): e(x)
    e('s_branch L_end')
    e.label('LF_go')
    vA, vAb = 3, 4
    vW0b, vW1b = 8, 9
    vB = [13, 14, 15]; vBb = [16, 17, 18]
    FS = [([R('v', 160 + 20*b + 4*i, 4) for i in range(2)], [R('v', 168 + 20*b + 4*i, 4) for i in range(3)]) for b in range(4)]
    acc = {(j, i): R('v', 64 + 16 * (2*j + i), 16) for j in range(3) for i in range(2)}
    e(f's_and_b32 s4, s{sWave}, 1\ns_lshl_b32 s4, s4, 13\nv_add_u32 v{vAb}, s4, v{vL16}')
    lane_w_base(e, vW0b, vW1b, vT, 1, 512)
    e(f'v_add_u32 v{vW0b}, {ACTB}, v{vW0b}\nv_add_u32 v{vW1b}, {ACTB}, v{vW1b}')
    e(f's_lshr_b32 s4, s{sWave}, 1\ns_cmp_eq_u32 s4, 0\ns_cbranch_scc0 LF_wn1')
    e(f'v_mov_b32 v{vBb[0]}, v{vW0b}\nv_mov_b32 v{vBb[1]}, v{vW1b}\nv_add_u32 v{vBb[2]}, 8192, v{vW0b}\ns_branch LF_wn2')
    e.label('LF_wn1')
    e(f'v_add_u32 v{vBb[0]}, 8192, v{vW1b}\nv_add_u32 v{vBb[1]}, 16384, v{vW0b}\nv_add_u32 v{vBb[2]}, 16384, v{vW1b}')
    e.label('LF_wn2')
    p2 = pre2()
    PEEL = not ARG('pre2') and not ARG('oldpre')
    if not PEEL:
        for i in range(96):
            e(f'v_mov_b32 v{64+i}, 0')
            if i % 6 == 5 and p2: emit_list(e, p2.pop(0))
        for g in p2: emit_list(e, g)
    e(f's_mov_b32 s{fStage}, 0')
    e(f'v_mov_b32 v{vA}, v{vAb}')
    for j in range(3): e(f'v_mov_b32 v{vB[j]}, v{vBb[j]}')
    def reads(ks, FA, FW):
        r = []
        def wrd(j):
            for i2 in range(2):
                r.append(f'ds_read_b64_tr_b16 {FW[j][2*i2:2*i2+2]}, v{vB[j]} offset:{(4*ks + 2*i2)*512}')
        wrd(0)
        for i in range(2): r.append(f'ds_read_b128 {FA[i]}, v{vA} offset:{i*4096 + ks*1024}')
        wrd(1); wrd(2)
        return r
    def mfmas(FA, FW, first=False): return [mfma(acc[j, i], FW[j], FA[i], '0' if first else None) for j in range(3) for i in range(2)]
    def inter(mf, fills):
        for k, m in enumerate(mf):
            e(m)
            for f in fills.get(k, []): e(f)
    e.wait_vm(('f', 0), barrier=True)
    st('fin_first')
    for x in reads(0, *FS[0]) + reads(1, *FS[1]): e(x)
    SW = []
    def body(h2, h1, vm, hook=None, custom=None):
        dg = [strip(g) for g in dma_ops()]
        for ks in range(4):
            fills = {}
            rd = []
            if ks == 2 and vm is not None:
                e(f's_waitcnt vmcnt({vm}) lgkmcnt(0)\ns_barrier')
                for x in [f's_add_u32 s{fStage}, s{fStage}, {SS}', f's_cmp_ge_u32 s{fStage}, {NS*SS}', f's_cselect_b32 s{fStage}, 0, s{fStage}',
                          f'v_add_u32 v{vA}, s{fStage}, v{vAb}'] + [f'v_add_u32 v{vB[j]}, s{fStage}, v{vBb[j]}' for j in range(3)]: e(x)
            elif ks == 3:
                pass
            elif ks == 2:
                e('s_waitcnt lgkmcnt(0)')
            else:
                e('s_waitcnt lgkmcnt(8)')
            if ks < 2: rd = reads(ks + 2, *FS[ks + 2])
            elif vm is not None: rd = reads(ks - 2, *FS[ks - 2])
            for k_, x in enumerate(rd): fills.setdefault(k_ // 2, []).append(x)
            if ks == 2 and SW:
                fills.setdefault(0, []).extend(SW); SW.clear()
            part = []
            if h2 and ks == 0: part = dg[5:8]
            if h2 and ks == 1: part = dg[8:10]
            if h1 and ks == 2: part = dg[0:3]
            if h1 and ks == 3: part = dg[3:5]
            if custom is not None:
                part = custom[ks]
                for k_, g in enumerate(part): fills.setdefault(min(k_ * 6 // max(len(part), 1), 5), []).extend(g)
            else:
                for k_, g in enumerate(part): fills.setdefault(min(1 + 2*k_, 5), []).extend(g)
            if ks == 3 and hook: fills.setdefault(0, []).extend(hook)
            inter(mfmas(*FS[ks], first=(custom is not None and ks == 0)), fills)
    def body_switch(sw):
        SW.extend(sw)
        body(True, True, 2*ND)
    def loop(lab, hook=None):
        e('.p2align 6'); e.label(lab)
        body(True, True, 2*ND, hook)
        e(f's_sub_u32 s{fCnt}, s{fCnt}, 1\ns_cmp_lg_u32 s{fCnt}, 0\ns_cbranch_scc1 {lab}')
    if not ARG('pre2') and not ARG('oldpre'):
        dg = [strip(g) for g in dma_ops()]
        body(False, False, 15, custom={0: dg[0:8], 1: dg[8:10] + dg[0:5], 2: dg[5:10], 3: dg[0:5]})
        e(f's_sub_u32 s{fCnt}, s{fHn}, 6\ns_sub_u32 s33, s{fCnt}, 2')
    else:
        e(f's_sub_u32 s{fCnt}, s{fHn}, 5\ns_sub_u32 s33, s{fCnt}, 3')
    hook = [f's_cmp_lg_u32 s{fCnt}, s33', 's_cbranch_scc1 LF_nohook'] + pub_ctx('') + ['LF_nohook:']
    loop('LF_loop1', hook)
    e(f's_lshl_b32 s4, s{fTt}, 7\ns_add_u32 s{fPo}, s4, {FL_CTX}')
    e(f'buffer_load_dword v{vPoll}, v{vPo}, {srd(SF)}, s{fPo} offen sc1')
    body(True, True, 2*ND)
    e(f's_waitcnt vmcnt({ND})')
    e.vm = []
    flag_check(e, vPoll, vPo, f's{fPo}', 32)
    sw = [f'v_add_u32 v{vDA}, s{fDeltaA}, v{vDA}', f'v_add_u32 v{vDW}, s{fDeltaW}, v{vDW}',
          f's_mov_b32 s{sW}, s{pWo}', f's_mov_b32 s{sW+1}, s{pWo+1}', f's_mov_b32 s{sW+2}, {SZ["wo"]:#x}']
    body_switch(sw)
    e(f's_sub_u32 s{fCnt}, s{fCn}, 1')
    loop('LF_loop2')
    body(True, False, 2*ND); body(False, False, ND); body(False, False, 0); body(False, False, None)
    st('fin_loop')
    units = [(j, i, m) for j in range(3) for i in range(2) for m in range(2)]
    sX, sOut = S1, S2
    srd_from(e, sO, pWs, SZ_PART, WS_PART)
    srd_from(e, sX, pX, SZ['x']); srd_from(e, sOut, pOut, SZ['out'])
    e(f's_mul_i32 s{fTile}, s{fTt}, 3\ns_add_u32 s{fTile}, s{fTile}, s{fNt}')
    e(f's_mul_i32 s{fPb}, s{fTile}, {12*5*4*1024}\ns_lshl_b32 s4, s{sWave}, 10\ns_add_u32 s{fPb}, s{fPb}, s4')
    vXo, vOo, vTt = 10, 11, 7
    e(f's_lshl_b32 s4, s{fTt}, 7\ns_and_b32 s5, s{sWave}, 1\ns_lshl_b32 s5, s5, 6\ns_add_u32 s4, s4, s5')
    e(f'v_and_b32 v{vTt}, 31, v{vLane}\nv_add_u32 v{vTt}, s4, v{vTt}\ns_movk_i32 s5, 1152\nv_mul_lo_u32 v{vTt}, v{vTt}, s5')
    e(f's_mul_i32 s4, s{fNt}, 384\ns_lshr_b32 s5, s{sWave}, 1\ns_mul_i32 s5, s5, 192\ns_add_u32 s4, s4, s5\nv_add_u32 v{vTt}, s4, v{vTt}')
    e(f'v_lshrrev_b32 v{vTt+1}, 5, v{vLane}\nv_lshl_add_u32 v{vXo}, v{vTt+1}, 3, v{vTt}\nv_lshl_add_u32 v{vOo}, v{vTt+1}, 4, v{vTt}')
    e('s_nop 7')
    n0 = st.n; names0 = list(st.names)
    for sp in range(5):
        st.n = n0; st.names = list(names0)
        if sp < 4: e(f's_cmp_lg_u32 s{fSp}, {sp}\ns_cbranch_scc1 LX_n{sp}')
        own = [u for u in range(12) if u % 5 == sp]
        nn = 0
        for u, (j, i, m) in enumerate(units):
            if u in own: continue
            p_ = 160 + 4 * (nn % 8); nn += 1
            for r in range(4): e(f'v_cvt_pk_bf16_f32 v{p_+r}, {acc[j,i][8*m+2*r]}, {acc[j,i][8*m+2*r+1]}')
            e(f's_add_u32 s4, s{fPb}, {(u*5 + sp)*4*1024}')
            e(f'buffer_store_dwordx4 v[{p_}:{p_+3}], v{vL16}, {srd(sO)}, s4 offen sc1')
        for k, u in enumerate(own):
            j, i, m = units[u]
            off = i*32*1152 + (32*j + 16*m)*2
            xr = (20, 24, 52)[k]
            e(f's_mov_b32 s4, {off}')
            e(f'buffer_load_dwordx2 v[{xr}:{xr+1}], v{vXo}, {srd(sX)}, s4 offen')
            e(f'buffer_load_dwordx2 v[{xr+2}:{xr+3}], v{vXo}, {srd(sX)}, s4 offen offset:16')
        st('x_issued')
        e('s_waitcnt vmcnt(0)')
        st('x_drained')
        e(f's_lshl_b32 s4, s{fTile}, 5\ns_add_u32 s4, s4, s{sWave}\ns_lshl_b32 s{fPo}, s4, 2\ns_add_u32 s{fPo}, s{fPo}, {FL_EX}')
        e(f'v_mov_b32 v12, s{sTag}\nv_mov_b32 v13, {sp*16}\ns_mov_b64 exec, 1')
        e(f'buffer_store_dword v12, v13, {srd(SF)}, s{fPo} offen sc1')
        e('s_mov_b64 exec, -1')
        e(f'v_min_u32 v{vPo-7}, 4, v{vLane}\nv_lshlrev_b32 v{vPo-7}, 4, v{vPo-7}')
        e(f'buffer_load_dword v{vPo-8}, v{vPo-7}, {srd(SF)}, s{fPo} offen sc1')
        e('s_mov_b32 s33, 0xffff0000')
        for k, u in enumerate(own):
            j, i, m = units[u]
            a_ = acc[j, i][8*m:8*m+8]
            for r in range(8):
                src = (20, 24, 52)[k] + (r >> 1)
                e(f'v_and_b32 v{56+r}, s33, v{src}' if r & 1 else f'v_lshlrev_b32 v{56+r}, 16, v{src}')
            for r in range(8): e(f'v_add_f32 {a_[r]}, v{56+r}, {a_[r]}')
        e('s_waitcnt vmcnt(0)')
        flag_check(e, vPo - 8, vPo - 7, f's{fPo}', 5, lanemask=0x1f & ~(1 << sp))
        st('x_flags')
        srcs = [q for q in range(5) if q != sp]
        def preg(k, z): return 160 + 16*k + 4*z
        for k, u in enumerate(own):
            for z, q in enumerate(srcs):
                r0 = preg(k, z)
                e(f's_add_u32 s4, s{fPb}, {(u*5 + q)*4*1024}')
                e(f'buffer_load_dwordx4 v[{r0}:{r0+3}], v{vL16}, {srd(sO)}, s4 offen sc1')
        e('s_mov_b32 s5, 0xffff0000')
        for k, u in enumerate(own):
            j, i, m = units[u]
            e(f's_waitcnt vmcnt({4*(len(own) - 1 - k) + k})')
            a_ = acc[j, i][8*m:8*m+8]
            for z in range(4):
                for r in range(8):
                    src = preg(k, z) + (r >> 1)
                    t_ = 56 + r
                    e(f'v_and_b32 v{t_}, s5, v{src}' if r & 1 else f'v_lshlrev_b32 v{t_}, 16, v{src}')
                for r in range(8): e(f'v_add_f32 {a_[r]}, {a_[r]}, v{56+r}')
            o_ = 40 + 4*k
            for r in range(4): e(f'v_cvt_pk_bf16_f32 v{o_+r}, {a_[2*r]}, {a_[2*r+1]}')
            e(f's_nop 1\nv_permlane32_swap_b32 v{o_}, v{o_+2}\nv_permlane32_swap_b32 v{o_+1}, v{o_+3}')
            off = i*32*1152 + (32*j + 16*m)*2
            e(f's_mov_b32 s4, {off}')
            e(f'buffer_store_dwordx4 v[{o_}:{o_+3}], v{vOo}, {srd(sOut)}, s4 offen {"sc1" if ARG("outsc1") else ""}')
        e('s_branch L_end')
        if sp < 4: e.label(f'LX_n{sp}')
```

```python
from v5c import *
import v5fin

def gen_mega(name):
    e = Em()
    for x in sys.argv:
        if x.startswith('age='): e.age = float(x[4:])
    st = St(e)
    kernel_header(e, name)
    kv = phase_start_kv(e, st)
    if ARG('exit_kv'): e('s_branch L_end')
    if ARG('kviter'):
        st('kvend'); e('s_branch L_end'); gen_common.STAMP = False
    gu = phase_gu(e, st, kv)
    if ARG('exit_gu'): e('s_branch L_end')
    phase_attn(e, st, gu)
    v5fin.phase_fin(e, st)
    e.label('L_end')
    if ARG('kviter'): gen_common.STAMP = True
    if gen_common.STAMP:
        e('s_waitcnt vmcnt(0)')
        if not ARG('kviter'): st('end')
        if ARG('dbgout'):
            e('s_cmp_lg_u32 s2, 0\ns_cbranch_scc1 L_nodbg\ns_cmp_lg_u32 s3, 0\ns_cbranch_scc1 L_nodbg')
            load_ptr(e, 4, 'dbg')
            e('s_waitcnt lgkmcnt(0)\ns_mov_b32 s6, 256\ns_mov_b32 s7, 0x20000')
            e(f'v_readlane_b32 s32, v{mega_common.vStamp}, 61')
            sel = [3, 4, 5, 6, 7, 8, 9, 14, 17, 18, 21]
            for k, n in enumerate(sel):
                e(f'v_readlane_b32 s33, v{mega_common.vStamp}, {32 + n}\ns_nop 3\ns_sub_u32 s33, s33, s32\nv_mov_b32 v3, s33\nv_mov_b32 v4, {4*(k+1)}')
                e('buffer_store_dword v3, v4, s[4:7], 0 offen')
            e.label('L_nodbg')
        st.flush()
    if ARG('span'):
        e('s_waitcnt vmcnt(0)\ns_memrealtime s[4:5]\ns_waitcnt lgkmcnt(0)')
        e(f'v_mov_b32 v6, s92\nv_mov_b32 v7, s4\ns_add_u32 s4, s{pWs}, {gen_common.WS_STAMP:#x}\ns_addc_u32 s5, s{pWs+1}, 0\ns_mov_b32 s6, 0x100000\ns_mov_b32 s7, 0x20000')
        e(f's_lshl_b32 s32, s2, 2\ns_add_u32 s32, s32, s{sWave}\ns_lshl_b32 s32, s32, 3\nv_mov_b32 v5, s32\ns_mov_b64 exec, 1')
        e('buffer_store_dwordx2 v[6:7], v5, s[4:7], 0 offen')
    e.label('L_done')
    e('s_endpgm')
    e.label('L_codeend')
    return e, kernel_desc(name, 512, 102, 256), st

if __name__ == '__main__':
    gen_common.STAMP = 'stamp' in sys.argv
    HEADER = open('parallel_sum__compressed_kv_cla__glu_gated_geglu__prompt.s.ref').read().split('; Override launch')[0]
    KNAME = 'parallel_sum__compressed_kv_cla__glu_gated_geglu__prompt_kernel'
    e, desc, st = gen_mega(KNAME)
    out = HEADER
    out += '; @launch grid=(256,1,1) block=(256,1,1) lds=163840\n'
    out += '.amdgcn_target "amdgcn-amd-amdhsa--gfx950"\n.text\n' + e.text()
    out += '.section .rodata,"a"\n.p2align 6\n' + desc
    errs = check_hazards(e.lines, 'mega')
    print('hazards:', len(errs), 'lines', len(e.lines), 'stamps', st.names, file=sys.stderr)
    if ARG('nosc1ld'): out = out.replace(' sc1 lds', ' lds')
    open(sys.argv[1], 'w').write(out)
```

```python
from v5b import *
if ARG('oldmap'):
    HS = [15, 14, 14, 14, 15]; CS = [12, 13, 13, 13, 13]
elif ARG('map3'):
    HS = [15, 14, 14, 14, 15]; CS = [12, 13, 13, 13, 13]
elif ARG('map2'):
    HS = [14, 14, 14, 15, 15]; CS = [12, 12, 13, 13, 14]
else:
    HS = [13, 14, 14, 15, 16]; CS = [12, 12, 13, 14, 13]
assert sum(HS) == 72 and sum(CS) == 64
NS = 4; SS = 40960; ACTB = 16384; PITCH = 1152; ND = 10
sW, sA, sO = S0, sACT, S3
fTt, fNt, fSp, fHst, fHn, fCst, fCn = 36, 37, 40, 45, 46, 47, 49
fSo = {(0, 0): '0', (0, 1): 's56', (1, 0): 's57', (1, 1): 's58', (2, 0): 's59', (2, 1): 's67'}
fM0A, fM0W, fDst, fDeltaA, fDeltaW, fT0, fCnt = 70, 71, 82, 83, 86, 87, 94
fStage, fPo, fTile, fPb = 28, 29, 30, 31
vDA, vDW, vPoll, vPo = 11, 12, 25, 26

import re as _re
def retemp(x):
    return _re.sub(r'\bs6\b', 's101', _re.sub(r'\bs5\b', 's33', _re.sub(r'\bs4\b', 's32', x)))
def ptrs(e):
    e(f's_lshl_b32 s4, s{fTt}, 2\ns_add_u32 s4, s4, s{sWave}\ns_mul_i32 s4, s4, 544\ns_lshl_b32 s5, s{fHst}, 2\ns_add_u32 s4, s4, s5\ns_add_u32 s4, s4, 256\ns_lshl_b32 s4, s4, 10')
    e(f'v_add_u32 v{vDA}, s4, v{vL16}')
    e(f'v_lshrrev_b32 v{vT}, 3, v{vLane}\nv_mul_u32_u24 v{vDW}, {PITCH}, v{vT}')
    e(f'v_bfe_u32 v{vT}, v{vLane}, 4, 1\nv_bfe_u32 v{PFV}, v{vLane}, 2, 1\nv_xor_b32 v{vT}, v{vT}, v{PFV}')
    e(f'v_lshl_add_u32 v{vDW}, v{vT}, 6, v{vDW}\nv_and_b32 v{vT}, 3, v{vLane}\nv_lshl_add_u32 v{vDW}, v{vT}, 4, v{vDW}')
    e(f's_mul_i32 s4, s{fNt}, 384\ns_lshl_b32 s5, s{fHst}, 6\ns_lshl_b32 s6, s{sWave}, 4\ns_add_u32 s5, s5, s6\ns_mul_i32 s5, s5, {PITCH}\ns_add_u32 s4, s4, s5')
    e(f'v_add_u32 v{vDW}, s4, v{vDW}')
    e(f's_mov_b32 s{fDst}, 0')
    make_srd(e, sW, pWd, SZ['wd'])

def setup(e):
    if ARG('oldmap'):
        e(f's_cmp_ge_u32 s{sIdx}, 15\ns_cselect_b32 s4, 1, 0\ns_mul_i32 s5, s4, 15\ns_sub_u32 s5, s{sIdx}, s5')
        e(f's_lshl_b32 s6, s{sXcd}, 1\ns_add_u32 s{fTt}, s6, s4')
        e(f's_mul_i32 s6, s5, 86\ns_lshr_b32 s{fSp}, s6, 8\ns_mul_i32 s6, s{fSp}, 3\ns_sub_u32 s{fNt}, s5, s6')
    elif ARG('map3'):
        e(f's_sub_u32 s5, s{sIdx}, 2\ns_max_i32 s5, s5, 0\ns_mul_i32 s6, s{sXcd}, 30\ns_add_u32 s5, s5, s6')
        e(f's_mul_i32 s6, s5, 1366\ns_lshr_b32 s{fSp}, s6, 16\ns_mul_i32 s6, s{fSp}, 48\ns_sub_u32 s5, s5, s6')
        e(f's_mul_i32 s6, s5, 86\ns_lshr_b32 s{fTt}, s6, 8\ns_mul_i32 s6, s{fTt}, 3\ns_sub_u32 s{fNt}, s5, s6')
    else:
        e(f's_sub_u32 s5, s{sIdx}, 2\ns_max_i32 s5, s5, 0')
        e(f's_mul_i32 s6, s5, 43\ns_lshr_b32 s{fSp}, s6, 8\ns_mul_i32 s6, s{fSp}, 6\ns_sub_u32 s5, s5, s6')
        e(f's_cmp_ge_u32 s5, 3\ns_cselect_b32 s4, 1, 0\ns_mul_i32 s6, s4, 3\ns_sub_u32 s{fNt}, s5, s6')
        e(f's_lshl_b32 s6, s{sXcd}, 1\ns_add_u32 s{fTt}, s6, s4')
    hst = [sum(HS[:i]) for i in range(5)]; cst = [sum(CS[:i]) for i in range(5)]
    e(f's_mov_b32 s{fHst}, {hst[0]}\ns_mov_b32 s{fHn}, {HS[0]}\ns_mov_b32 s{fCst}, {cst[0]}\ns_mov_b32 s{fCn}, {CS[0]}')
    for i in range(1, 5):
        e(f's_cmp_eq_u32 s{fSp}, {i}\ns_cselect_b32 s{fHst}, {hst[i]}, s{fHst}\ns_cselect_b32 s{fHn}, {HS[i]}, s{fHn}\ns_cselect_b32 s{fCst}, {cst[i]}, s{fCst}\ns_cselect_b32 s{fCn}, {CS[i]}, s{fCn}')
    e(f's_add_u32 s4, s{fHst}, s{fHn}\ns_lshl_b32 s5, s4, 2\ns_add_u32 s5, s5, 256\ns_lshl_b32 s6, s{fCst}, 2\ns_sub_u32 s5, s6, s5\ns_lshl_b32 s{fDeltaA}, s5, 10')
    e(f's_sub_u32 s4, s{fCst}, s4\ns_mul_i32 s{fDeltaW}, s4, {64*PITCH}')
    for (nb2, j), r in fSo.items():
        if r != '0': e(f's_mov_b32 {r}, {nb2 * 128 + j * (8 * PITCH - 1024)}')
    e(f's_lshl_b32 s{fM0A}, s{sWave}, 12')
    e(f's_lshl_b32 s4, s{sWave}, 11\ns_add_u32 s{fM0W}, s4, {ACTB}')
    ptrs(e)
    e(f'v_and_b32 v{vPo}, 31, v{vLane}\nv_lshlrev_b32 v{vPo}, 2, v{vPo}')
    e(f's_lshr_b32 s4, s{fTt}, 1\ns_lshl_b32 s4, s4, 7\ns_add_u32 s{fPo}, s4, {FL_GU}')
    e(f'buffer_load_dword v{vPoll}, v{vPo}, {srd(SF)}, s{fPo} offen sc1')

def check_gu(e):
    flag_check(e, vPoll, vPo, f's{fPo}', 32)

_cnt = [0]
def dma_ops(tag=None):
    g = []
    g.append([f's_add_u32 m0, s{fDst}, s{fM0A}', f's_add_u32 s{fT0}, s{fDst}, s{fM0W}', (f'buffer_load_dwordx4 v{vDA}, {srd(sA)}, 0 offen sc1 lds', tag)])
    for i in range(1, 4):
        g.append([(f'buffer_load_dwordx4 v{vDA}, {srd(sA)}, 0 offen offset:{1024*i} sc1 lds', tag)])
    for nb2 in range(3):
        g.append([f's_add_u32 m0, s{fT0}, {nb2*8192}', 's_nop 0', (f'buffer_load_dwordx4 v{vDW}, {srd(sW)}, {fSo[nb2,0]} offen lds', tag)])
        g.append([(f'buffer_load_dwordx4 v{vDW}, {srd(sW)}, {fSo[nb2,1]} offen offset:1024 lds', tag)])
    g[-1] += [f'v_add_u32 v{vDA}, 4096, v{vDA}', f'v_add_u32 v{vDW}, {64*PITCH}, v{vDW}',
              f's_add_u32 s{fDst}, s{fDst}, {SS}', f's_cmp_ge_u32 s{fDst}, {NS*SS}', f's_cselect_b32 s{fDst}, 0, s{fDst}']
    return g
def pre():
    return dma_ops(('f', 0)) + dma_ops(('f', 1)) + (pre2x() if ARG('oldpre') else [])
def pre2x():
    return dma_ops(('f', 2)) + dma_ops(('f', 3))[:5]
def pre2():
    return pre2x() if ARG('pre2') else []

def phase_fin(e, st):
    def mfma(D, A, B, C=None): return f'v_mfma_f32_32x32x16_bf16 {D}, {A}, {B}, {C if C is not None else D}'
    def strip(l): return [x[0] if isinstance(x, tuple) else x for x in l]
    def pub_ctx(suffix):
        o = []
        for x, lab in ((0, 'L_pubcl' + suffix), (1, 'L_pubcs' + suffix)):
            ops = ([f's_sub_u32 s4, 15, s{sP}'] if x == 0 else [f's_mov_b32 s4, s{sP}']) + \
                  ['s_lshl_b32 s4, s4, 5', f's_add_u32 s4, s4, s{sH}', 's_lshl_b32 s4, s4, 2', f's_add_u32 s4, s4, {FL_CTX}']
            o += strip(publish_ops(ops, lab, vt=22))
        return o
    e((f's_cmp_lt_u32 s{sIdx}, 30' if ARG('oldmap') else f's_cmp_ge_u32 s{sIdx}, 2') + '\ns_cbranch_scc1 LF_go')
    e('s_waitcnt vmcnt(0)\ns_barrier')
    for x in pub_ctx('x'): e(x)
    e('s_branch L_end')
    e.label('LF_go')
    vA, vAb = 3, 4
    vW0b, vW1b = 8, 9
    vB = [13, 14, 15]; vBb = [16, 17, 18]
    FS = [([R('v', 160 + 20*b + 4*i, 4) for i in range(2)], [R('v', 168 + 20*b + 4*i, 4) for i in range(3)]) for b in range(4)]
    acc = {(j, i): R('v', 64 + 16 * (2*j + i), 16) for j in range(3) for i in range(2)}
    e(f's_and_b32 s4, s{sWave}, 1\ns_lshl_b32 s4, s4, 13\nv_add_u32 v{vAb}, s4, v{vL16}')
    lane_w_base(e, vW0b, vW1b, vT, 1, 512)
    e(f'v_add_u32 v{vW0b}, {ACTB}, v{vW0b}\nv_add_u32 v{vW1b}, {ACTB}, v{vW1b}')
    e(f's_lshr_b32 s4, s{sWave}, 1\ns_cmp_eq_u32 s4, 0\ns_cbranch_scc0 LF_wn1')
    e(f'v_mov_b32 v{vBb[0]}, v{vW0b}\nv_mov_b32 v{vBb[1]}, v{vW1b}\nv_add_u32 v{vBb[2]}, 8192, v{vW0b}\ns_branch LF_wn2')
    e.label('LF_wn1')
    e(f'v_add_u32 v{vBb[0]}, 8192, v{vW1b}\nv_add_u32 v{vBb[1]}, 16384, v{vW0b}\nv_add_u32 v{vBb[2]}, 16384, v{vW1b}')
    e.label('LF_wn2')
    p2 = pre2()
    for i in range(96):
        e(f'v_mov_b32 v{64+i}, 0')
        if i % 6 == 5 and p2: emit_list(e, p2.pop(0))
    for g in p2: emit_list(e, g)
    e(f's_mov_b32 s{fStage}, 0')
    e(f'v_mov_b32 v{vA}, v{vAb}')
    for j in range(3): e(f'v_mov_b32 v{vB[j]}, v{vBb[j]}')
    def reads(ks, FA, FW):
        r = []
        def wrd(j):
            for i2 in range(2):
                r.append(f'ds_read_b64_tr_b16 {FW[j][2*i2:2*i2+2]}, v{vB[j]} offset:{(4*ks + 2*i2)*512}')
        wrd(0)
        for i in range(2): r.append(f'ds_read_b128 {FA[i]}, v{vA} offset:{i*4096 + ks*1024}')
        wrd(1); wrd(2)
        return r
    def mfmas(FA, FW): return [mfma(acc[j, i], FW[j], FA[i]) for j in range(3) for i in range(2)]
    def inter(mf, fills):
        for k, m in enumerate(mf):
            e(m)
            for f in fills.get(k, []): e(f)
    e.wait_vm(('f', 0), barrier=True)
    st('fin_first')
    for x in reads(0, *FS[0]) + reads(1, *FS[1]): e(x)
    SW = []
    def body(h2, h1, vm, hook=None, custom=None):
        dg = [strip(g) for g in dma_ops()]
        for ks in range(4):
            fills = {}
            rd = []
            if ks == 2 and vm is not None:
                e(f's_waitcnt vmcnt({vm}) lgkmcnt(0)\ns_barrier')
                for x in [f's_add_u32 s{fStage}, s{fStage}, {SS}', f's_cmp_ge_u32 s{fStage}, {NS*SS}', f's_cselect_b32 s{fStage}, 0, s{fStage}',
                          f'v_add_u32 v{vA}, s{fStage}, v{vAb}'] + [f'v_add_u32 v{vB[j]}, s{fStage}, v{vBb[j]}' for j in range(3)]: e(x)
            elif ks == 3:
                pass
            elif ks == 2:
                e('s_waitcnt lgkmcnt(0)')
            else:
                e('s_waitcnt lgkmcnt(8)')
            if ks < 2: rd = reads(ks + 2, *FS[ks + 2])
            elif vm is not None: rd = reads(ks - 2, *FS[ks - 2])
            for k_, x in enumerate(rd): fills.setdefault(k_ // 2, []).append(x)
            if ks == 2 and SW:
                fills.setdefault(0, []).extend(SW); SW.clear()
            part = []
            if h2 and ks == 0: part = dg[5:8]
            if h2 and ks == 1: part = dg[8:10]
            if h1 and ks == 2: part = dg[0:3]
            if h1 and ks == 3: part = dg[3:5]
            if custom is not None:
                part = custom[ks]
                for k_, g in enumerate(part): fills.setdefault(min(k_ * 6 // max(len(part), 1), 5), []).extend(g)
            else:
                for k_, g in enumerate(part): fills.setdefault(min(1 + 2*k_, 5), []).extend(g)
            if ks == 3 and hook: fills.setdefault(0, []).extend(hook)
            inter(mfmas(*FS[ks]), fills)
    def body_switch(sw):
        SW.extend(sw)
        body(True, True, 2*ND)
    def loop(lab, hook=None):
        e('.p2align 6'); e.label(lab)
        body(True, True, 2*ND, hook)
        e(f's_sub_u32 s{fCnt}, s{fCnt}, 1\ns_cmp_lg_u32 s{fCnt}, 0\ns_cbranch_scc1 {lab}')
    if not ARG('pre2') and not ARG('oldpre'):
        dg = [strip(g) for g in dma_ops()]
        body(False, False, 15, custom={0: dg[0:8], 1: dg[8:10] + dg[0:5], 2: dg[5:10], 3: dg[0:5]})
        e(f's_sub_u32 s{fCnt}, s{fHn}, 6\ns_sub_u32 s33, s{fCnt}, 2')
    else:
        e(f's_sub_u32 s{fCnt}, s{fHn}, 5\ns_sub_u32 s33, s{fCnt}, 3')
    hook = [f's_cmp_lg_u32 s{fCnt}, s33', 's_cbranch_scc1 LF_nohook'] + pub_ctx('') + ['LF_nohook:']
    loop('LF_loop1', hook)
    e(f's_lshl_b32 s4, s{fTt}, 7\ns_add_u32 s{fPo}, s4, {FL_CTX}')
    e(f'buffer_load_dword v{vPoll}, v{vPo}, {srd(SF)}, s{fPo} offen sc1')
    body(True, True, 2*ND)
    e(f's_waitcnt vmcnt({ND})')
    e.vm = []
    flag_check(e, vPoll, vPo, f's{fPo}', 32)
    sw = [f'v_add_u32 v{vDA}, s{fDeltaA}, v{vDA}', f'v_add_u32 v{vDW}, s{fDeltaW}, v{vDW}',
          f's_mov_b32 s{sW}, s{pWo}', f's_mov_b32 s{sW+1}, s{pWo+1}', f's_mov_b32 s{sW+2}, {SZ["wo"]:#x}']
    body_switch(sw)
    e(f's_sub_u32 s{fCnt}, s{fCn}, 1')
    loop('LF_loop2')
    body(True, False, 2*ND); body(False, False, ND); body(False, False, 0); body(False, False, None)
    st('fin_loop')
    units = [(j, i, m) for j in range(3) for i in range(2) for m in range(2)]
    sX, sOut = S1, S2
    srd_from(e, sO, pWs, SZ_PART, WS_PART)
    srd_from(e, sX, pX, SZ['x']); srd_from(e, sOut, pOut, SZ['out'])
    e(f's_mul_i32 s{fTile}, s{fTt}, 3\ns_add_u32 s{fTile}, s{fTile}, s{fNt}')
    e(f's_mul_i32 s{fPb}, s{fTile}, {12*5*4*1024}\ns_lshl_b32 s4, s{sWave}, 10\ns_add_u32 s{fPb}, s{fPb}, s4')
    vXo, vOo, vTt = 10, 11, 7
    e(f's_lshl_b32 s4, s{fTt}, 7\ns_and_b32 s5, s{sWave}, 1\ns_lshl_b32 s5, s5, 6\ns_add_u32 s4, s4, s5')
    e(f'v_and_b32 v{vTt}, 31, v{vLane}\nv_add_u32 v{vTt}, s4, v{vTt}\ns_movk_i32 s5, 1152\nv_mul_lo_u32 v{vTt}, v{vTt}, s5')
    e(f's_mul_i32 s4, s{fNt}, 384\ns_lshr_b32 s5, s{sWave}, 1\ns_mul_i32 s5, s5, 192\ns_add_u32 s4, s4, s5\nv_add_u32 v{vTt}, s4, v{vTt}')
    e(f'v_lshrrev_b32 v{vTt+1}, 5, v{vLane}\nv_lshl_add_u32 v{vXo}, v{vTt+1}, 3, v{vTt}\nv_lshl_add_u32 v{vOo}, v{vTt+1}, 4, v{vTt}')
    e('s_nop 7')
    n0 = st.n; names0 = list(st.names)
    for sp in range(5):
        st.n = n0; st.names = list(names0)
        if sp < 4: e(f's_cmp_lg_u32 s{fSp}, {sp}\ns_cbranch_scc1 LX_n{sp}')
        own = [u for u in range(12) if u % 5 == sp]
        nn = 0
        for u, (j, i, m) in enumerate(units):
            if u in own: continue
            p_ = 160 + 4 * (nn % 8); nn += 1
            for r in range(4): e(f'v_cvt_pk_bf16_f32 v{p_+r}, {acc[j,i][8*m+2*r]}, {acc[j,i][8*m+2*r+1]}')
            e(f's_add_u32 s4, s{fPb}, {(u*5 + sp)*4*1024}')
            e(f'buffer_store_dwordx4 v[{p_}:{p_+3}], v{vL16}, {srd(sO)}, s4 offen sc1')
        for k, u in enumerate(own):
            j, i, m = units[u]
            off = i*32*1152 + (32*j + 16*m)*2
            xr = (20, 24, 52)[k]
            e(f's_mov_b32 s4, {off}')
            e(f'buffer_load_dwordx2 v[{xr}:{xr+1}], v{vXo}, {srd(sX)}, s4 offen')
            e(f'buffer_load_dwordx2 v[{xr+2}:{xr+3}], v{vXo}, {srd(sX)}, s4 offen offset:16')
        st('x_issued')
        e('s_waitcnt vmcnt(0)')
        st('x_drained')
        e(f's_lshl_b32 s4, s{fTile}, 5\ns_add_u32 s4, s4, s{sWave}\ns_lshl_b32 s{fPo}, s4, 2\ns_add_u32 s{fPo}, s{fPo}, {FL_EX}')
        e(f'v_mov_b32 v12, s{sTag}\nv_mov_b32 v13, {sp*16}\ns_mov_b64 exec, 1')
        e(f'buffer_store_dword v12, v13, {srd(SF)}, s{fPo} offen sc1')
        e('s_mov_b64 exec, -1')
        e(f'v_min_u32 v{vPo-7}, 4, v{vLane}\nv_lshlrev_b32 v{vPo-7}, 4, v{vPo-7}')
        e(f'buffer_load_dword v{vPo-8}, v{vPo-7}, {srd(SF)}, s{fPo} offen sc1\ns_waitcnt vmcnt(0)')
        flag_check(e, vPo - 8, vPo - 7, f's{fPo}', 5, lanemask=0x1f & ~(1 << sp))
        st('x_flags')
        srcs = [q for q in range(5) if q != sp]
        def preg(k, z): return 160 + 16*k + 4*z
        for k, u in enumerate(own):
            for z, q in enumerate(srcs):
                r0 = preg(k, z)
                e(f's_add_u32 s4, s{fPb}, {(u*5 + q)*4*1024}')
                e(f'buffer_load_dwordx4 v[{r0}:{r0+3}], v{vL16}, {srd(sO)}, s4 offen sc1')
        e('s_mov_b32 s5, 0xffff0000')
        for k, u in enumerate(own):
            j, i, m = units[u]
            e(f's_waitcnt vmcnt({4*(len(own) - 1 - k) + k})')
            a_ = acc[j, i][8*m:8*m+8]
            for r in range(8):
                src = (20, 24, 52)[k] + (r >> 1)
                e(f'v_and_b32 v{56+r}, s5, v{src}' if r & 1 else f'v_lshlrev_b32 v{56+r}, 16, v{src}')
            for r in range(8): e(f'v_add_f32 v{56+r}, v{56+r}, {a_[r]}')
            for z in range(4):
                for r in range(8):
                    src = preg(k, z) + (r >> 1)
                    e(f'v_and_b32 v{vTt}, s5, v{src}' if r & 1 else f'v_lshlrev_b32 v{vTt}, 16, v{src}')
                    e(f'v_add_f32 v{56+r}, v{56+r}, v{vTt}')
            o_ = 40 + 4*k
            for r in range(4): e(f'v_cvt_pk_bf16_f32 v{o_+r}, v{56+2*r}, v{56+2*r+1}')
            e(f's_nop 1\nv_permlane32_swap_b32 v{o_}, v{o_+2}\nv_permlane32_swap_b32 v{o_+1}, v{o_+3}')
            off = i*32*1152 + (32*j + 16*m)*2
            e(f's_mov_b32 s4, {off}')
            e(f'buffer_store_dwordx4 v[{o_}:{o_+3}], v{vOo}, {srd(sOut)}, s4 offen {"sc1" if ARG("outsc1") else ""}')
        e('s_branch L_end')
        if sp < 4: e.label(f'LX_n{sp}')
```
